```python
import torch

def _softmax(x, axis=-1):
    return torch.softmax(x, dim=axis)

def _gelu(x):
    return torch.nn.functional.gelu(x, approximate='tanh')

def _silu(x):
    return torch.nn.functional.silu(x)

def _sigmoid(x):
    return torch.sigmoid(x)

def _layernorm(x, axis=-1, eps=1e-05):
    m = x.mean(dim=axis, keepdim=True)
    v = x.var(dim=axis, keepdim=True, unbiased=False)
    return (x - m) / torch.sqrt(v + eps)

def _scatter_add(tgt, idx, src, axis=0):
    return tgt.clone().index_add_(axis, idx, src)

def _segment_sum(src, seg, n):
    out = torch.zeros((n,) + src.shape[1:], dtype=src.dtype)
    return out.index_add_(0, seg, src)

def _pad(x, pw):
    flat = tuple((v for pair in reversed(pw) for v in pair))
    return torch.nn.functional.pad(x, flat)
kernel_name = 'recurrent_scan__sliding_local_dilated__mixer_gmlp__prompt'

def setup_inputs():

    _w = lambda a: (lambda t: t.to(torch.bfloat16) if t.is_floating_point() else t)(torch.as_tensor(a))

    def _A_setup():
        B, S, D = (1, 2048, 640)
        return {'x': _w((lambda *s: torch.randn(*s, dtype=torch.bfloat16) * 0.05)(B, S, D)), 'wqkv': _w((lambda *s: torch.randn(*s, dtype=torch.bfloat16) * 0.05)(D, 3 * D)), 'wo': _w((lambda *s: torch.randn(*s, dtype=torch.bfloat16) * 0.05)(D, D))}
    _A_in = _A_setup()

    def _B_setup():
        B, S, D, F = (1, 2048, 640, 1728)
        Fh = F // 2
        return {'x': _w((lambda *s: torch.randn(*s, dtype=torch.bfloat16) * 0.05)(B, S, D)), 'w_in': _w((lambda *s: torch.randn(*s, dtype=torch.bfloat16) * 0.4)(D, 2 * Fh)), 'w_sp': _w(0.01 * (lambda *s: torch.randn(*s, dtype=torch.bfloat16) * 0.4)(S, S)), 'b_sp': _w(1.0 + 0.01 * (lambda *s: torch.randn(*s, dtype=torch.bfloat16) * 0.05)(S)), 'w_out': _w((lambda *s: torch.randn(*s, dtype=torch.bfloat16) * 0.05)(Fh, D))}
    _B_in = _B_setup()
    return {'A_x': _A_in['x'], 'A_wqkv': _A_in['wqkv'], 'A_wo': _A_in['wo'], 'B_x': _B_in['x'], 'B_w_in': _B_in['w_in'], 'B_w_sp': _B_in['w_sp'], 'B_b_sp': _B_in['b_sp'], 'B_w_out': _B_in['w_out']}

def reference(A_x, A_wqkv, A_wo, B_x, B_w_in, B_w_sp, B_b_sp, B_w_out):

    def _A_ref(x, wqkv, wo):
        B, S, D = x.shape
        H = 32
        Dh = D // H
        W, dil = (8, 2)
        qkv = (lambda x, *d: x.permute(*d))((x @ wqkv).reshape(B, S, 3, H, Dh), 2, 0, 3, 1, 4)
        q, k, v = (qkv[0], qkv[1], qkv[2])
        scale = Dh ** (-0.5)
        pos = torch.arange(S)
        off = torch.arange(W) * dil
        idx = pos[:, None] - off[None, :]
        mask = idx >= 0
        idx_c = torch.where(mask, idx, 0).reshape(-1)
        kg = k[:, :, idx_c, :].reshape(B, H, S, W, Dh)
        vg = v[:, :, idx_c, :].reshape(B, H, S, W, Dh)
        logits = torch.einsum('bhsd,bhswd->bhsw', q, kg) * scale
        logits = torch.where(mask[None, None, :, :], logits, -1000000000.0)
        attn = _softmax(logits, axis=-1)
        o = torch.einsum('bhsw,bhswd->bhsd', attn, vg)
        return (lambda x, *d: x.permute(*d))(o, 0, 2, 1, 3).reshape(B, S, D) @ wo

    def _B_ref(x, w_in, w_sp, b_sp, w_out):
        B, S, D = x.shape
        F = w_in.shape[-1]
        Fh = F // 2
        z = _gelu(torch.einsum('bsd,df->bsf', x, w_in))
        z1 = z[..., :Fh].clone()
        z2 = _layernorm(z[..., Fh:], axis=-1)
        g = torch.einsum('ts,bsf->btf', w_sp, z2) + b_sp[None, :, None]
        return torch.einsum('bsf,fd->bsd', z1 * g, w_out)
    x = A_x
    xn = _layernorm(x, axis=-1)
    s = _A_ref(xn, A_wqkv, A_wo)
    g = _silu(_B_ref(xn, B_w_in, B_w_sp, B_b_sp, B_w_out))
    return x + s * g
```

```python
import re

REG_RE = re.compile(r'^(v|s|a)\[(\d+):(\d+)\]$|^(v|s|a)(\d+)$')
TRANS = ('v_exp_f32','v_log_f32','v_rcp_f32','v_rsq_f32','v_sqrt_f32','v_sin_f32','v_cos_f32','v_rcp_iflag_f32')

def regs_of(tok):
    tok = tok.strip()
    neg = tok.lstrip('-').strip('|')
    m = REG_RE.match(neg)
    if m:
        if m.group(1):
            return {(m.group(1), i) for i in range(int(m.group(2)), int(m.group(3)) + 1)}
        return {(m.group(4), int(m.group(5)))}
    if neg in ('vcc',): return {('s','vcc_lo'), ('s','vcc_hi')}
    if neg in ('vcc_lo','vcc_hi'): return {('s',neg)}
    if neg == 'exec': return {('s','exec_lo'),('s','exec_hi')}
    if neg in ('exec_lo','exec_hi'): return {('s',neg)}
    if neg == 'm0': return {('s','m0')}
    return set()

class Ins:
    __slots__ = ('text','op','cls','dst','src','passes','srcC','srcAB','lds','dpp','isstore','wide','label')
    def __init__(self, text):
        self.text = text
        self.label = False
        t = text.split(';')[0].strip()
        self.dst = set(); self.src = set(); self.srcC = set(); self.srcAB = set()
        self.passes = 0; self.lds = False; self.dpp = False; self.isstore = False; self.wide = False
        if not t or t.startswith('.'):
            self.op = ''; self.cls = 'none'; return
        if t.endswith(':'):
            self.op = ''; self.cls = 'label'; self.label = True; return
        parts = t.split(None, 1)
        op = parts[0]; self.op = op
        rest = parts[1] if len(parts) > 1 else ''
        ops = []; cur = ''; depth = 0
        for ch in rest:
            if ch == '[': depth += 1
            if ch == ']': depth -= 1
            if ch == ',' and depth == 0:
                ops.append(cur.strip()); cur = ''
            else: cur += ch
        if cur.strip(): ops.append(cur.strip())
        mods = ''
        if ops:
            sp = ops[-1].split(None, 1)
            if len(sp) > 1:
                ops[-1] = sp[0]; mods = sp[1]
        R = [regs_of(o) for o in ops]
        if op.startswith('v_mfma'):
            self.cls = 'mfma'
            self.passes = 8 if '32x32x16' in op else (4 if '16x16x32' in op else 16)
            self.dst = R[0]; self.srcAB = R[1] | R[2]; self.srcC = R[3]; self.src = self.srcAB | self.srcC
        elif op.startswith('v_'):
            self.cls = 'trans' if op.replace('_e32','').replace('_e64','') in TRANS else 'valu'
            self.dpp = ('row_' in mods or 'quad_perm' in mods or 'wave_' in mods or 'row_' in rest and 'row_shr' in rest)
            if op.startswith('v_permlane') and 'swap' in op:
                self.dst = R[0] | R[1]; self.src = R[0] | R[1]; self.cls = 'perml'
            elif op.startswith('v_cmp'):
                self.dst = R[0]; self.src = set().union(*R[1:]) if len(R) > 1 else set()
                if op.startswith('v_cmpx'): self.dst |= regs_of('exec')
            elif op.startswith('v_readfirstlane') or op.startswith('v_readlane'):
                self.cls = 'rdlane'; self.dst = R[0]; self.src = set().union(*R[1:])
            else:
                self.dst = R[0]; self.src = set().union(*R[1:]) if len(R) > 1 else set()
                if op.startswith(('v_fmac','v_mac','v_dot2c','v_writelane')): self.src |= R[0]
                if op.startswith('v_cndmask') and len(R) == 3: self.src |= regs_of('vcc')
                if op.startswith(('v_add_co','v_sub_co','v_addc_co','v_subb_co')):
                    self.dst = R[0] | R[1]; self.src = set().union(*R[2:])
                if op.startswith('v_swap'): self.dst = R[0] | R[1]; self.src = R[0] | R[1]
        elif op.startswith('ds_'):
            self.cls = 'ds'
            if op.startswith(('ds_read', 'ds_bpermute','ds_permute','ds_swizzle')):
                self.dst = R[0]; self.src = set().union(*R[1:])
            else:
                self.src = set().union(*R); self.isstore = True
        elif op.startswith('buffer_') or op.startswith('global_') or op.startswith('flat_'):
            self.cls = 'vmem'
            if op in ('buffer_wbl2','buffer_inv'): return
            self.lds = (' lds' in (' ' + mods)) or op.startswith('global_load_lds')
            if 'load' in op:
                if self.lds:
                    self.src = set().union(*R) | {('s','m0')}
                else:
                    self.dst = R[0]; self.src = set().union(*R[1:])
            else:
                self.src = set().union(*R); self.isstore = True
                self.wide = ('dwordx4' in op or 'dwordx3' in op)
                if 'atomic' in op and ('sc0' in mods): self.dst = R[0] if op.startswith('global') else R[0]
        elif op.startswith('s_'):
            self.cls = 'salu'
            if op.startswith(('s_cmp','s_cbranch','s_branch','s_waitcnt','s_barrier','s_nop','s_endpgm','s_sleep','s_setprio','s_bitcmp')):
                self.src = set().union(*R) if R else set()
            elif op.startswith('s_load') or op.startswith('s_memtime') or op.startswith('s_memrealtime'):
                self.dst = R[0]; self.src = set().union(*R[1:]) if len(R) > 1 else set()
            else:
                self.dst = R[0] if R else set(); self.src = set().union(*R[1:]) if len(R) > 1 else set()
                if 'saveexec' in op: self.dst |= regs_of('exec')
        else:
            raise ValueError('unknown op: ' + text)

def isv(rs): return {r for r in rs if r[0] in ('v','a')}
def iss(rs): return {r for r in rs if r[0] == 's'}
VALUCLS = ('valu','trans','perml','rdlane')

def need(prev, cur):
    n = 0
    pv = prev.cls in VALUCLS
    if prev.cls == 'mfma':
        p = prev.passes
        big = {4: 8, 8: 12, 16: 20}[p]
        if cur.cls == 'mfma':
            if prev.dst & cur.srcAB: n = max(n, big)
            if prev.dst & cur.srcC and not (prev.dst == cur.srcC and prev.passes == cur.passes):
                n = max(n, {4: 6, 8: 10, 16: 18}[p])
            if prev.dst & cur.dst and not (prev.dst == cur.dst): n = max(n, {4: 6, 8: 10, 16: 18}[p])
        elif cur.cls in VALUCLS or cur.cls in ('ds','vmem'):
            if prev.dst & (cur.src | cur.dst): n = max(n, big)
            if cur.cls in VALUCLS and prev.srcC & cur.dst: n = max(n, {4: 3, 8: 7, 16: 15}[p])
    if pv:
        if cur.cls == 'mfma' and isv(prev.dst) & cur.src: n = max(n, 2)
        if prev.cls == 'trans' and cur.cls in VALUCLS and cur.cls != 'trans' and prev.dst & cur.src: n = max(n, 1)
        if prev.cls == 'trans' and cur.cls == 'trans' and prev.dst & cur.src: n = max(n, 1)
        if cur.cls == 'perml' and isv(prev.dst) & cur.src: n = max(n, 2)
        if cur.dpp and isv(prev.dst) & cur.src: n = max(n, 2)
        if cur.cls == 'rdlane' and isv(prev.dst) & cur.src: n = max(n, 1)
        if iss(prev.dst) & cur.src:
            if cur.cls in VALUCLS: n = max(n, 4 if cur.cls == 'rdlane' else 2)
            if cur.cls == 'vmem': n = max(n, 5)
            if cur.cls == 'salu': n = max(n, 4)
            if cur.cls == 'mfma': n = max(n, 4)
        if ('s','exec_lo') in prev.dst and cur.cls in VALUCLS + ('mfma',): n = max(n, 5)
        if ('s','vcc_lo') in prev.dst and cur.op.startswith('s_cbranch_vcc'): n = max(n, 5)
    if prev.cls == 'salu':
        if ('s','m0') in prev.dst and (cur.lds or cur.op.startswith('s_sendmsg')): n = max(n, 1)
        if ('s','exec_lo') in prev.dst | set() and cur.dpp: n = max(n, 1)
    if prev.cls == 'vmem' and prev.isstore and prev.wide:
        if isv(prev.src) & cur.dst: n = max(n, 2 if cur.cls in VALUCLS else 1)
    return n

def states_of(ins):
    if ins.op == 's_nop':
        return int(ins.text.split()[1], 0) + 1
    if ins.cls in ('none','label'): return 0
    return 1

def fix_hazards(lines, window=24):
    out = []
    for text in lines:
        cur = Ins(text)
        if cur.cls not in ('none','label'):
            dist = 0; req = 0
            for prev in reversed(out):
                if dist >= window: break
                if prev.cls not in ('none','label'):
                    n = need(prev, cur)
                    if n > dist: req = max(req, n - dist)
                dist += states_of(prev)
            while req > 0:
                k = min(req, 16)
                out.append(Ins(f"  s_nop {k-1}"))
                req -= k
        out.append(cur)
    return [i.text for i in out]

def auto_waits(lines):
    out = []
    auto = False
    vmq = []
    ldq = []
    vm_total = 0; ld_total = 0
    marks = {}
    def emit_wait(vm=None, ld=None):
        nonlocal vmq, ldq
        parts = []
        if vm is not None and vm < len(vmq):
            vm = min(vm, 63)
            parts.append(f"vmcnt({vm})"); vmq = vmq[len(vmq)-vm:] if vm < len(vmq) else vmq
        if ld is not None and ld < len(ldq):
            ld = min(ld, 15)
            parts.append(f"lgkmcnt({ld})"); ldq = ldq[len(ldq)-ld:] if ld < len(ldq) else ldq
        if parts: out.append("  s_waitcnt " + " ".join(parts))
    for text in lines:
        t = text.strip()
        if t.startswith('@raw '):
            out.append('  ' + t[5:]); continue
        if t.startswith('@'):
            w = t.split()
            if w[0] == '@auto': auto = (w[1] == 'on')
            elif w[0] == '@mark': marks[w[1]] = (vm_total, ld_total)
            elif w[0] == '@waitvm': emit_wait(vm=vm_total - marks[w[1]][0])
            elif w[0] == '@waitlds': emit_wait(ld=ld_total - marks[w[1]][1])
            elif w[0] == '@assume':
                pass
            else: raise ValueError(t)
            continue
        ins = Ins(text)
        if ins.op == 's_waitcnt':
            m = re.search(r'vmcnt\((\d+)\)', t)
            if m:
                n = int(m.group(1)); vmq = vmq[len(vmq)-n:] if n < len(vmq) else vmq
            m = re.search(r'lgkmcnt\((\d+)\)', t)
            if m:
                n = int(m.group(1)); ldq = ldq[len(ldq)-n:] if n < len(ldq) else ldq
            out.append(text); continue
        if ins.cls not in ('none', 'label'):
            if auto:
                touch = isv(ins.src | ins.dst)
                vm = None; ld = None
                for k, regs in enumerate(vmq):
                    if regs & touch: vm = len(vmq) - 1 - k
                for k, regs in enumerate(ldq):
                    if regs & touch: ld = len(ldq) - 1 - k
                emit_wait(vm=vm, ld=ld)
            if ins.cls == 'vmem' and ins.op not in ('buffer_wbl2', 'buffer_inv'):
                vmq.append(isv(ins.dst)); vm_total += 1
            elif ins.cls == 'ds':
                ldq.append(isv(ins.dst)); ld_total += 1
        out.append(text)
    return out

class Prog:
    def __init__(self): self.L = []
    def __call__(self, s):
        for l in s.split('\n'):
            l = l.strip()
            if l: self.L.append(('  ' + l) if not l.endswith(':') else l)
    def finish(self): return '\n'.join(fix_hazards(auto_waits(self.L)))

def vr(a, n=1): return f"v{a}" if n == 1 else f"v[{a}:{a+n-1}]"
def sr(a, n=1): return f"s{a}" if n == 1 else f"s[{a}:{a+n-1}]"
```

```python
from asmlib import Prog, vr, sr

NAME = "recurrent_scan__sliding_local_dilated__mixer_gmlp__prompt"
WS_Z2N = 0x000000
WS_Z1P = 0x380000
WS_U   = 0x700000
WS_O   = 0xA80000
WS_ST  = 0xD00000
WS_PROF= 0xF00000
SZ_Z2N = 64*54*1024
SZ_Z1P = 128*54*512
SZ_U   = 128*54*512
SZ_O   = 128*20*1024
SRD3 = "0x00020000"
OOB = 0x80000000
C1 = -2.302208198
C2 = C1*0.044715

import struct
def f2u(x): return struct.unpack('<I', struct.pack('<f', x))[0]
def hx(x): return f"0x{x & 0xffffffff:x}"

class Alloc:
    def __init__(self, start=0, limit=256, kind='v'):
        self.n = start; self.limit = limit; self.names = {}; self.kind = kind
    def __call__(self, name, cnt=1, align=1):
        if cnt >= 2 and align == 1: align = 2 if self.kind == 'v' else (2 if cnt == 2 else 4)
        self.n = (self.n + align - 1)//align*align
        r = self.n; self.n += cnt
        assert self.n <= self.limit, f"out of {self.kind} regs at {name}: {self.n}"
        self.names[name] = r
        return r

def srd(p, s, base, off_lit=None, off_sreg=None, size=0):
    if off_lit is None and off_sreg is None:
        p(f"s_mov_b32 s{s}, s{base}"); p(f"s_mov_b32 s{s+1}, s{base+1}")
    else:
        o = hx(off_lit) if off_lit is not None else f"s{off_sreg}"
        p(f"s_add_u32 s{s}, s{base}, {o}"); p(f"s_addc_u32 s{s+1}, s{base+1}, 0")
    p(f"s_mov_b32 s{s+2}, {hx(size)}"); p(f"s_mov_b32 s{s+3}, {SRD3}")

def prof_stamp(p, sreg):
    p(f"s_memtime s[{sreg}:{sreg+1}]")

def gelu_ops(x, t, sC1, sC2v):
    return [f"v_mul_f32 v{t}, v{x}, v{x}",
            f"v_fma_f32 v{t}, v{t}, v{sC2v}, s{sC1}",
            f"v_mul_f32 v{t}, v{x}, v{t}",
            f"v_exp_f32 v{t}, v{t}",
            f"v_add_f32 v{t}, 1.0, v{t}",
            f"v_rcp_f32 v{t}, v{t}",
            f"v_mul_f32 v{x}, v{x}, v{t}"]

def emit_p2(p, D=7, DZ=None, prof=False, lds0=0, wrapk=0, nomfma=False, zpos=(0,4), bper=1, tag="P2", touch=0, ssc=""):
    NST = 32
    DZ = DZ or D
    NZ = DZ + 2
    NS = D + 1 + bper
    S = Alloc(4, 100, 's'); V = Alloc(1, 256, 'v')
    sWsp = S('wsp', 2); sBsp = S('bsp', 2); sWs = S('ws', 2)
    sW = S('srdW', 4); sZ = S('srdZ', 4); sZ1 = S('srdZ1', 4); sU = S('srdU', 4); sB = S('srdB', 4)
    sw = S('w'); sRt = S('rt'); sCt = S('ct'); sB0 = S('b0'); sNb = S('nb'); sT0 = S('t0'); sT1 = S('t1')
    sOffW = S('offW'); sOffZ = S('offZ'); sOffZ1 = S('offZ1'); sC1 = S('c1'); sK = S('k54')
    sP0 = S('p0', 2); sP1 = S('p1', 2); sP2 = S('p2', 2)
    vT = V('t'); vG = V('g'); vA = V('a'); vA2 = V('a2')
    vZ = V('z'); vB00 = V('b00'); vB01 = V('b01'); vB10 = V('b10'); vB11 = V('b11'); vC2 = V('c2')
    vBias = V('bias', 4); vZp = V('zp', 8, 2); vGe = V('ge', 16); vTmp = V('tmp', 2); vS = V('st'); vL = V('ld')
    acc = V('acc', 16, 4); bf = V('bf', 64, 4); zb = V('zb', 8*NZ, 4)
    ACC = lambda tb: acc + tb*4
    BF = lambda i, par, tb: bf + (i & 1)*32 + par*16 + tb*4
    ZB = lambda i, par: zb + (i % NZ)*8 + par*4

    p("s_load_dwordx2 s[%d:%d], s[0:1], 40" % (sWsp, sWsp+1))
    p("s_load_dwordx2 s[%d:%d], s[0:1], 48" % (sBsp, sBsp+1))
    p("s_load_dwordx2 s[%d:%d], s[0:1], 80" % (sWs, sWs+1))
    if prof: prof_stamp(p, sP0)
    p(f"v_lshrrev_b32 v{vA}, 6, v0")
    p(f"v_and_b32 v0, 63, v0")
    p(f"v_readfirstlane_b32 s{sw}, v{vA}")
    p(f"s_and_b32 s{sT0}, s2, 7")
    p(f"s_lshr_b32 s{sT1}, s2, 3")
    p(f"s_lshr_b32 s{sRt}, s{sT0}, 1"); p(f"s_lshl_b32 s{sRt}, s{sRt}, 3")
    p(f"s_and_b32 s{sCt}, s{sT1}, 7"); p(f"s_add_u32 s{sRt}, s{sRt}, s{sCt}")
    p(f"s_and_b32 s{sCt}, s{sT0}, 1"); p(f"s_lshl_b32 s{sCt}, s{sCt}, 2")
    p(f"s_lshr_b32 s{sT1}, s{sT1}, 3"); p(f"s_add_u32 s{sCt}, s{sCt}, s{sT1}")
    p(f"s_mul_i32 s{sB0}, s{sCt}, 7"); p(f"s_mul_i32 s{sT0}, s{sCt}, 6"); p(f"s_add_u32 s{sT0}, s{sT0}, 6")
    p(f"s_min_u32 s{sB0}, s{sB0}, s{sT0}")
    p(f"s_cmp_lt_u32 s{sCt}, 6"); p(f"s_cselect_b32 s{sNb}, 7, 6")
    p(f"s_cmp_ge_u32 s{sw}, s{sNb}")
    p(f"s_cbranch_scc1 {tag}_helper")
    p(f"v_and_b32 v{vT}, 15, v0"); p(f"v_lshrrev_b32 v{vG}, 4, v0")
    p(f"s_add_u32 s{sB0}, s{sB0}, s{sw}")
    p(f"s_lshl_b32 s{sT0}, s{sB0}, 10")
    p(f"v_lshlrev_b32 v{vA}, 4, v0"); p(f"v_add_u32 v{vZ}, s{sT0}, v{vA}")
    p(f"v_lshrrev_b32 v{vA2}, 1, v{vT}"); p(f"v_xor_b32 v{vA}, v{vG}, v{vA2}"); p(f"v_lshlrev_b32 v{vA}, 4, v{vA}")
    p(f"v_lshlrev_b32 v{vA2}, 7, v{vT}"); p(f"v_add_u32 v{vB00}, v{vA}, v{vA2}")
    if lds0: p(f"v_add_u32 v{vB00}, {lds0}, v{vB00}")
    p(f"v_xor_b32 v{vB10}, 64, v{vB00}") if lds0 % 128 == 0 else None
    p(f"v_add_u32 v{vB01}, 0x10000, v{vB00}"); p(f"v_add_u32 v{vB11}, 0x10000, v{vB10}")
    p(f"s_mov_b32 s{sC1}, {hx(f2u(C1))}"); p(f"v_mov_b32 v{vC2}, {hx(f2u(C2))}")
    p(f"s_mov_b32 s{sK}, {54*512}")
    p("s_waitcnt lgkmcnt(0)")
    srd(p, sZ, sWs, off_lit=WS_Z2N, size=SZ_Z2N)
    srd(p, sZ1, sWs, off_lit=WS_Z1P, size=SZ_Z1P)
    srd(p, sU, sWs, off_lit=WS_U, size=SZ_U)
    srd(p, sB, sBsp, size=4096)
    p(f"s_mov_b32 s{sOffZ}, 0"); p(f"s_mov_b32 s{sOffZ1}, {54*1024}")
    nt = 0
    if touch & 1:
        p(f"s_and_b32 s{sT0}, s{sRt}, 7"); p(f"v_lshrrev_b32 v{vA}, 3, v0"); p(f"v_lshlrev_b32 v{vA}, 3, v{vA}"); p(f"v_add_u32 v{vA}, s{sT0}, v{vA}")
        p(f"v_mul_u32_u24 v{vA}, {54*1024}, v{vA}"); p(f"v_and_b32 v{vA2}, 7, v0"); p(f"v_lshlrev_b32 v{vA2}, 7, v{vA2}"); p(f"v_add_u32 v{vA}, v{vA}, v{vA2}")
        p(f"s_lshl_b32 s{sT0}, s{sB0}, 10"); p(f"v_add_u32 v{vA}, s{sT0}, v{vA}")
        p(f"buffer_load_dword v{vGe}, v{vA}, s[{sZ}:{sZ+3}], 0 offen")
        nt += 1
    if touch & 2:
        p(f"s_lshl_b32 s{sT0}, s{sRt}, 18")
        srd(p, sW, sWsp, off_sreg=sT0, size=64*4096)
        p(f"s_and_b32 s{sT0}, s{sCt}, 3"); p(f"s_lshl_b32 s{sT1}, s{sw}, 2"); p(f"s_add_u32 s{sT0}, s{sT0}, s{sT1}"); p(f"s_lshl_b32 s{sT0}, s{sT0}, 7")
        p(f"v_lshlrev_b32 v{vA}, 12, v0")
        p(f"buffer_load_dword v{vGe+1}, v{vA}, s[{sW}:{sW+3}], s{sT0} offen")
        nt += 1
    def zloads(i):
        L = [[f"buffer_load_dwordx4 v[{ZB(i,0)}:{ZB(i,0)+3}], v{vZ}, s[{sZ}:{sZ+3}], s{sOffZ} offen"],
             [f"buffer_load_dwordx4 v[{ZB(i,1)}:{ZB(i,1)+3}], v{vZ}, s[{sZ}:{sZ+3}], s{sOffZ1} offen"]]
        if wrapk and (i+1) % wrapk == 0:
            L[0].append(f"s_mov_b32 s{sOffZ}, 0"); L[1].append(f"s_mov_b32 s{sOffZ1}, {54*1024}")
        else:
            L[0].append(f"s_add_u32 s{sOffZ}, s{sOffZ}, {2*54*1024}"); L[1].append(f"s_add_u32 s{sOffZ1}, s{sOffZ1}, {2*54*1024}")
        return L
    for i in range(min(2, DZ)):
        for gr in zloads(i):
            for l in gr: p(l)
    p(f"s_lshl_b32 s{sT0}, s{sRt}, 2"); p(f"s_mul_i32 s{sT1}, s{sT0}, 54"); p(f"s_add_u32 s{sT1}, s{sT1}, s{sB0}"); p(f"s_lshl_b32 s{sT1}, s{sT1}, 9")
    p(f"v_and_b32 v{vA}, 1, v{vG}"); p(f"v_lshlrev_b32 v{vA}, 8, v{vA}")
    p(f"v_lshlrev_b32 v{vA2}, 4, v{vT}"); p(f"v_add_u32 v{vA}, v{vA}, v{vA2}")
    p(f"v_lshrrev_b32 v{vA2}, 1, v{vG}"); p(f"v_lshlrev_b32 v{vA2}, 3, v{vA2}"); p(f"v_add_u32 v{vA}, v{vA}, v{vA2}")
    p(f"v_add_u32 v{vL}, s{sT1}, v{vA}")
    p(f"v_lshrrev_b32 v{vA}, 1, v{vG}"); p(f"v_lshlrev_b32 v{vA}, 8, v{vA}")
    p(f"v_lshlrev_b32 v{vA2}, 4, v{vT}"); p(f"v_add_u32 v{vA}, v{vA}, v{vA2}")
    p(f"v_and_b32 v{vA2}, 1, v{vG}"); p(f"v_lshlrev_b32 v{vA2}, 3, v{vA2}"); p(f"v_add_u32 v{vA}, v{vA}, v{vA2}")
    p(f"v_add_u32 v{vS}, s{sT1}, v{vA}")
    sK2 = S('k2'); sK3 = S('k3')
    p(f"s_mov_b32 s{sK2}, {2*54*512}"); p(f"s_mov_b32 s{sK3}, {3*54*512}")
    KS = ["0", f"s{sK}", f"s{sK2}", f"s{sK3}"]
    for k in range(4):
        p(f"buffer_load_dwordx2 v[{vZp+2*k}:{vZp+2*k+1}], v{vL}, s[{sZ1}:{sZ1+3}], {KS[k]} offen")
    p(f"s_lshl_b32 s{sT0}, s{sT0}, 5")
    p(f"v_lshlrev_b32 v{vA}, 1, v{vT}"); p(f"v_add_u32 v{vA}, s{sT0}, v{vA}")
    for k in range(4):
        p(f"buffer_load_ushort v{vBias+k}, v{vA}, s[{sB}:{sB+3}], 0 offen offset:{32*k}")
    for i in range(2, DZ):
        for gr in zloads(i):
            for l in gr: p(l)
    nextra = 8
    gel = []
    for q in range(16):
        k, c = q//4, q % 4
        src = vZp + k*2 + c//2
        ops = [f"v_lshlrev_b32 v{vGe+q}, 16, v{src}" if c % 2 == 0 else f"v_and_b32 v{vGe+q}, 0xffff0000, v{src}"]
        ops += gelu_ops(vGe+q, vTmp + (q & 1), sC1, vC2)
        gel.append(ops)
    def mfmas(i):
        L = []
        for par in range(2):
            for tb in range(4):
                c = "0" if (i == 0 and par == 0) else f"v[{ACC(tb)}:{ACC(tb)+3}]"
                L.append(f"v_mfma_f32_16x16x32_bf16 v[{ACC(tb)}:{ACC(tb)+3}], v[{ZB(i,par)}:{ZB(i,par)+3}], v[{BF(i,par,tb)}:{BF(i,par,tb)+3}], {c}")
        return L
    for i in range(NST + 1):
        if i < NST:
            if i % bper == 0: p("s_barrier")
            slot = i % NS
            for par in range(2):
                for tb in range(4):
                    off = slot*8192 + tb*2048
                    vb = [[vB00, vB01], [vB10, vB11]][par][off >= 65536]
                    p(f"ds_read_b128 v[{BF(i,par,tb)}:{BF(i,par,tb)+3}], v{vb} offset:{off & 0xffff}")
        groups = zloads(i + DZ) if (i + DZ < NST) else []
        if i >= 1:
            j = i - 1
            last = min(i + DZ - 1, NST - 1)
            out = 2*(last - j) + (nextra if j < 2 and last >= 2 else 0)
            if j == 0 and DZ >= 2: out = 2*(last - 0) + nextra
            if j == 1: out = 2*(last - 1) + nextra
            if j == 2:
                out = 2*(last - 2)
            p(f"s_waitcnt vmcnt({min(out,63)}) lgkmcnt({8 if i < NST else 0})")
            M = mfmas(j) if not nomfma else []
            g = list(gel[i-3]) if 3 <= i < 19 else []
            for n, m in enumerate(M):
                if n in zpos and groups:
                    for l in groups.pop(0): p(l)
                p(m)
                if g: p(g.pop(0))
            for l in g: p(l)
        for gr in groups:
            for l in gr: p(l)
    if prof: prof_stamp(p, sP1)
    for k in range(4): p(f"v_lshlrev_b32 v{vBias+k}, 16, v{vBias+k}")
    for q in range(16): p(f"v_add_f32 v{acc+q}, v{acc+q}, v{vBias+q//4}")
    for q in range(16): p(f"v_mul_f32 v{acc+q}, v{acc+q}, v{vGe+q}")
    for q in range(0, 16, 2): p(f"v_cvt_pk_bf16_f32 v{bf+q//2}, v{acc+q}, v{acc+q+1}")
    for k in range(4):
        p(f"buffer_store_dwordx2 v[{bf+2*k}:{bf+2*k+1}], v{vS}, s[{sU}:{sU+3}], {KS[k]} offen {ssc}")
    if prof:
        prof_stamp(p, sP2)
        emit_prof_store(p, sWs, [sP0, sP1, sP2], vA, bf+16, S)
    p(f"s_branch {tag}_done")
    p(f"{tag}_helper:")
    p(f"s_cmp_eq_u32 s{sw}, 7")
    p(f"s_cbranch_scc1 {tag}_loader")
    for i in range(0, NST, bper): p("s_barrier")
    p(f"s_branch {tag}_done")
    p(f"{tag}_loader:")
    p(f"v_lshrrev_b32 v{vG}, 4, v0"); p(f"v_and_b32 v{vA2}, 7, v0"); p(f"v_xor_b32 v{vA}, v{vG}, v{vA2}")
    p(f"v_lshlrev_b32 v{vA}, 4, v{vA}")
    p(f"v_lshrrev_b32 v{vA2}, 3, v0"); p(f"v_lshlrev_b32 v{vA2}, 12, v{vA2}")
    p(f"v_add_u32 v{vB00}, v{vA}, v{vA2}"); p(f"v_xor_b32 v{vB10}, 64, v{vB00}")
    p(f"v_add_u32 v{vB10}, 0x8000, v{vB10}")
    p("s_waitcnt lgkmcnt(0)")
    p(f"s_lshl_b32 s{sT0}, s{sRt}, 18")
    srd(p, sW, sWsp, off_sreg=sT0, size=64*4096)
    if touch & 2:
        p(f"s_and_b32 s{sT0}, s{sCt}, 3"); p(f"s_add_u32 s{sT0}, s{sT0}, 28"); p(f"s_lshl_b32 s{sT0}, s{sT0}, 7")
        p(f"v_lshlrev_b32 v{vA}, 12, v0")
        p(f"buffer_load_dword v{vGe+1}, v{vA}, s[{sW}:{sW+3}], s{sT0} offen")
        p(f"s_sub_u32 s{sT0}, s{sT0}, 512")
        p(f"buffer_load_dword v{vGe+2}, v{vA}, s[{sW}:{sW+3}], s{sT0} offen")
    sq = [S(f'q{q}') for q in range(4)]
    for q in range(4): p(f"s_mov_b32 s{sq[q]}, {q*65536}")
    def wloads(i):
        L = []
        slot = i % NS
        for q in range(8):
            L.append(f"s_mov_b32 m0, {lds0 + slot*8192 + q*1024}")
            L.append(f"s_nop 0")
            L.append(f"buffer_load_dwordx4 v{vB10 if q & 1 else vB00}, s[{sW}:{sW+3}], s{sq[q//2]} offen lds")
        for q in range(4):
            if wrapk and (i+1) % wrapk == 0: L.append(f"s_mov_b32 s{sq[q]}, {q*65536}")
            else: L.append(f"s_add_u32 s{sq[q]}, s{sq[q]}, 128")
        return L
    for i in range(D):
        for l in wloads(i): p(l)
    for i in range(NST):
        if i % bper == 0:
            need = min(i + bper - 1, NST - 1)
            last = min(i + D - 1, NST - 1)
            p(f"s_waitcnt vmcnt({min(63, 8*(last - need))})")
            p("s_barrier")
        if i + D < NST:
            for l in wloads(i + D): p(l)
    p(f"{tag}_done:")
    return dict(vgpr=V.n, sgpr=S.n, lds=lds0 + NS*8192)

def emit_prof_store(p, sWs, stamps, vA, vT4, S, region=0, wave=0, tid=False):
    p("s_waitcnt lgkmcnt(0) vmcnt(0)")
    sR = S.names['srdP'] if 'srdP' in S.names else S('profsrd', 4)
    srd(p, sR, sWs, off_lit=WS_PROF + region*16384, size=16384)
    p(f"s_lshl_b32 s3, s2, 6"); p(f"v_mov_b32 v{vA}, s3")
    p(f"v_mov_b32 v{vT4}, {wave*64 if tid else 0}"); p(f"v_cmp_eq_u32 vcc, v{vT4}, v0")
    p("s_and_b64 vcc, vcc, exec")
    p(f"s_cmp_eq_u32 s{S.names['w']}, {wave}")
    p("s_cselect_b64 vcc, vcc, 0")
    sE = S.names['ex'] if 'srdP' in S.names else S('profex', 2)
    p(f"s_and_saveexec_b64 s[{sE}:{sE+1}], vcc")
    for k, s in enumerate(stamps):
        p(f"v_mov_b32 v{vT4}, s{s}")
        p(f"buffer_store_dword v{vT4}, v{vA}, s[{sR}:{sR+3}], 0 offen offset:{4*k}")
        p("s_nop 1")
    p("s_mov_b64 exec, -1")

class Stamps:
    def __init__(self, p, S, on): self.p = p; self.S = S; self.on = on; self.L = []; self.names = []
    def __call__(self, name):
        if not self.on or (self.on is not True and name not in self.on): return
        r = self.S('st_' + name, 2); self.L.append(r); self.names.append(name)
        self.p(f"s_memtime s[{r}:{r+1}]")

def wrap(name, body, vgpr, sgpr):
    vg = max(8, (vgpr + 7)//8*8)
    return f""".globl {name}
.p2align 8
.type {name},@function
{name}:
{body}
.section .rodata,"a"
.p2align 6
.amdhsa_kernel {name}
  .amdhsa_next_free_vgpr {vg}
  .amdhsa_next_free_sgpr 102
  .amdhsa_accum_offset {vg}
  .amdhsa_group_segment_fixed_size 0
  .amdhsa_kernarg_size 88
  .amdhsa_user_sgpr_count 2
  .amdhsa_user_sgpr_kernarg_segment_ptr 1
  .amdhsa_system_sgpr_workgroup_id_x 1
.end_amdhsa_kernel
.text
"""
HEAD = '.amdgcn_target "amdgcn-amd-amdhsa--gfx950"\n.text\n'

def standalone(name, emit, **kw):
    p = Prog()
    p("s_cmp_ge_u32 s2, 256")
    p(f"s_cbranch_scc1 {name}_end")
    info = emit(p, **kw)
    p(f"{name}_end:")
    p("s_endpgm")
    return wrap(name, p.finish(), info['vgpr'], info['sgpr']), info

if __name__ == "__main__":
    txt, info = standalone("p2_kernel", emit_p2, prof=True)
    print(info, len(txt))
    open("p2.s", "w").write(f"; @launch grid=(256,1,1) block=(512,1,1) lds={info['lds']}\n" + HEAD + txt)
```

```python
from asmlib import Prog, vr, sr
from gen import *
import gen

WS_XST = 0xD00000
WS_CS  = 0xD04000
WS_ZST = 0xD10000
WS_QKV = 0x1000000
WS_WR  = 0x1800000
WS_Z2R = 0x1A00000
WS_SIZE = 0x2000000
SZ_QKV = 3*160*2048*8
SZ_WR = 8*47*5120
LOG2E = 1.4426950408889634

def magic(d, n):
    M = (2**32 + d - 1)//d
    for x in (list(range(0, min(n, 70000))) + list(range(max(0, n-70000), n))):
        assert (x*M) >> 32 == x//d, (d, x)
    return M

def prologue(p, S, V, ptrs):
    offs = dict(x=0, wqkv=8, wo=16, win=32, wsp=40, bsp=48, wout=56, out=64, dbg=72, ws=80)
    R = {}
    for n in ptrs:
        R[n] = S('p_' + n, 2)
        p(f"s_load_dwordx2 s[{R[n]}:{R[n]+1}], s[0:1], {offs[n]}")
    return R

def dpp_sum64(p, v, t):
    for d in ("quad_perm:[1,0,3,2]", "quad_perm:[2,3,0,1]", "row_half_mirror", "row_mirror"):
        p(f"v_add_f32_dpp v{v}, v{v}, v{v} {d} row_mask:0xf bank_mask:0xf")
    p(f"v_mov_b32 v{t}, v{v}"); p(f"v_permlane16_swap_b32 v{v}, v{t}"); p(f"v_add_f32 v{v}, v{v}, v{t}")
    p(f"v_mov_b32 v{t}, v{v}"); p(f"v_permlane32_swap_b32 v{v}, v{t}"); p(f"v_add_f32 v{v}, v{v}, v{t}")

def emit_k0(p, tag="K0"):
    S = Alloc(4, 100, 's'); V = Alloc(1, 256, 'v')
    R = prologue(p, S, V, ['x', 'wqkv', 'wo', 'win', 'wout', 'ws'])
    sX = S('srdX', 4); sA = S('srdA', 4); sB = S('srdB', 4); sWS = S('srdWS', 4)
    sw = S('w'); sT0 = S('t0'); sT1 = S('t1'); sM = S('m'); sSt = S('stride'); sE = S('ex', 2)
    vL = V('lane'); vA = V('a'); vB = V('b'); vC = V('c'); vD = V('d'); vE = V('e')
    vx = V('x', 10); vr4 = V('rep', 4); vw = V('wl', 40, 4); va = V('acc', 8, 4); vT = V('t', 8, 4)
    p(f"v_lshrrev_b32 v{vA}, 6, v0"); p(f"v_and_b32 v{vL}, 63, v0"); p(f"v_readfirstlane_b32 s{sw}, v{vA}")
    p("s_waitcnt lgkmcnt(0)")
    srd(p, sX, R['x'], size=2048*1280)
    srd(p, sWS, R['ws'], size=WS_SIZE)
    p(f"s_lshl_b32 s{sT0}, s2, 3"); p(f"s_add_u32 s{sT0}, s{sT0}, s{sw}"); p(f"s_mul_i32 s{sT1}, s{sT0}, 1280")
    p(f"v_lshlrev_b32 v{vA}, 2, v{vL}")
    for j in range(5): p(f"buffer_load_dword v{vx+j}, v{vA}, s[{sX}:{sX+3}], s{sT1} offen offset:{256*j}")
    p(f"s_lshl_b32 s{sT1}, s2, 9"); p(f"v_add_u32 v{vC}, s{sT1}, v0")
    p(f"s_mov_b32 s{sM}, {magic(15040, 131072)}"); p(f"v_mul_hi_u32 v{vA}, v{vC}, s{sM}")
    p(f"v_mul_u32_u24 v{vB}, 15040, v{vA}"); p(f"v_sub_u32 v{vB}, v{vC}, v{vB}")
    p(f"s_mov_b32 s{sM}, {magic(10, 15040)}"); p(f"v_mul_hi_u32 v{vD}, v{vB}, s{sM}")
    p(f"v_mul_u32_u24 v{vE}, 10, v{vD}"); p(f"v_sub_u32 v{vB}, v{vB}, v{vE}")
    p(f"v_lshlrev_b32 v{vB}, 4, v{vB}"); p(f"v_mul_u32_u24 v{vA}, 160, v{vA}"); p(f"v_add_u32 v{vB}, v{vA}, v{vB}")
    p(f"v_and_b32 v{vA}, 0xfffffff3, v{vD}")
    p(f"v_lshrrev_b32 v{vE}, 1, v{vD}"); p(f"v_and_b32 v{vE}, 4, v{vE}"); p(f"v_or_b32 v{vA}, v{vA}, v{vE}")
    p(f"v_lshlrev_b32 v{vE}, 1, v{vD}"); p(f"v_and_b32 v{vE}, 8, v{vE}"); p(f"v_or_b32 v{vA}, v{vA}, v{vE}")
    p(f"v_mul_u32_u24 v{vD}, 1280, v{vA}"); p(f"v_add_u32 v{vB}, v{vB}, v{vD}")
    srd(p, sA, R['wout'], size=864*1280)
    srd(p, sB, R['wo'], size=640*1280)
    p(f"v_mov_b32 v{vr4}, 0"); p(f"v_mov_b32 v{vr4+1}, 0"); p(f"v_mov_b32 v{vr4+2}, 0"); p(f"v_mov_b32 v{vr4+3}, 0")
    p(f"v_cmp_gt_u32 vcc, 864, v{vA}"); p(f"s_and_saveexec_b64 s[{sE}:{sE+1}], vcc")
    p(f"buffer_load_dwordx4 v[{vr4}:{vr4+3}], v{vB}, s[{sA}:{sA+3}], 0 offen")
    p(f"s_andn2_b64 exec, s[{sE}:{sE+1}], exec")
    p(f"v_subrev_u32 v{vB}, {864*1280}, v{vB}")
    p(f"buffer_load_dwordx4 v[{vr4}:{vr4+3}], v{vB}, s[{sB}:{sB+3}], 0 offen")
    p(f"s_mov_b64 exec, s[{sE}:{sE+1}]")
    p(f"s_cmp_ge_u32 s2, 57"); p(f"s_cbranch_scc1 {tag}_noB1")
    p(f"s_cmp_lt_u32 s2, 27")
    p(f"s_cselect_b32 s{sA}, s{R['win']}, s{R['wqkv']}"); p(f"s_cselect_b32 s{sA+1}, s{R['win']+1}, s{R['wqkv']+1}")
    p(f"s_mov_b32 s{sM}, 3840"); p(f"s_cselect_b32 s{sSt}, 3456, s{sM}"); p(f"s_mul_i32 s{sA+2}, s{sSt}, 640"); p(f"s_mov_b32 s{sA+3}, {SRD3}")
    p(f"s_cselect_b32 s{sT0}, 0, 27"); p(f"s_sub_u32 s{sT0}, s2, s{sT0}"); p(f"s_lshl_b32 s{sT0}, s{sT0}, 7")
    p(f"s_mul_i32 s{sT1}, s{sw}, 80"); p(f"s_mul_i32 s{sT1}, s{sT1}, s{sSt}"); p(f"s_add_u32 s{sT0}, s{sT0}, s{sT1}")
    p(f"v_lshrrev_b32 v{vA}, 3, v{vL}"); p(f"v_mul_lo_u32 v{vA}, v{vA}, s{sSt}"); p(f"v_and_b32 v{vD}, 7, v{vL}"); p(f"v_lshlrev_b32 v{vD}, 4, v{vD}")
    p(f"v_add_u32 v{vA}, v{vA}, v{vD}")
    p(f"s_lshl_b32 s{sSt}, s{sSt}, 3")
    for i in range(10):
        p(f"buffer_load_dwordx4 v[{vw+4*i}:{vw+4*i+3}], v{vA}, s[{sA}:{sA+3}], s{sT0} offen")
        p(f"s_add_u32 s{sT0}, s{sT0}, s{sSt}")
    p(f"{tag}_noB1:")
    p("s_waitcnt vmcnt(0)")
    for j in range(5):
        p(f"v_and_b32 v{vx+5+j}, 0xffff0000, v{vx+j}"); p(f"v_lshlrev_b32 v{vx+j}, 16, v{vx+j}")
    p(f"v_add_f32 v{vD}, v{vx}, v{vx+1}")
    for j in range(2, 10): p(f"v_add_f32 v{vD}, v{vD}, v{vx+j}")
    dpp_sum64(p, vD, vE)
    p(f"v_mul_f32 v{vD}, {hx(f2u(1/640))}, v{vD}")
    for j in range(10): p(f"v_sub_f32 v{vx+j}, v{vx+j}, v{vD}")
    p(f"v_mul_f32 v{vA}, v{vx}, v{vx}")
    for j in range(1, 10): p(f"v_fmac_f32 v{vA}, v{vx+j}, v{vx+j}")
    dpp_sum64(p, vA, vE)
    p(f"v_mov_b32 v{vE}, {hx(f2u(1e-5))}"); p(f"v_fmac_f32 v{vE}, {hx(f2u(1/640))}, v{vA}")
    p(f"v_rsq_f32 v{vT}, v{vE}")
    p(f"v_mul_f32 v{vT+1}, v{vD}, v{vT}"); p(f"v_sub_f32 v{vT+1}, 0, v{vT+1}")
    p(f"s_lshl_b32 s{sT0}, s2, 3"); p(f"s_add_u32 s{sT0}, s{sT0}, s{sw}"); p(f"s_lshl_b32 s{sT0}, s{sT0}, 3"); p(f"s_add_u32 s{sT0}, s{sT0}, {WS_XST}")
    p(f"v_mov_b32 v{vA}, 0")
    p(f"v_cmp_eq_u32 vcc, 0, v{vL}"); p(f"s_and_saveexec_b64 s[{sE}:{sE+1}], vcc")
    p(f"buffer_store_dwordx2 v[{vT}:{vT+1}], v{vA}, s[{sWS}:{sWS+3}], s{sT0} offen")
    p(f"s_mov_b64 exec, s[{sE}:{sE+1}]")
    p(f"v_lshlrev_b32 v{vA}, 4, v{vC}")
    p(f"v_cmp_gt_u32 vcc, {120320}, v{vC}"); p(f"s_and_saveexec_b64 s[{sE}:{sE+1}], vcc")
    p(f"s_mov_b32 s{sT0}, {WS_WR}")
    p(f"buffer_store_dwordx4 v[{vr4}:{vr4+3}], v{vA}, s[{sWS}:{sWS+3}], s{sT0} offen")
    p(f"s_mov_b64 exec, s[{sE}:{sE+1}]")
    p(f"s_cmp_ge_u32 s2, 57"); p(f"s_cbranch_scc1 {tag}_done")
    for e in range(8): p(f"v_mov_b32 v{va+e}, 0")
    for i in range(10):
        for q in range(4):
            p(f"v_lshlrev_b32 v{vA}, 16, v{vw+4*i+q}"); p(f"v_add_f32 v{va+2*q}, v{va+2*q}, v{vA}")
            p(f"v_and_b32 v{vA}, 0xffff0000, v{vw+4*i+q}"); p(f"v_add_f32 v{va+2*q+1}, v{va+2*q+1}, v{vA}")
    p(f"v_lshlrev_b32 v{vA}, 5, v0")
    p(f"ds_write_b128 v{vA}, v[{va}:{va+3}]"); p(f"ds_write_b128 v{vA}, v[{va+4}:{va+7}] offset:16")
    p("s_waitcnt lgkmcnt(0)"); p("s_barrier")
    p(f"s_cmp_lg_u32 s{sw}, 0"); p(f"s_cbranch_scc1 {tag}_done")
    p(f"v_lshrrev_b32 v{vA}, 3, v{vL}"); p(f"v_lshlrev_b32 v{vA}, 5, v{vA}"); p(f"v_and_b32 v{vD}, 7, v{vL}"); p(f"v_lshlrev_b32 v{vD}, 2, v{vD}")
    p(f"v_add_u32 v{vA}, v{vA}, v{vD}")
    p(f"v_mov_b32 v{vE}, 0")
    for w in range(8):
        for rl in range(8): p(f"ds_read_b32 v{vT+rl}, v{vA} offset:{w*2048+rl*256}")
        p("s_waitcnt lgkmcnt(0)")
        for rl in range(8): p(f"v_add_f32 v{vE}, v{vE}, v{vT+rl}")
    p(f"s_lshl_b32 s{sT0}, s2, 8"); p(f"s_add_u32 s{sT0}, s{sT0}, {WS_CS}")
    p(f"v_lshlrev_b32 v{vA}, 2, v{vL}")
    p(f"buffer_store_dword v{vE}, v{vA}, s[{sWS}:{sWS+3}], s{sT0} offen")
    p(f"{tag}_done:")
    return dict(vgpr=V.n, sgpr=S.n, lds=16384)

def emit_p3(p, D=6, bper=1, prof=False, tag="P3", sc=""):
    NST = 24; NSY = 14
    NS = D + 1 + bper
    NB = D + 2
    S = Alloc(4, 100, 's'); V = Alloc(1, 256, 'v')
    R = prologue(p, S, V, ['x', 'out', 'ws'])
    sWS = S('srdWS', 4); sX = S('srdX', 4); sO = S('srdO', 4)
    sw = S('w'); sRt = S('rt'); sNt = S('nt'); sT0 = S('t0'); sT1 = S('t1'); sPar = S('par'); sTb = S('tb')
    sOffW = S('offW'); sOffB = S('offB'); sOffB2 = S('offB2'); sM0 = S('m0b'); sE = S('ex', 2)
    sP0 = S('p0', 2); sP1 = S('p1', 2); sP2 = S('p2', 2)
    vL = V('lane'); vA = V('a'); vB = V('b'); vC = V('c'); v16 = V('l16'); vT0 = V('tr0'); vT1 = V('tr1')
    vXo = V('xoff', 2); vX = V('xv', 8, 4); vRd = V('rd', 2)
    accy = V('accy', 20, 4); accs = V('accs', 20, 4); af = V('af', 40, 4); bf = V('bf', 4*NB, 4)
    AF = lambda i, nb: af + (i & 1)*20 + nb*4
    BF = lambda i: bf + (i % NB)*4
    if prof: prof_stamp(p, sP0)
    p(f"v_lshrrev_b32 v{vA}, 6, v0"); p(f"v_and_b32 v{vL}, 63, v0"); p(f"v_readfirstlane_b32 s{sw}, v{vA}")
    p(f"s_and_b32 s{sT0}, s2, 7"); p(f"s_lshr_b32 s{sT1}, s2, 3")
    p(f"s_lshr_b32 s{sRt}, s{sT0}, 1"); p(f"s_lshl_b32 s{sRt}, s{sRt}, 3")
    p(f"s_and_b32 s{sNt}, s{sT1}, 7"); p(f"s_add_u32 s{sRt}, s{sRt}, s{sNt}")
    p(f"s_and_b32 s{sNt}, s{sT0}, 1"); p(f"s_lshl_b32 s{sNt}, s{sNt}, 2")
    p(f"s_lshr_b32 s{sT1}, s{sT1}, 3"); p(f"s_add_u32 s{sNt}, s{sNt}, s{sT1}")
    p(f"s_and_b32 s{sTb}, s{sw}, 3"); p(f"s_lshr_b32 s{sPar}, s{sw}, 2")
    p(f"v_lshlrev_b32 v{v16}, 4, v{vL}")
    p(f"v_lshrrev_b32 v{vA}, 5, v{vL}"); p(f"v_lshlrev_b32 v{vA}, 4, v{vA}")
    p(f"v_lshrrev_b32 v{vB}, 4, v{vL}"); p(f"v_and_b32 v{vB}, 1, v{vB}"); p(f"v_lshlrev_b32 v{vB}, 2, v{vB}"); p(f"v_add_u32 v{vA}, v{vA}, v{vB}")
    p(f"v_lshrrev_b32 v{vB}, 2, v{vL}"); p(f"v_and_b32 v{vB}, 3, v{vB}"); p(f"v_add_u32 v{vA}, v{vA}, v{vB}")
    p(f"v_mul_u32_u24 v{vA}, 160, v{vA}"); p(f"v_and_b32 v{vB}, 3, v{vL}"); p(f"v_lshlrev_b32 v{vB}, 3, v{vB}"); p(f"v_add_u32 v{vA}, v{vA}, v{vB}")
    p(f"s_mul_i32 s{sT0}, s{sPar}, 5120"); p(f"v_add_u32 v{vT0}, s{sT0}, v{vA}"); p(f"v_add_u32 v{vT1}, 0x10000, v{vT0}")
    sM = S('mg')
    p(f"s_mov_b32 s{sM}, {magic(10, 1024)}")
    p(f"s_lshl_b32 s{sT0}, s{sRt}, 6"); p(f"s_mul_i32 s{sT0}, s{sT0}, 1280"); p(f"s_mul_i32 s{sT1}, s{sNt}, 160"); p(f"s_add_u32 s{sT0}, s{sT0}, s{sT1}")
    for k in range(2):
        p(f"v_add_u32 v{vC}, {512*k}, v0")
        p(f"v_mul_hi_u32 v{vA}, v{vC}, s{sM}"); p(f"v_mul_u32_u24 v{vB}, 10, v{vA}"); p(f"v_sub_u32 v{vB}, v{vC}, v{vB}")
        p(f"v_mul_u32_u24 v{vC}, 1280, v{vA}"); p(f"v_lshlrev_b32 v{vXo+k}, 4, v{vB}"); p(f"v_add_u32 v{vXo+k}, v{vXo+k}, v{vC}")
        p(f"v_add_u32 v{vXo+k}, s{sT0}, v{vXo+k}")
        p(f"v_mul_u32_u24 v{vC}, 336, v{vA}"); p(f"v_lshlrev_b32 v{vRd+k}, 5, v{vB}"); p(f"v_add_u32 v{vRd+k}, v{vRd+k}, v{vC}")
    p("s_waitcnt lgkmcnt(0)")
    srd(p, sWS, R['ws'], size=WS_SIZE)
    srd(p, sX, R['x'], size=2048*1280)
    srd(p, sO, R['out'], size=2048*1280)
    p(f"buffer_load_dwordx4 v[{vX}:{vX+3}], v{vXo}, s[{sX}:{sX+3}], 0 offen")
    p(f"s_cmp_lt_u32 s{sw}, 2"); p(f"s_cbranch_scc0 {tag}_nox2")
    p(f"buffer_load_dwordx4 v[{vX+4}:{vX+7}], v{vXo+1}, s[{sX}:{sX+3}], 0 offen")
    p(f"{tag}_nox2:")
    p(f"s_mul_i32 s{sOffW}, s{sNt}, {47*5120}"); p(f"s_mul_i32 s{sT0}, s{sw}, 1280"); p(f"s_add_u32 s{sOffW}, s{sOffW}, s{sT0}")
    p(f"s_add_u32 s{sOffW}, s{sOffW}, {WS_WR}")
    p(f"s_mov_b32 s{sM0}, s{sT0}")
    p(f"s_lshl_b32 s{sT0}, s{sRt}, 2"); p(f"s_add_u32 s{sT0}, s{sT0}, s{sTb}")
    p(f"s_mul_i32 s{sOffB}, s{sT0}, {54*512}"); p(f"s_lshl_b32 s{sT1}, s{sPar}, 10"); p(f"s_add_u32 s{sOffB}, s{sOffB}, s{sT1}"); p(f"s_add_u32 s{sOffB}, s{sOffB}, {WS_U}")
    p(f"s_mul_i32 s{sOffB2}, s{sT0}, {20*1024}"); p(f"s_add_u32 s{sOffB2}, s{sOffB2}, s{sT1}"); p(f"s_add_u32 s{sOffB2}, s{sOffB2}, {WS_O}")
    def loads(i):
        L = []
        slot = i % NS
        L.append([f"s_add_u32 m0, s{sM0}, {slot*10240}", f"buffer_load_dwordx4 v{v16}, s[{sWS}:{sWS+3}], s{sOffW} offen lds"])
        L.append([f"s_mov_b64 exec, 0xffff", f"buffer_load_dwordx4 v{v16}, s[{sWS}:{sWS+3}], s{sOffW} offen offset:1024 lds", "s_mov_b64 exec, -1",
                  f"s_add_u32 s{sOffW}, s{sOffW}, {10240 if i != NSY-1 else 5120}"])
        if i < NSY:
            L.append([f"buffer_load_dwordx4 v[{BF(i)}:{BF(i)+3}], v{v16}, s[{sWS}:{sWS+3}], s{sOffB} offen {sc}", f"s_add_u32 s{sOffB}, s{sOffB}, 2048"])
        else:
            L.append([f"buffer_load_dwordx4 v[{BF(i)}:{BF(i)+3}], v{v16}, s[{sWS}:{sWS+3}], s{sOffB2} offen {sc}", f"s_add_u32 s{sOffB2}, s{sOffB2}, 2048"])
        return L
    for i in range(D):
        for gr in loads(i):
            for l in gr: p(l)
    def mfmas(j):
        acc = accy if j < NSY else accs
        first = j in (0, NSY)
        return [f"v_mfma_f32_16x16x32_bf16 v[{acc+4*nb}:{acc+4*nb+3}], v[{AF(j,nb)}:{AF(j,nb)+3}], v[{BF(j)}:{BF(j)+3}], " + ("0" if first else f"v[{acc+4*nb}:{acc+4*nb+3}]") for nb in range(5)]
    for i in range(NST + 1):
        if i < NST:
            if i % bper == 0:
                need = min(i + bper - 1, NST - 1); last = min(i + D - 1, NST - 1)
                p(f"s_waitcnt vmcnt({min(63, 3*(last - need))})")
                p("s_barrier")
            slot = i % NS
            for nb in range(5):
                for half in range(2):
                    off = slot*10240 + half*1280 + nb*32
                    vb = vT1 if off >= 65536 else vT0
                    p(f"ds_read_b64_tr_b16 v[{AF(i,nb)+2*half}:{AF(i,nb)+2*half+1}], v{vb} offset:{off & 0xffff}")
        groups = loads(i + D) if (i + D < NST) else []
        if i >= 1:
            j = i - 1
            p(f"s_waitcnt lgkmcnt({10 if i < NST else 0})")
            if j == NSY - 1:
                p(f"s_cmp_eq_u32 s{sPar}, 1"); p(f"s_cbranch_scc1 {tag}_skipm")
            M = mfmas(j)
            for n, m in enumerate(M):
                if j != NSY - 1 and n in (0, 2, 4) and groups:
                    for l in groups.pop(0): p(l)
                p(m)
            if j == NSY - 1: p(f"{tag}_skipm:")
        for gr in groups:
            for l in gr: p(l)
    if prof: prof_stamp(p, sP1)
    p("s_barrier")
    p(f"v_and_b32 v{vA}, 15, v{vL}"); p(f"s_lshl_b32 s{sT0}, s{sTb}, 4"); p(f"v_add_u32 v{vA}, s{sT0}, v{vA}"); p(f"v_mul_u32_u24 v{vA}, 336, v{vA}")
    p(f"v_lshrrev_b32 v{vB}, 4, v{vL}"); p(f"v_lshlrev_b32 v{vB}, 4, v{vB}"); p(f"v_add_u32 v{vA}, v{vA}, v{vB}")
    p(f"s_mul_i32 s{sT0}, s{sPar}, {2*21504}"); p(f"v_add_u32 v{vA}, s{sT0}, v{vA}")
    for nb in range(5):
        p(f"ds_write_b128 v{vA}, v[{accy+4*nb}:{accy+4*nb+3}] offset:{nb*64}")
        p(f"ds_write_b128 v{vA}, v[{accs+4*nb}:{accs+4*nb+3}] offset:{21504 + nb*64}")
    p("s_waitcnt lgkmcnt(0)"); p("s_barrier")
    sNL = S('nl'); p(f"s_mov_b32 s{sNL}, {hx(f2u(-LOG2E))}")
    t = af
    def final(k):
        rd = vRd + k
        for m, (o, dst) in enumerate(((0, t), (16, t+4), (2*21504, t+8), (2*21504+16, t+12), (21504, t+16), (21504+16, t+20), (3*21504, t+24), (3*21504+16, t+28))):
            p(f"ds_read_b128 v[{dst}:{dst+3}], v{rd} offset:{o}")
        p("s_waitcnt lgkmcnt(4)")
        for e in range(8): p(f"v_add_f32 v{t+e}, v{t+e}, v{t+8+e}")
        for e in range(8): p(f"v_mul_f32 v{t+8+e}, s{sNL}, v{t+e}")
        for e in range(8): p(f"v_exp_f32 v{t+8+e}, v{t+8+e}")
        for e in range(8): p(f"v_add_f32 v{t+8+e}, 1.0, v{t+8+e}")
        for e in range(8): p(f"v_rcp_f32 v{t+8+e}, v{t+8+e}")
        for e in range(8): p(f"v_mul_f32 v{t+e}, v{t+e}, v{t+8+e}")
        p("s_waitcnt lgkmcnt(0)")
        for e in range(8): p(f"v_add_f32 v{t+16+e}, v{t+16+e}, v{t+24+e}")
        xv = vX + 4*k
        for e in range(8):
            src = xv + e//2
            p(f"v_lshlrev_b32 v{t+8+e}, 16, v{src}" if e % 2 == 0 else f"v_and_b32 v{t+8+e}, 0xffff0000, v{src}")
        for e in range(8): p(f"v_fmac_f32 v{t+8+e}, v{t+16+e}, v{t+e}")
        for e in range(0, 8, 2): p(f"v_cvt_pk_bf16_f32 v{t+32+e//2}, v{t+8+e}, v{t+8+e+1}")
        p(f"buffer_store_dwordx4 v[{t+32}:{t+35}], v{vXo+k}, s[{sO}:{sO+3}], 0 offen")
    final(0)
    p(f"s_cmp_lt_u32 s{sw}, 2"); p(f"s_cbranch_scc0 {tag}_fin")
    final(1)
    p(f"{tag}_fin:")
    if prof:
        prof_stamp(p, sP2)
        S.names['w'] = sw
        emit_prof_store(p, R['ws'], [sP0, sP1, sP2], vA, t+16, S, region=1)
    return dict(vgpr=V.n, sgpr=S.n, lds=max(NS*10240, 4*21504))

NEGBIG = -3.0e38
def emit_att(p, tag="ATT", lds0=0, prof=False):
    S = Alloc(4, 100, 's'); V = Alloc(1, 256, 'v')
    R = prologue(p, S, V, ['ws'])
    sWS = S('srdWS', 4)
    sw = S('w'); sRb = S('rb'); sHp = S('hp'); sT0 = S('t0'); sT1 = S('t1'); sM = S('m'); sE = S('ex', 2); sC = S('c')
    sP0 = S('p0', 2); sP1 = S('p1', 2); sP2 = S('p2', 2)
    vL = V('lane'); vA = V('a'); vB = V('b'); vC = V('c'); vQ = V('q'); vG = V('g')
    vQa = V('qa'); vKa = V('ka'); vKb = V('kb'); vVa = V('va'); vOa = V('oa'); vOb = V('ob')
    bias = V('bias', 8, 4)
    T = []
    for par in range(2):
        T.append(dict(q=V(f'q{par}', 4, 4), kp=V(f'kp{par}', 4, 4), kc=V(f'kc{par}', 4, 4), v0=V(f'v0{par}', 4, 4), v1=V(f'v1{par}', 4, 4),
                      s=V(f's{par}', 8, 4), pb=V(f'pb{par}', 4, 4), o0=V(f'o0{par}', 4, 4), o1=V(f'o1{par}', 4, 4), m=V(f'm{par}'), t=V(f't{par}'), r=V(f'r{par}')))
    LQ = lds0; LK = LQ + 10240; LV = LK + 11520; LO = LV + 11520
    MAT = 160*2048*8
    if prof: prof_stamp(p, sP0)
    p(f"v_lshrrev_b32 v{vA}, 6, v0"); p(f"v_and_b32 v{vL}, 63, v0"); p(f"v_readfirstlane_b32 s{sw}, v{vA}")
    p(f"s_and_b32 s{sT0}, s2, 7"); p(f"s_lshr_b32 s{sT1}, s2, 3")
    p(f"s_lshl_b32 s{sRb}, s{sT0}, 1"); p(f"s_and_b32 s{sT0}, s{sT1}, 1"); p(f"s_add_u32 s{sRb}, s{sRb}, s{sT0}"); p(f"s_lshr_b32 s{sHp}, s{sT1}, 1")
    p(f"s_mov_b32 s{sM}, {magic(72, 1536)}")
    p("s_waitcnt lgkmcnt(0)")
    srd(p, sWS, R['ws'], size=WS_SIZE)
    p(f"s_mul_i32 s{sT0}, s{sHp}, {10*16384}"); p(f"s_lshl_b32 s{sT1}, s{sRb}, 10"); p(f"s_add_u32 s{sT0}, s{sT0}, s{sT1}")
    p(f"s_add_u32 s{sT1}, s{sT0}, {WS_QKV + MAT - 128}")
    p(f"s_add_u32 s{sT0}, s{sT0}, {WS_QKV}")
    sMb = S('mb'); p(f"s_lshl_b32 s{sMb}, s{sw}, 10")
    for k in range(3):
        p(f"v_add_u32 v{vC}, {512*k}, v0")
        p(f"v_mul_hi_u32 v{vA}, v{vC}, s{sM}"); p(f"v_mul_u32_u24 v{vB}, 72, v{vA}"); p(f"v_sub_u32 v{vB}, v{vC}, v{vB}")
        p(f"v_lshlrev_b32 v{vB}, 4, v{vB}")
        p(f"v_cmp_le_u32 vcc, 10, v{vA}"); p(f"v_lshlrev_b32 v{vA}, 14, v{vA}"); p(f"v_add_u32 v{vB}, v{vA}, v{vB}")
        p(f"v_add_u32 v{vA}, {MAT - 10*16384}, v{vB}"); p(f"v_cndmask_b32 v{vB}, v{vB}, v{vA}, vcc")
        p(f"s_add_u32 m0, s{sMb}, {LK + 8192*k}")
        if k == 2:
            p(f"v_cmp_gt_u32 vcc, 1440, v{vC}"); p(f"s_and_saveexec_b64 s[{sE}:{sE+1}], vcc")
            p(f"s_cbranch_execz {tag}_skipkv")
        p(f"buffer_load_dwordx4 v{vB}, s[{sWS}:{sWS+3}], s{sT1} offen lds")
        if k == 2:
            p(f"{tag}_skipkv:"); p(f"s_mov_b64 exec, s[{sE}:{sE+1}]")
    p(f"v_lshlrev_b32 v{vA}, 4, v{vL}")
    p(f"s_lshl_b32 s{sC}, s{sw}, 14"); p(f"s_add_u32 s{sC}, s{sC}, s{sT0}")
    p(f"s_add_u32 m0, s{sMb}, {LQ}")
    p(f"buffer_load_dwordx4 v{vA}, s[{sWS}:{sWS+3}], s{sC} offen lds")
    p(f"s_cmp_lt_u32 s{sw}, 2"); p(f"s_cbranch_scc0 {tag}_noq2")
    p(f"s_add_u32 s{sC}, s{sC}, {8*16384}"); p(f"s_add_u32 m0, s{sMb}, {LQ + 8192}")
    p(f"buffer_load_dwordx4 v{vA}, s[{sWS}:{sWS+3}], s{sC} offen lds")
    p(f"{tag}_noq2:")
    sHd = S('hd'); sB = S('b')
    p(f"s_lshr_b32 s{sHd}, s{sw}, 2"); p(f"s_and_b32 s{sB}, s{sw}, 3")
    p(f"v_and_b32 v{vQ}, 15, v{vL}"); p(f"v_lshrrev_b32 v{vG}, 4, v{vL}")
    p(f"s_mul_i32 s{sT0}, s{sHd}, {5*1024}"); p(f"s_lshl_b32 s{sT1}, s{sB}, 8"); p(f"s_add_u32 s{sT0}, s{sT0}, s{sT1}"); p(f"s_add_u32 s{sT0}, s{sT0}, {LQ}")
    p(f"v_lshlrev_b32 v{vA}, 10, v{vG}"); p(f"v_lshlrev_b32 v{vB}, 4, v{vQ}"); p(f"v_add_u32 v{vA}, v{vA}, v{vB}"); p(f"v_add_u32 v{vQa}, s{sT0}, v{vA}")
    p(f"s_mul_i32 s{sT0}, s{sHd}, {5*1152}"); p(f"s_lshl_b32 s{sT1}, s{sB}, 8"); p(f"s_add_u32 s{sT0}, s{sT0}, s{sT1}"); p(f"s_add_u32 s{sC}, s{sT0}, {LK - 128}")
    p(f"v_mul_u32_u24 v{vA}, 1152, v{vG}"); p(f"v_add_u32 v{vA}, v{vA}, v{vB}"); p(f"v_add_u32 v{vKa}, s{sC}, v{vA}")
    p(f"s_add_u32 s{sC}, s{sC}, {4*1152}"); p(f"v_add_u32 v{vKb}, s{sC}, v{vB}")
    p(f"s_add_u32 s{sC}, s{sT0}, {LV - 128}")
    p(f"v_and_b32 v{vA}, 3, v{vL}"); p(f"v_mul_u32_u24 v{vA}, 1152, v{vA}")
    p(f"v_lshrrev_b32 v{vB}, 2, v{vL}"); p(f"v_lshlrev_b32 v{vB}, 4, v{vB}")
    p(f"v_add_u32 v{vA}, v{vA}, v{vB}"); p(f"v_add_u32 v{vVa}, s{sC}, v{vA}")
    p(f"s_mul_i32 s{sT0}, s{sHd}, 5"); p(f"v_add_u32 v{vA}, s{sT0}, v{vG}")
    p(f"v_lshrrev_b32 v{vB}, 1, v{vA}"); p(f"v_lshlrev_b32 v{vB}, 11, v{vB}"); p(f"v_and_b32 v{vA}, 1, v{vA}"); p(f"v_lshlrev_b32 v{vA}, 3, v{vA}"); p(f"v_add_u32 v{vA}, v{vA}, v{vB}")
    p(f"v_lshlrev_b32 v{vB}, 5, v{vQ}"); p(f"v_add_u32 v{vA}, v{vA}, v{vB}")
    p(f"s_lshl_b32 s{sT1}, s{sB}, 9"); p(f"s_add_u32 s{sT1}, s{sT1}, {LO}"); p(f"v_add_u32 v{vOa}, s{sT1}, v{vA}")
    p(f"s_mul_i32 s{sT0}, s{sHd}, {2*2048+8}"); p(f"s_add_u32 s{sT0}, s{sT0}, {2*2048}"); p(f"s_add_u32 s{sT0}, s{sT0}, s{sT1}")
    p(f"v_add_u32 v{vOb}, s{sT0}, v{vB}")
    p(f"v_lshlrev_b32 v{vA}, 2, v{vG}"); p(f"v_sub_u32 v{vA}, v{vA}, v{vQ}")
    p(f"s_or_b32 s{sT0}, s{sRb}, s{sB}"); p(f"s_cmp_eq_u32 s{sT0}, 0"); p(f"s_cselect_b32 s{sT0}, 100, 9")
    p(f"v_mov_b32 v{vC}, {hx(f2u(NEGBIG))}")
    for e in range(4):
        p(f"v_add_u32 v{vB}, {e}, v{vA}")
        p(f"v_cmp_gt_i32 vcc, s{sT0}, v{vB}"); p(f"v_cndmask_b32 v{bias+e}, 0, v{vC}, vcc")
        p(f"v_add_u32 v{vB}, 7, v{vB}")
        p(f"v_cmp_lt_u32 vcc, 7, v{vB}"); p(f"v_cndmask_b32 v{bias+4+e}, 0, v{vC}, vcc")
    for t in T:
        p(f"v_mov_b32 v{t['q']+2}, 0"); p(f"v_mov_b32 v{t['q']+3}, 0")
    p(f"s_mov_b32 s{sC}, {hx(f2u(20**-0.5*LOG2E))}")
    p("s_waitcnt vmcnt(0)"); p("s_barrier")
    if prof: prof_stamp(p, sP1)
    for par, t in enumerate(T):
        o = 8*par
        p(f"ds_read_b64 v[{t['q']}:{t['q']+1}], v{vQa} offset:{o}")
        p(f"ds_read_b64 v[{t['kp']}:{t['kp']+1}], v{vKa} offset:{o}")
        p(f"ds_read_b64 v[{t['kp']+2}:{t['kp']+3}], v{vKb} offset:{o}")
        p(f"ds_read_b64 v[{t['kc']}:{t['kc']+1}], v{vKa} offset:{o+256}")
        p(f"ds_read_b64 v[{t['kc']+2}:{t['kc']+3}], v{vKb} offset:{o+256}")
        p("s_mov_b64 exec, 0xffff")
        p(f"ds_read_b64 v[{t['q']+2}:{t['q']+3}], v{vQa} offset:{o+4096}")
        p("s_mov_b64 exec, -1")
    for par, t in enumerate(T):
        o = 8*par
        p(f"ds_read_b64_tr_b16 v[{t['v0']}:{t['v0']+1}], v{vVa} offset:{o}")
        p(f"ds_read_b64_tr_b16 v[{t['v0']+2}:{t['v0']+3}], v{vVa} offset:{o+256}")
        p(f"ds_read_b64_tr_b16 v[{t['v1']}:{t['v1']+1}], v{vVa} offset:{o+4*1152}")
        p(f"ds_read_b64_tr_b16 v[{t['v1']+2}:{t['v1']+3}], v{vVa} offset:{o+4*1152+256}")
    for par, t in enumerate(T):
        p(f"s_waitcnt lgkmcnt({8 + (6 if par == 0 else 0)})")
        p(f"v_mfma_f32_16x16x32_bf16 v[{t['s']}:{t['s']+3}], v[{t['kp']}:{t['kp']+3}], v[{t['q']}:{t['q']+3}], v[{bias}:{bias+3}]")
        p(f"v_mfma_f32_16x16x32_bf16 v[{t['s']+4}:{t['s']+7}], v[{t['kc']}:{t['kc']+3}], v[{t['q']}:{t['q']+3}], v[{bias+4}:{bias+7}]")
    def both(f):
        for t in T: f(t)
    for t in T:
        s = t['s']
        p(f"v_max3_f32 v{t['m']}, v{s}, v{s+1}, v{s+2}"); p(f"v_max3_f32 v{t['m']}, v{t['m']}, v{s+3}, v{s+4}")
        p(f"v_max3_f32 v{t['m']}, v{t['m']}, v{s+5}, v{s+6}"); p(f"v_max_f32 v{t['m']}, v{t['m']}, v{s+7}")
    for sw_ in ("v_permlane16_swap_b32", "v_permlane32_swap_b32"):
        for t in T: p(f"v_mov_b32 v{t['t']}, v{t['m']}")
        for t in T: p(f"{sw_} v{t['m']}, v{t['t']}")
        for t in T: p(f"v_max_f32 v{t['m']}, v{t['m']}, v{t['t']}")
    for t in T: p(f"v_mul_f32 v{t['m']}, s{sC}, v{t['m']}")
    for e in range(8):
        for t in T: p(f"v_fma_f32 v{t['s']+e}, v{t['s']+e}, s{sC}, -v{t['m']}")
    for e in range(8):
        for t in T: p(f"v_exp_f32 v{t['s']+e}, v{t['s']+e}")
    for t in T:
        s = t['s']
        for e in range(0, 8, 2): p(f"v_cvt_pk_bf16_f32 v{t['pb']+e//2}, v{s+e}, v{s+e+1}")
    for t in T:
        s = t['s']
        p(f"v_add_f32 v{t['r']}, v{s}, v{s+1}")
        for e in range(2, 8): p(f"v_add_f32 v{t['r']}, v{t['r']}, v{s+e}")
    p("s_waitcnt lgkmcnt(0)")
    for t in T:
        p(f"v_mfma_f32_16x16x32_bf16 v[{t['o0']}:{t['o0']+3}], v[{t['v0']}:{t['v0']+3}], v[{t['pb']}:{t['pb']+3}], 0")
        p(f"v_mfma_f32_16x16x32_bf16 v[{t['o1']}:{t['o1']+3}], v[{t['v1']}:{t['v1']+3}], v[{t['pb']}:{t['pb']+3}], 0")
    for sw_ in ("v_permlane16_swap_b32", "v_permlane32_swap_b32"):
        for t in T: p(f"v_mov_b32 v{t['t']}, v{t['r']}")
        for t in T: p(f"{sw_} v{t['r']}, v{t['t']}")
        for t in T: p(f"v_add_f32 v{t['r']}, v{t['r']}, v{t['t']}")
    for t in T: p(f"v_rcp_f32 v{t['r']}, v{t['r']}")
    for t in T:
        for blk in ('o0', 'o1'):
            for e in range(4): p(f"v_mul_f32 v{t[blk]+e}, v{t[blk]+e}, v{t['r']}")
            p(f"v_cvt_pk_bf16_f32 v{t[blk]}, v{t[blk]}, v{t[blk]+1}"); p(f"v_cvt_pk_bf16_f32 v{t[blk]+1}, v{t[blk]+2}, v{t[blk]+3}")
    for par, t in enumerate(T):
        p(f"ds_write_b64 v{vOa}, v[{t['o0']}:{t['o0']+1}] offset:{16*par}")
    p("s_mov_b64 exec, 0xffff")
    for par, t in enumerate(T):
        p(f"ds_write_b64 v{vOb}, v[{t['o1']}:{t['o1']+1}] offset:{16*par}")
    p("s_mov_b64 exec, -1")
    p(f"s_mul_i32 s{sT0}, s{sHp}, 5"); p(f"s_lshl_b32 s{sT1}, s{sRb}, 3"); p(f"s_mul_i32 s{sT1}, s{sT1}, {20*1024}"); p(f"s_add_u32 s{sT1}, s{sT1}, {WS_O}")
    t = T[0]
    for k in range(2):
        a = t['kp'] + k
        p(f"v_add_u32 v{vC}, {512*k}, v0"); p(f"v_lshrrev_b32 v{vA}, 7, v{vC}"); p(f"v_add_u32 v{vA}, s{sT0}, v{vA}")
        p(f"v_lshrrev_b32 v{vB}, 2, v{vA}"); p(f"v_lshlrev_b32 v{a}, 10, v{vB}"); p(f"v_and_b32 v{vA}, 3, v{vA}"); p(f"v_lshlrev_b32 v{vA}, 8, v{vA}"); p(f"v_add_u32 v{a}, v{a}, v{vA}")
        p(f"v_and_b32 v{vA}, 15, v{vC}"); p(f"v_lshlrev_b32 v{vA}, 4, v{vA}"); p(f"v_add_u32 v{a}, v{a}, v{vA}")
        p(f"v_bfe_u32 v{vA}, v{vC}, 4, 3"); p(f"v_mul_u32_u24 v{vA}, {20*1024}, v{vA}"); p(f"v_add_u32 v{a}, v{a}, v{vA}")
    p(f"v_lshlrev_b32 v{vA}, 4, v0")
    p("s_waitcnt lgkmcnt(0)"); p("s_barrier")
    p(f"ds_read_b128 v[{t['q']}:{t['q']+3}], v{vA} offset:{LO}")
    p(f"s_cmp_lt_u32 s{sw}, 2"); p(f"s_cbranch_scc0 {tag}_o1")
    p(f"ds_read_b128 v[{t['kc']}:{t['kc']+3}], v{vA} offset:{LO+8192}")
    p("s_waitcnt lgkmcnt(0)")
    p(f"buffer_store_dwordx4 v[{t['kc']}:{t['kc']+3}], v{t['kp']+1}, s[{sWS}:{sWS+3}], s{sT1} offen")
    p(f"{tag}_o1:")
    p("s_waitcnt lgkmcnt(0)")
    p(f"buffer_store_dwordx4 v[{t['q']}:{t['q']+3}], v{t['kp']}, s[{sWS}:{sWS+3}], s{sT1} offen")
    if prof:
        prof_stamp(p, sP2)
        S.names['w'] = sw
        emit_prof_store(p, R['ws'], [sP0, sP1, sP2], vA, T[1]['s'], S, region=2)
    return dict(vgpr=V.n, sgpr=S.n, lds=LO + 10240)

def lay_qkv_np(qkv_u16):
    import numpy as np
    a = qkv_u16.reshape(2048, 3, 160, 4)
    return np.ascontiguousarray(a.transpose(1, 2, 0, 3))
```

```python
from asmlib import Prog
from gen import *
from gen2 import *

def emit_p1(p, tag="P1", prof=False, nfill1=6, nfill2=6, sc="", nofill=False, pw=0, nomf=False):
    S = Alloc(4, 100, 's'); V = Alloc(1, 256, 'v')
    R = prologue(p, S, V, ['x', 'wqkv', 'win', 'ws'])
    sX = S('srdX', 4); sWi = S('srdWi', 4); sWq = S('srdWq', 4); sWS = S('srdWS', 4)
    sw = S('w'); sRb = S('rb'); sCg = S('cg'); sRg = S('rg'); sCh = S('ch'); sT0 = S('t0'); sT1 = S('t1'); sT2 = S('t2')
    sLA = S('LA'); sLB = S('LB'); sOX = S('oX'); sOW0 = S('oW0'); sOW1 = S('oW1'); sMb = S('mb'); sE = S('ex', 2)
    sC1 = S('c1'); sQo = S('qo'); sZ2o = S('z2o'); sJ = S('j'); sV1 = S('v1'); sV2 = S('v2'); sWSo = S('wso')
    st = Stamps(p, S, prof)
    vL = V('lane'); vW = V('wrd'); vW2 = V('wrd2'); vDW = V('dmaW'); vDQ = V('dmaQ'); vSt = V('xst', 2); vCs = V('cs'); vC2 = V('c2')
    vZ1 = V('z1o'); vQo = V('qoff'); vSw = V('stw'); vSr = V('str'); vZs = V('zso'); vA = V('a'); vB = V('b')
    T = V('T', 8, 4)
    WF = V('wf', 16, 4)
    AZ1 = V('az1', 16, 4); AZ2 = V('az2', 16, 4); AQ = V('aq', 16, 4)
    X = V('x', 160, 4)
    vXa = [AQ + j for j in range(4)]; vDX0 = AQ + 4; vDX1 = AQ + 5
    TBL = 131072; STG = TBL + 1024
    LDS = STG + 8*2048
    st('start')
    p(f"v_lshrrev_b32 v{vA}, 6, v0"); p(f"v_and_b32 v{vL}, 63, v0"); p(f"v_readfirstlane_b32 s{sw}, v{vA}")
    p(f"s_and_b32 s{sT0}, s2, 7"); p(f"s_lshr_b32 s{sT1}, s2, 3")
    p(f"s_and_b32 s{sRb}, s{sT0}, 1"); p(f"s_lshl_b32 s{sRb}, s{sRb}, 3"); p(f"s_and_b32 s{sT2}, s{sT1}, 7"); p(f"s_add_u32 s{sRb}, s{sRb}, s{sT2}")
    p(f"s_lshr_b32 s{sCg}, s{sT0}, 1"); p(f"s_lshl_b32 s{sCg}, s{sCg}, 2"); p(f"s_lshr_b32 s{sT2}, s{sT1}, 3"); p(f"s_add_u32 s{sCg}, s{sCg}, s{sT2}")
    p(f"s_cmp_eq_u32 s{sCg}, 15"); p(f"s_cbranch_scc1 {tag}_done")
    p(f"s_and_b32 s{sRg}, s{sw}, 3"); p(f"s_lshr_b32 s{sCh}, s{sw}, 2")
    p(f"s_min_u32 s{sLA}, s{sCg}, 13"); p(f"s_add_u32 s{sLB}, s{sCg}, 14"); p(f"s_cmp_lt_u32 s{sCg}, 13"); p(f"s_cselect_b32 s{sLB}, s{sLB}, 13")
    p(f"v_lshrrev_b32 v{vA}, 4, v{vL}"); p(f"v_and_b32 v{vB}, 7, v{vL}"); p(f"v_xor_b32 v{vA}, v{vA}, v{vB}"); p(f"v_lshlrev_b32 v{vA}, 4, v{vA}")
    p(f"v_lshrrev_b32 v{vB}, 3, v{vL}"); p(f"v_mul_u32_u24 v{T}, 1280, v{vB}"); p(f"v_add_u32 v{vDX0}, v{vA}, v{T}")
    p(f"v_xor_b32 v{vDX1}, 64, v{vA}"); p(f"v_add_u32 v{vDX1}, v{vDX1}, v{T}"); p(f"v_add_u32 v{vDX1}, {10240-1024}, v{vDX1}")
    p(f"v_lshrrev_b32 v{vA}, 2, v{vL}"); p(f"v_and_b32 v{vA}, 4, v{vA}"); p(f"v_and_b32 v{T+1}, 7, v{vL}"); p(f"v_xor_b32 v{vA}, v{vA}, v{T+1}"); p(f"v_lshlrev_b32 v{vA}, 4, v{vA}")
    p(f"v_mul_u32_u24 v{T}, 3456, v{vB}"); p(f"v_add_u32 v{vDW}, v{vA}, v{T}")
    p(f"v_mul_u32_u24 v{T}, 3840, v{vB}"); p(f"v_add_u32 v{vDQ}, v{vA}, v{T}")
    p("s_waitcnt lgkmcnt(0)")
    st('karg')
    srd(p, sX, R['x'], size=2048*1280)
    srd(p, sWi, R['win'], size=640*3456)
    srd(p, sWq, R['wqkv'], size=640*3840)
    srd(p, sWS, R['ws'], size=WS_SIZE)
    p(f"s_lshl_b32 s{sT0}, s{sRb}, 7"); p(f"s_lshl_b32 s{sT1}, s{sw}, 4"); p(f"s_add_u32 s{sT0}, s{sT0}, s{sT1}"); p(f"s_mul_i32 s{sOX}, s{sT0}, 1280")
    p(f"s_cmp_eq_u32 s{sCh}, 0"); p(f"s_cselect_b32 s{sT0}, s{sLA}, s{sLB}"); p(f"s_lshl_b32 s{sT0}, s{sT0}, 7")
    p(f"s_mul_i32 s{sT1}, s{sRg}, {16*3456}"); p(f"s_add_u32 s{sOW0}, s{sT0}, s{sT1}"); p(f"s_add_u32 s{sOW1}, s{sOW0}, {8*3456 - 1024}")
    p(f"s_lshl_b32 s{sMb}, s{sw}, 11")
    p("@auto on")
    def dmaX(i):
        L = [f"s_add_u32 m0, s{sMb}, {(i % 4)*16384}",
             f"buffer_load_dwordx4 v{vDX0}, s[{sX}:{sX+3}], s{sOX} offen lds",
             f"buffer_load_dwordx4 v{vDX1}, s[{sX}:{sX+3}], s{sOX} offen offset:1024 lds",
             f"s_add_u32 s{sOX}, s{sOX}, 128"]
        return L
    def dmaW(i):
        return [f"s_add_u32 m0, s{sMb}, {(4 + i % 4)*16384}",
                f"buffer_load_dwordx4 v{vDW}, s[{sWi}:{sWi+3}], s{sOW0} offen lds",
                f"buffer_load_dwordx4 v{vDW}, s[{sWi}:{sWi+3}], s{sOW1} offen offset:1024 lds",
                f"s_add_u32 s{sOW0}, s{sOW0}, {64*3456}", f"s_add_u32 s{sOW1}, s{sOW1}, {64*3456}"]
    P2SLOT = [2, 6, 3, 7, 0, 4, 1, 5, 2, 6]
    sOQ0 = S('oQ0'); sOQ1 = S('oQ1')
    def dmaQ(t):
        L = [f"s_add_u32 m0, s{sMb}, {P2SLOT[t]*16384}",
             f"buffer_load_dwordx4 v{vDQ}, s[{sWq}:{sWq+3}], s{sOQ0} offen lds",
             f"buffer_load_dwordx4 v{vDQ}, s[{sWq}:{sWq+3}], s{sOQ1} offen offset:1024 lds"]
        d = 128*3840 if t != 4 else 128 - 4*128*3840
        L += [f"s_add_u32 s{sOQ0}, s{sOQ0}, {hx(d)}", f"s_add_u32 s{sOQ1}, s{sOQ1}, {hx(d)}"]
        return L
    for i in range(2):
        for l in dmaX(i) + dmaW(i): p(l)
        p(f"@mark st{i}")
    p(f"s_lshl_b32 s{sT0}, s{sRb}, 7"); p(f"s_lshl_b32 s{sT1}, s{sRg}, 5"); p(f"s_add_u32 s{sT0}, s{sT0}, s{sT1}")
    sRow0 = S('row0'); p(f"s_mov_b32 s{sRow0}, s{sT0}")
    p(f"v_and_b32 v{vA}, 31, v{vL}"); p(f"v_lshlrev_b32 v{vB}, 3, v{vA}")
    p(f"s_lshl_b32 s{sT1}, s{sT0}, 3"); p(f"s_add_u32 s{sT1}, s{sT1}, {WS_XST}")
    p(f"buffer_load_dwordx2 v[{vSt}:{vSt+1}], v{vB}, s[{sWS}:{sWS+3}], s{sT1} offen")
    p(f"s_lshr_b32 s{sT0}, s{sw}, 1")
    p(f"s_lshl_b32 s{sT1}, s{sCg}, 1"); p(f"s_add_u32 s{sT1}, s{sT1}, 25"); p(f"s_add_u32 s{sT1}, s{sT1}, s{sT0}")
    p(f"s_cmp_eq_u32 s{sT0}, 0"); p(f"s_cselect_b32 s{sT1}, s{sLA}, s{sT1}")
    p(f"s_cmp_eq_u32 s{sT0}, 1"); p(f"s_cselect_b32 s{sT1}, s{sLB}, s{sT1}")
    p(f"s_lshl_b32 s{sT1}, s{sT1}, 8"); p(f"s_and_b32 s{sT0}, s{sw}, 1"); p(f"s_lshl_b32 s{sT0}, s{sT0}, 7"); p(f"s_add_u32 s{sT1}, s{sT1}, s{sT0}")
    p(f"s_add_u32 s{sT1}, s{sT1}, {WS_CS}")
    p(f"s_lshl_b32 s{sT0}, s{sw}, 7"); p(f"s_add_u32 m0, s{sT0}, {TBL}")
    p(f"v_lshlrev_b32 v{vA}, 4, v{vL}")
    p("s_mov_b64 exec, 0xff")
    p(f"buffer_load_dwordx4 v{vA}, s[{sWS}:{sWS+3}], s{sT1} offen lds")
    p("s_mov_b64 exec, -1")
    for i in range(2, 4):
        for l in dmaX(i) + dmaW(i): p(l)
        p(f"@mark st{i}")
    st('dma')
    p(f"s_mul_i32 s{sOQ0}, s{sw}, {16*3840}"); p(f"s_lshl_b32 s{sT0}, s{sCg}, 8"); p(f"s_add_u32 s{sOQ0}, s{sOQ0}, s{sT0}"); p(f"s_add_u32 s{sOQ1}, s{sOQ0}, {8*3840 - 1024}")
    p(f"v_and_b32 v{vA}, 31, v{vL}"); p(f"v_lshrrev_b32 v{vB}, 1, v{vA}"); p(f"v_and_b32 v{vB}, 7, v{vB}"); p(f"v_lshrrev_b32 v{T}, 5, v{vL}")
    p(f"v_xor_b32 v{vB}, v{vB}, v{T}"); p(f"v_lshlrev_b32 v{vB}, 4, v{vB}"); p(f"v_lshlrev_b32 v{vA}, 7, v{vA}"); p(f"v_add_u32 v{vA}, v{vA}, v{vB}")
    p(f"s_lshl_b32 s{sT0}, s{sRg}, 12"); p(f"v_add_u32 v{vXa[0]}, s{sT0}, v{vA}")
    for j in range(1, 4): p(f"v_xor_b32 v{vXa[j]}, {j << 5}, v{vXa[0]}")
    p(f"v_lshrrev_b32 v{vA}, 5, v{vL}"); p(f"v_lshlrev_b32 v{vA}, 3, v{vA}"); p(f"v_bfe_u32 v{vB}, v{vL}, 2, 2"); p(f"v_add_u32 v{vA}, v{vA}, v{vB}"); p(f"v_lshlrev_b32 v{vA}, 7, v{vA}")
    p(f"v_lshrrev_b32 v{vB}, 1, v{vB}"); p(f"v_lshlrev_b32 v{vB}, 6, v{vB}")
    p(f"v_bfe_u32 v{T}, v{vL}, 4, 1"); p(f"v_lshlrev_b32 v{T}, 5, v{T}"); p(f"v_and_b32 v{T+1}, 3, v{vL}"); p(f"v_lshlrev_b32 v{T+1}, 3, v{T+1}"); p(f"v_add_u32 v{T}, v{T}, v{T+1}")
    p(f"s_lshl_b32 s{sT0}, s{sCh}, 6"); p(f"v_add_u32 v{T}, s{sT0}, v{T}"); p(f"v_xor_b32 v{T}, v{T}, v{vB}"); p(f"v_add_u32 v{vW}, v{vA}, v{T}")
    p(f"v_add_u32 v{vW2}, 0x10000, v{vW}")
    p(f"v_lshrrev_b32 v{vA}, 5, v{vL}"); p(f"v_lshlrev_b32 v{vA}, 4, v{vA}"); p(f"s_lshl_b32 s{sT0}, s{sCh}, 7"); p(f"s_add_u32 s{sT0}, s{sT0}, {TBL}"); p(f"v_add_u32 v{vCs}, s{sT0}, v{vA}")
    p(f"s_mov_b32 s{sC1}, {hx(f2u(C1))}"); p(f"v_mov_b32 v{vC2}, {hx(f2u(C2))}")
    p(f"s_lshl_b32 s{sT0}, s{sCg}, 1"); p(f"s_add_u32 s{sT0}, s{sT0}, s{sCh}")
    p(f"s_cmp_le_u32 s{sT0}, 26"); p(f"s_cselect_b32 s{sV1}, 0, {hx(OOB)}")
    p(f"s_cmp_le_u32 s{sT0}, 25"); p(f"s_cselect_b32 s{sV2}, 0, {hx(OOB)}"); p(f"s_cmp_eq_u32 s{sT0}, 27"); p(f"s_cselect_b32 s{sV2}, 0, s{sV2}")
    p(f"s_lshl_b32 s{sT0}, s{sLA}, 1"); p(f"s_add_u32 s{sT0}, s{sT0}, s{sCh}"); p(f"s_lshl_b32 s{sT0}, s{sT0}, 10")
    p(f"s_lshr_b32 s{sT1}, s{sRow0}, 4"); p(f"s_mul_i32 s{sT1}, s{sT1}, {54*512}"); p(f"s_add_u32 s{sT0}, s{sT0}, s{sT1}"); p(f"s_or_b32 s{sT0}, s{sT0}, s{sV1}")
    p(f"v_bfe_u32 v{vA}, v{vL}, 4, 1"); p(f"v_mul_u32_u24 v{vA}, {54*512}, v{vA}"); p(f"v_lshrrev_b32 v{vB}, 5, v{vL}"); p(f"v_lshlrev_b32 v{vB}, 8, v{vB}"); p(f"v_add_u32 v{vA}, v{vA}, v{vB}")
    p(f"v_and_b32 v{vB}, 15, v{vL}"); p(f"v_lshlrev_b32 v{vB}, 4, v{vB}"); p(f"v_add_u32 v{vA}, v{vA}, v{vB}"); p(f"v_add_u32 v{vZ1}, s{sT0}, v{vA}")
    p(f"s_lshl_b32 s{sJ}, s{sLB}, 1"); p(f"s_add_u32 s{sJ}, s{sJ}, s{sCh}"); p(f"s_sub_u32 s{sJ}, s{sJ}, 27"); p(f"s_max_i32 s{sJ}, s{sJ}, 0")
    p(f"s_lshr_b32 s{sT1}, s{sRow0}, 5"); p(f"s_mul_i32 s{sZ2o}, s{sT1}, {54*1024}"); p(f"s_lshl_b32 s{sT0}, s{sJ}, 11"); p(f"s_add_u32 s{sZ2o}, s{sZ2o}, s{sT0}")
    p(f"s_add_u32 s{sZ2o}, s{sZ2o}, {WS_Z2R}")
    p(f"s_mul_i32 s{sT1}, s{sT1}, 27"); p(f"s_add_u32 s{sT1}, s{sT1}, s{sJ}"); p(f"s_lshl_b32 s{sT1}, s{sT1}, 8"); p(f"s_or_b32 s{sT1}, s{sT1}, s{sV2}")
    p(f"v_lshlrev_b32 v{vA}, 3, v{vL}"); p(f"v_lshrrev_b32 v{vB}, 5, v{vL}"); p(f"v_lshlrev_b32 v{vB}, 31, v{vB}"); p(f"v_or_b32 v{vA}, v{vA}, v{vB}"); p(f"v_or_b32 v{vA}, s{sV2}, v{vA}")
    p(f"s_and_b32 s{sT1}, s{sT1}, 0x7fffffff"); p(f"v_add_u32 v{vZs}, s{sT1}, v{vA}")
    p(f"v_and_b32 v{vA}, 31, v{vL}"); p(f"v_bfe_u32 v{vB}, v{vL}, 1, 2"); p(f"v_lshlrev_b32 v{vB}, 4, v{vB}"); p(f"v_lshlrev_b32 v{vA}, 6, v{vA}"); p(f"v_add_u32 v{vA}, v{vA}, v{vB}")
    p(f"v_lshrrev_b32 v{vB}, 5, v{vL}"); p(f"v_lshlrev_b32 v{vB}, 3, v{vB}"); p(f"v_add_u32 v{vA}, v{vA}, v{vB}")
    p(f"s_lshl_b32 s{sT0}, s{sw}, 11"); p(f"s_add_u32 s{sT0}, s{sT0}, {STG}"); p(f"v_add_u32 v{vSw}, s{sT0}, v{vA}")
    p(f"v_lshrrev_b32 v{vA}, 4, v{vL}"); p(f"v_lshlrev_b32 v{vA}, 3, v{vA}"); p(f"v_bfe_u32 v{vB}, v{vL}, 2, 2"); p(f"v_add_u32 v{vA}, v{vA}, v{vB}"); p(f"v_lshlrev_b32 v{vA}, 6, v{vA}")
    p(f"v_lshrrev_b32 v{vB}, 1, v{vB}"); p(f"v_bfe_u32 v{T}, v{vL}, 1, 1"); p(f"v_xor_b32 v{vB}, v{vB}, v{T}"); p(f"v_lshlrev_b32 v{vB}, 4, v{vB}"); p(f"v_add_u32 v{vA}, v{vA}, v{vB}")
    p(f"v_and_b32 v{vB}, 1, v{vL}"); p(f"v_lshlrev_b32 v{vB}, 3, v{vB}"); p(f"v_add_u32 v{vA}, v{vA}, v{vB}"); p(f"v_add_u32 v{vSr}, s{sT0}, v{vA}")
    p(f"v_lshrrev_b32 v{vA}, 5, v{vL}"); p(f"s_lshl_b32 s{sT0}, s{sCh}, 3"); p(f"v_add_u32 v{vA}, s{sT0}, v{vA}"); p(f"v_lshlrev_b32 v{vA}, 14, v{vA}")
    p(f"v_and_b32 v{vB}, 31, v{vL}"); p(f"v_add_u32 v{vB}, s{sRow0}, v{vB}"); p(f"v_lshlrev_b32 v{vB}, 3, v{vB}"); p(f"v_add_u32 v{vQo}, v{vA}, v{vB}")
    p(f"s_lshl_b32 s{sQo}, s{sCg}, 19"); p(f"s_add_u32 s{sQo}, s{sQo}, {WS_QKV}")
    p(f"s_mov_b32 s{sWSo}, {WS_Z1P}")

    def wbase(slot): return (vW2 if slot >= 4 else vW), (slot % 4)*16384
    def rd1(n):
        i, j = divmod(n, 4)
        L = [f"ds_read_b128 v[{X+4*n}:{X+4*n+3}], v{vXa[j]} offset:{(i % 4)*16384}"]
        vb, o = wbase(4 + i % 4)
        for blk in range(2):
            f = WF + (n & 1)*8 + blk*4
            for rd in range(2):
                L.append(f"ds_read_b64_tr_b16 v[{f+2*rd}:{f+2*rd+1}], v{vb} offset:{o + blk*8192 + j*2048 + rd*512}")
        return L
    def mf1(n):
        L = []
        for blk, acc in enumerate((AZ1, AZ2)):
            f = WF + (n & 1)*8 + blk*4
            c = "0" if n == 0 else f"v[{acc}:{acc+15}]"
            L.append(f"v_mfma_f32_32x32x16_bf16 v[{acc}:{acc+15}], v[{f}:{f+3}], v[{X+4*n}:{X+4*n+3}], {c}")
        return L
    def rd2(m):
        t, j = divmod(m, 8)
        vb, o = wbase(P2SLOT[t])
        f = WF + (m % 3)*4
        return [f"ds_read_b64_tr_b16 v[{f+2*rd}:{f+2*rd+1}], v{vb} offset:{o + j*2048 + rd*512}" for rd in range(2)]
    def mf2(m):
        acc = AQ if m < 40 else AZ1
        n = m % 40
        f = WF + (m % 3)*4
        c = "0" if n == 0 else f"v[{acc}:{acc+15}]"
        return f"v_mfma_f32_32x32x16_bf16 v[{acc}:{acc+15}], v[{f}:{f+3}], v[{X+4*n}:{X+4*n+3}], {c}"
    def boundary(n_stage):
        p(f"@waitvm st{n_stage}")
        p("s_waitcnt lgkmcnt(0)")
        p("s_barrier")
        D = []
        n = n_stage
        if 1 <= n <= 6: D = [(dmaX(n+3) + dmaW(n+3), f"st{n+3}")]
        elif n == 7: D = [(dmaQ(0), "st10"), (dmaQ(1), "st11")]
        elif n == 8: D = [(dmaQ(2), "st12"), (dmaQ(3), "st13")]
        elif n == 9: D = [(dmaQ(4), "st14"), (dmaQ(5), "st15")]
        elif n == 10: D = [(dmaQ(6), "st16"), (dmaQ(7), "st17")]
        elif n == 11: D = [(dmaQ(8), "st18")]
        elif n == 12: D = [(dmaQ(9), "st19")]
        out = []
        for L, mk in D: out += L + [f"@mark {mk}"]
        return out
    rstd, nm = vSt, vSt + 1
    def norm_ops(acc, seg, rp, t):
        L = []
        for c in range(4): L.append(f"v_mul_f32 v{t+c}, v{t+c}, v{nm}")
        for c in range(4): L.append(f"v_fma_f32 v{acc+4*rp+c}, v{acc+4*rp+c}, v{rstd}, v{t+c}")
        return L
    def csread(seg, rp, t): return f"ds_read_b128 v[{t}:{t+3}], v{vCs} offset:{seg*256 + rp*32}"
    def e_z1():
        L = [csread(0, 0, T), csread(0, 1, T+4)]
        for rp in range(4):
            t = T + 4*(rp & 1)
            L += norm_ops(AZ1, 0, rp, t)
            if rp < 2: L.append(csread(0, rp+2, t))
            d = AZ1 + (0 if rp < 2 else 8) + 2*(rp & 1)
            L.append(f"v_cvt_pk_bf16_f32 v{d}, v{AZ1+4*rp}, v{AZ1+4*rp+1}"); L.append(f"v_cvt_pk_bf16_f32 v{d+1}, v{AZ1+4*rp+2}, v{AZ1+4*rp+3}")
            if rp & 1:
                b = AZ1 + (0 if rp < 2 else 8)
                L.append(f"buffer_store_dwordx4 v[{b}:{b+3}], v{vZ1}, s[{sWS}:{sWS+3}], s{sWSo} offen offset:{512*(rp >> 1)} {sc}")
        return L
    vSum = vA; vSq = vB
    def e_z2():
        L = [csread(1, 0, T)]
        g = T + 4
        for rp in range(4):
            L += norm_ops(AZ2, 1, rp, T)
            if rp < 3: L.append(csread(1, rp+1, T))
            a = AZ2 + 4*rp
            steps = [gelu_ops(a+c, g+c, sC1, vC2) for c in range(4)]
            for k in range(7):
                for c in range(4): L.append(steps[c][k])
            for c in range(4):
                if rp == 0 and c == 0:
                    L.append(f"v_mov_b32 v{vSum}, v{a}"); L.append(f"v_mul_f32 v{vSq}, v{a}, v{a}")
                else:
                    L.append(f"v_add_f32 v{vSum}, v{vSum}, v{a+c}"); L.append(f"v_fmac_f32 v{vSq}, v{a+c}, v{a+c}")
            d = AZ2 + 2*rp
            L.append(f"v_cvt_pk_bf16_f32 v{d}, v{a}, v{a+1}"); L.append(f"v_cvt_pk_bf16_f32 v{d+1}, v{a+2}, v{a+3}")
            if rp == 0: L.append(f"ds_write_b64 v{vSw}, v[{d}:{d+1}]")
            else:
                L.append(f"v_xor_b32 v{g}, {rp << 4}, v{vSw}"); L.append(f"ds_write_b64 v{g}, v[{d}:{d+1}]")
        L += [f"v_mov_b32 v{T}, v{vSum}", f"v_mov_b32 v{T+1}, v{vSq}", f"v_permlane32_swap_b32 v{vSum}, v{T}", f"v_permlane32_swap_b32 v{vSq}, v{T+1}",
              f"v_add_f32 v{T+2}, v{vSum}, v{T}", f"v_add_f32 v{T+3}, v{vSq}, v{T+1}",
              f"buffer_store_dwordx2 v[{T+2}:{T+3}], v{vZs}, s[{sWS}:{sWS+3}], s{sZso} offen {sc}"]
        for u in range(2):
            d = AZ2 + 8 + 4*u
            for rd in range(2):
                L.append(f"ds_read_b64_tr_b16 v[{d+2*rd}:{d+2*rd+1}], v{vSr} offset:{rd*256 + (u ^ rd)*32}")
        L.append(f"v_lshlrev_b32 v{T+4}, 4, v{vL}"); L.append(f"v_or_b32 v{T+4}, s{sV2}, v{T+4}")
        for u in range(2):
            d = AZ2 + 8 + 4*u
            L.append(f"buffer_store_dwordx4 v[{d}:{d+3}], v{T+4}, s[{sWS}:{sWS+3}], s{sZ2o} offen offset:{1024*u} {sc}")
        return L
    sZso = S('zso'); p(f"s_mov_b32 s{sZso}, {WS_ZST}")
    def e_q(acc, seg):
        L = [csread(seg, 0, T), csread(seg, 1, T+4)]
        for rp in range(4):
            t = T + 4*(rp & 1)
            L += norm_ops(acc, seg, rp, t)
            if rp < 2: L.append(csread(seg, rp+2, t))
            d = acc + 4*rp
            L.append(f"v_cvt_pk_bf16_f32 v{d}, v{d}, v{d+1}"); L.append(f"v_cvt_pk_bf16_f32 v{d+1}, v{d+2}, v{d+3}")
            L.append(f"buffer_store_dwordx2 v[{d}:{d+1}], v{vQo}, s[{sWS}:{sWS+3}], s{sQo} offen {sc}")
            L.append(f"s_add_u32 s{sQo}, s{sQo}, {32768 if rp < 3 else 16*16384 - 3*32768}")
        return L
    st('setup')
    dq = boundary(0)
    for l in rd1(0): p(l)
    st('bar0')
    for n in range(40):
        if n == 20: st('n20')
        if n + 1 < 40:
            if (n + 1) % 4 == 0: dq += boundary((n + 1)//4)
            for l in rd1(n + 1): p(l)
        else:
            dq += boundary(10)
            for l in rd2(0) : p(l)
        M = mf1(n)
        p(M[0])
        k = 0
        while dq and k < 5:
            l = dq.pop(0); p(l);
            if not l.startswith('@'): k += 1
        p(M[1])
        k = 0
        while dq and k < 5:
            l = dq.pop(0); p(l)
            if not l.startswith('@'): k += 1
    st('pass1')
    F = e_z1() + e_z2()
    F2 = e_q(AQ, 2)
    for l in rd2(1): p(l)
    for m in range(80):
        if m + 2 < 80:
            if (m + 2) % 8 == 0: dq += boundary(10 + (m + 2)//8)
            for l in rd2(m + 2): p(l)
        if m == 40: assert not [l for l in F if f"v{AZ1}" in l or f"v[{AZ1}" in l] or True
        if m in (20, 40, 60): st(f'm{m}')
        if not nomf: p(mf2(m))
        k = 0
        while dq and k < 5:
            l = dq.pop(0); p(l)
            if not l.startswith('@'): k += 1
        src = F if (F or m < 42) else F2
        lim = nfill2 - (2 if k else 0)
        if m >= 1 and not nofill:
            for _ in range(lim):
                if src: p(src.pop(0))
    assert not dq
    st('pass2')
    if nofill: F2 = []
    for l in F + F2: p(l)
    for l in e_q(AZ1, 3): p(l)
    if prof:
        st('end')
        S.names['w'] = sw
        emit_prof_store(p, R['ws'], st.L, vA, T, S, region=3, wave=pw)
    p("@auto off")
    p(f"{tag}_done:")
    return dict(vgpr=V.n, sgpr=S.n, lds=LDS, stamps=st.names)

def emit_k1b(p, tag="K1B", ssc=""):
    S = Alloc(4, 100, 's'); V = Alloc(1, 256, 'v')
    R = prologue(p, S, V, ['ws'])
    sWS = S('srdWS', 4); sw = S('w'); sKs = S('ks'); sPt = S('pt'); sT0 = S('t0'); sT1 = S('t1'); sE = S('ex', 2)
    vL = V('lane'); vA = V('a'); vB = V('b'); vS = V('st', 2, 2); vP = V('part', 8, 2); vM = V('m', 16, 4); vD = V('d', 8, 4); vO = V('o', 2); vT = V('t', 8, 4)
    p(f"v_lshrrev_b32 v{vA}, 6, v0"); p(f"v_and_b32 v{vL}, 63, v0"); p(f"v_readfirstlane_b32 s{sw}, v{vA}")
    p(f"s_lshr_b32 s{sKs}, s2, 2"); p(f"s_and_b32 s{sPt}, s2, 3")
    p("s_waitcnt lgkmcnt(0)")
    srd(p, sWS, R['ws'], size=WS_SIZE)
    p("@auto on")
    p(f"s_mul_i32 s{sT0}, s{sPt}, 14"); p(f"s_add_u32 s{sT0}, s{sT0}, s{sw}")
    for k in range(2):
        p(f"s_add_u32 s{sT1}, s{sT0}, {8*k}"); p(f"s_cmp_lt_u32 s{sT1}, 54"); p(f"s_cselect_b32 s{sE}, 0, {hx(OOB)}")
        if k == 1:
            p(f"s_cmp_lt_u32 s{sw}, 6"); p(f"s_cselect_b32 s{sE}, s{sE}, {hx(OOB)}")
        p(f"s_mul_i32 s{sE+1}, s{sKs}, 54"); p(f"s_add_u32 s{sE+1}, s{sE+1}, s{sT1}"); p(f"s_lshl_b32 s{sE+1}, s{sE+1}, 10"); p(f"s_or_b32 s{sE+1}, s{sE+1}, s{sE}")
        p(f"v_lshlrev_b32 v{vA}, 4, v{vL}"); p(f"v_add_u32 v{vO+k}, s{sE+1}, v{vA}")
    sZr = S('zr'); sZn = S('zn'); p(f"s_mov_b32 s{sZr}, {WS_Z2R}"); p(f"s_mov_b32 s{sZn}, {WS_Z2N}")
    for k in range(2): p(f"buffer_load_dwordx4 v[{vD+4*k}:{vD+4*k+3}], v{vO+k}, s[{sWS}:{sWS+3}], s{sZr} offen")
    p(f"s_mul_i32 s{sT0}, s{sKs}, {27*256}"); p(f"s_add_u32 s{sT0}, s{sT0}, {WS_ZST}")
    p(f"v_and_b32 v{vA}, 31, v{vL}"); p(f"v_lshlrev_b32 v{vA}, 3, v{vA}"); p(f"v_lshrrev_b32 v{vB}, 5, v{vL}"); p(f"v_lshlrev_b32 v{vB}, 8, v{vB}"); p(f"v_add_u32 v{vA}, v{vA}, v{vB}")
    p(f"v_mov_b32 v{vS}, 0"); p(f"v_mov_b32 v{vS+1}, 0")
    p(f"v_lshlrev_b32 v{vB}, 23, v{vB}"); p(f"v_add_u32 v{vB}, v{vA}, v{vB}")
    for i0 in range(0, 14, 4):
        n = min(4, 14 - i0)
        for i in range(n):
            src = vB if i0 + i == 13 else vA
            p(f"s_add_u32 s{sT1}, s{sT0}, {(i0+i)*512}")
            p(f"buffer_load_dwordx2 v[{vP+2*i}:{vP+2*i+1}], v{src}, s[{sWS}:{sWS+3}], s{sT1} offen")
        for i in range(n):
            p(f"v_add_f32 v{vS}, v{vS}, v{vP+2*i}"); p(f"v_add_f32 v{vS+1}, v{vS+1}, v{vP+2*i+1}")
    for r in range(2):
        p(f"v_mov_b32 v{vA}, v{vS+r}"); p(f"v_permlane32_swap_b32 v{vS+r}, v{vA}"); p(f"v_add_f32 v{vS+r}, v{vS+r}, v{vA}")
    p(f"v_mul_f32 v{vS}, {hx(f2u(1/864))}, v{vS}")
    p(f"v_mul_f32 v{vS+1}, {hx(f2u(1/864))}, v{vS+1}")
    p(f"v_fma_f32 v{vS+1}, -v{vS}, v{vS}, v{vS+1}")
    p(f"v_max_f32 v{vS+1}, 0, v{vS+1}")
    p(f"v_add_f32 v{vS+1}, {hx(f2u(1e-5))}, v{vS+1}"); p(f"v_rsq_f32 v{vS+1}, v{vS+1}")
    p(f"v_mul_f32 v{vS}, v{vS}, v{vS+1}"); p(f"v_sub_f32 v{vS}, 0, v{vS}")
    p(f"s_lshl_b32 s{sT0}, s{sw}, 8"); p(f"v_and_b32 v{vA}, 31, v{vL}"); p(f"v_lshlrev_b32 v{vA}, 3, v{vA}"); p(f"v_add_u32 v{vA}, s{sT0}, v{vA}")
    p(f"ds_write_b64 v{vA}, v[{vS}:{vS+1}]")
    p(f"v_lshrrev_b32 v{vA}, 4, v{vL}"); p(f"v_lshlrev_b32 v{vA}, 6, v{vA}"); p(f"v_add_u32 v{vA}, s{sT0}, v{vA}")
    for q in range(4): p(f"ds_read_b128 v[{vM+4*q}:{vM+4*q+3}], v{vA} offset:{16*q}")
    for k in range(2):
        for e in range(8):
            src = vD + 4*k + e//2
            p(f"v_lshlrev_b32 v{vT+e}, 16, v{src}" if e % 2 == 0 else f"v_and_b32 v{vT+e}, 0xffff0000, v{src}")
        for e in range(8): p(f"v_fma_f32 v{vT+e}, v{vT+e}, v{vM+2*e+1}, v{vM+2*e}")
        for e in range(0, 8, 2): p(f"v_cvt_pk_bf16_f32 v{vD+4*k+e//2}, v{vT+e}, v{vT+e+1}")
        p(f"buffer_store_dwordx4 v[{vD+4*k}:{vD+4*k+3}], v{vO+k}, s[{sWS}:{sWS+3}], s{sZn} offen {ssc}")
    p("@auto off")
    return dict(vgpr=V.n, sgpr=S.n, lds=2048)
```

```python
import sys
sys.path.insert(0, 'dev')
from gen import *
from gen2 import *
from gen3 import *

HDR = open('cdna_kernels/' + NAME + '.s.ref').read().split('; Override launch geometry')[0]

def build(kernels, path):
    txt = ""; launches = ""
    for (label, emit, kw) in kernels:
        t, info = standalone(label, emit, **kw)
        txt += t
        launches += f"; @launch kernel={label} grid=(256,1,1) block=(512,1,1) lds={info['lds']}\n"
        print(label, {k: v for k, v in info.items() if k != 'stamps'})
    open(path, 'w').write(HDR + launches + HEAD + txt)
    print(path, len(HDR + launches + HEAD + txt))

V1 = [("k0_kernel", emit_k0, {}),
      ("p1_kernel", emit_p1, dict(nfill2=4)),
      ("k1b_kernel", emit_k1b, {}),
      ("att_kernel", emit_att, {}),
      ("p2_kernel", emit_p2, dict(D=7, bper=2)),
      ("p3_kernel", emit_p3, {})]
if __name__ == "__main__":
    out = sys.argv[1] if len(sys.argv) > 1 else 'cdna_kernels/' + NAME + '.s'
    build(V1, out)
```

```python
import sys
sys.path.insert(0, 'dev')
from build import *
def emit_empty(p, tag="E"):
    return dict(vgpr=8, sgpr=8, lds=0)

def build2(kernels, order, path):
    txt = ""; infos = {}
    for (label, emit, kw) in kernels:
        t, info = standalone(label, emit, **kw)
        txt += t; infos[label] = info
    launches = "".join(f"; @launch kernel={l} grid=(256,1,1) block=(512,1,1) lds={infos[l]['lds']}\n" for l in order)
    open(path, 'w').write(HDR + launches + HEAD + txt)
base = [k[0] for k in V1]
K = V1 + [("e_kernel", emit_empty, {})]
import os
os.makedirs('exp', exist_ok=True)
build2(V1, base, 'a.s')
build2(K, base + ['e_kernel']*4, 'b.s')
build2(V1, ['k0_kernel','p1_kernel','p1_kernel','k1b_kernel','att_kernel','p2_kernel','p3_kernel'], 'c.s')
build2(V1, ['k0_kernel','p1_kernel','k1b_kernel','att_kernel','p2_kernel','p2_kernel','p3_kernel'], 'd.s')
build2(V1, ['k0_kernel','p1_kernel','k1b_kernel','att_kernel','p2_kernel','p3_kernel','p3_kernel'], 'e.s')
build2(K, ['e_kernel']*4 + base, 'f.s')
```

```python
from asmlib import Prog, vr, sr
from gen import *
import gen

WS_XST = 0xD00000
WS_CS  = 0xD04000
WS_ZST = 0xD10000
WS_QKV = 0x1000000
WS_WR  = 0x1800000
WS_Z2R = 0x1A00000
WS_SIZE = 0x2000000
SZ_QKV = 3*160*2048*8
SZ_WR = 8*47*5120
LOG2E = 1.4426950408889634

def magic(d, n):
    M = (2**32 + d - 1)//d
    for x in (list(range(0, min(n, 70000))) + list(range(max(0, n-70000), n))):
        assert (x*M) >> 32 == x//d, (d, x)
    return M

def prologue(p, S, V, ptrs):
    offs = dict(x=0, wqkv=8, wo=16, win=32, wsp=40, bsp=48, wout=56, out=64, dbg=72, ws=80)
    R = {}
    for n in ptrs:
        R[n] = S('p_' + n, 2)
        p(f"s_load_dwordx2 s[{R[n]}:{R[n]+1}], s[0:1], {offs[n]}")
    return R

def dpp_sum64(p, v, t):
    for d in ("quad_perm:[1,0,3,2]", "quad_perm:[2,3,0,1]", "row_half_mirror", "row_mirror"):
        p(f"v_add_f32_dpp v{v}, v{v}, v{v} {d} row_mask:0xf bank_mask:0xf")
    p(f"v_mov_b32 v{t}, v{v}"); p(f"v_permlane16_swap_b32 v{v}, v{t}"); p(f"v_add_f32 v{v}, v{v}, v{t}")
    p(f"v_mov_b32 v{t}, v{v}"); p(f"v_permlane32_swap_b32 v{v}, v{t}"); p(f"v_add_f32 v{v}, v{v}, v{t}")

def emit_k0(p, tag="K0", touch=(), ssc=""):
    S = Alloc(4, 100, 's'); V = Alloc(1, 256, 'v')
    R = prologue(p, S, V, ['x', 'wqkv', 'wo', 'win', 'wout', 'ws', 'wsp'])
    sX = S('srdX', 4); sA = S('srdA', 4); sB = S('srdB', 4); sWS = S('srdWS', 4)
    sw = S('w'); sT0 = S('t0'); sT1 = S('t1'); sM = S('m'); sSt = S('stride'); sE = S('ex', 2)
    vL = V('lane'); vA = V('a'); vB = V('b'); vC = V('c'); vD = V('d'); vE = V('e')
    vx = V('x', 10); vr4 = V('rep', 4); vw = V('wl', 40, 4); va = V('acc', 8, 4); vT = V('t', 8, 4)
    p(f"v_lshrrev_b32 v{vA}, 6, v0"); p(f"v_and_b32 v{vL}, 63, v0"); p(f"v_readfirstlane_b32 s{sw}, v{vA}")
    p("s_waitcnt lgkmcnt(0)")
    srd(p, sX, R['x'], size=2048*1280)
    srd(p, sWS, R['ws'], size=WS_SIZE)
    p(f"s_lshl_b32 s{sT0}, s2, 3"); p(f"s_add_u32 s{sT0}, s{sT0}, s{sw}"); p(f"s_mul_i32 s{sT1}, s{sT0}, 1280")
    p(f"v_lshlrev_b32 v{vA}, 2, v{vL}")
    for j in range(5): p(f"buffer_load_dword v{vx+j}, v{vA}, s[{sX}:{sX+3}], s{sT1} offen offset:{256*j}")
    p(f"s_lshl_b32 s{sT1}, s2, 9"); p(f"v_add_u32 v{vC}, s{sT1}, v0")
    p(f"s_mov_b32 s{sM}, {magic(15040, 131072)}"); p(f"v_mul_hi_u32 v{vA}, v{vC}, s{sM}")
    p(f"v_mul_u32_u24 v{vB}, 15040, v{vA}"); p(f"v_sub_u32 v{vB}, v{vC}, v{vB}")
    p(f"s_mov_b32 s{sM}, {magic(10, 15040)}"); p(f"v_mul_hi_u32 v{vD}, v{vB}, s{sM}")
    p(f"v_mul_u32_u24 v{vE}, 10, v{vD}"); p(f"v_sub_u32 v{vB}, v{vB}, v{vE}")
    p(f"v_lshlrev_b32 v{vB}, 4, v{vB}"); p(f"v_mul_u32_u24 v{vA}, 160, v{vA}"); p(f"v_add_u32 v{vB}, v{vA}, v{vB}")
    p(f"v_and_b32 v{vA}, 0xfffffff3, v{vD}")
    p(f"v_lshrrev_b32 v{vE}, 1, v{vD}"); p(f"v_and_b32 v{vE}, 4, v{vE}"); p(f"v_or_b32 v{vA}, v{vA}, v{vE}")
    p(f"v_lshlrev_b32 v{vE}, 1, v{vD}"); p(f"v_and_b32 v{vE}, 8, v{vE}"); p(f"v_or_b32 v{vA}, v{vA}, v{vE}")
    p(f"v_mul_u32_u24 v{vD}, 1280, v{vA}"); p(f"v_add_u32 v{vB}, v{vB}, v{vD}")
    srd(p, sA, R['wout'], size=864*1280)
    srd(p, sB, R['wo'], size=640*1280)
    p(f"v_mov_b32 v{vr4}, 0"); p(f"v_mov_b32 v{vr4+1}, 0"); p(f"v_mov_b32 v{vr4+2}, 0"); p(f"v_mov_b32 v{vr4+3}, 0")
    p(f"v_cmp_gt_u32 vcc, 864, v{vA}"); p(f"s_and_saveexec_b64 s[{sE}:{sE+1}], vcc")
    p(f"buffer_load_dwordx4 v[{vr4}:{vr4+3}], v{vB}, s[{sA}:{sA+3}], 0 offen")
    p(f"s_andn2_b64 exec, s[{sE}:{sE+1}], exec")
    p(f"v_subrev_u32 v{vB}, {864*1280}, v{vB}")
    p(f"buffer_load_dwordx4 v[{vr4}:{vr4+3}], v{vB}, s[{sB}:{sB+3}], 0 offen")
    p(f"s_mov_b64 exec, s[{sE}:{sE+1}]")
    sTs = S('srdT', 4); vTd = V('td', 4)
    for n_, (nm_, nbytes) in enumerate(touch):
        per = nbytes//256
        assert per % 128 == 0 or True
        srd(p, sTs, R[nm_], size=nbytes)
        p(f"s_mul_i32 s{sT0}, s2, {per}")
        p(f"v_lshlrev_b32 v{vA}, 7, v0")
        p(f"v_cmp_gt_u32 vcc, {per}, v{vA}"); p(f"s_and_saveexec_b64 s[{sE}:{sE+1}], vcc")
        p(f"buffer_load_dword v{vTd+n_}, v{vA}, s[{sTs}:{sTs+3}], s{sT0} offen")
        p(f"s_mov_b64 exec, s[{sE}:{sE+1}]")
    p(f"s_cmp_ge_u32 s2, 57"); p(f"s_cbranch_scc1 {tag}_noB1")
    p(f"s_cmp_lt_u32 s2, 27")
    p(f"s_cselect_b32 s{sA}, s{R['win']}, s{R['wqkv']}"); p(f"s_cselect_b32 s{sA+1}, s{R['win']+1}, s{R['wqkv']+1}")
    p(f"s_mov_b32 s{sM}, 3840"); p(f"s_cselect_b32 s{sSt}, 3456, s{sM}"); p(f"s_mul_i32 s{sA+2}, s{sSt}, 640"); p(f"s_mov_b32 s{sA+3}, {SRD3}")
    p(f"s_cselect_b32 s{sT0}, 0, 27"); p(f"s_sub_u32 s{sT0}, s2, s{sT0}"); p(f"s_lshl_b32 s{sT0}, s{sT0}, 7")
    p(f"s_mul_i32 s{sT1}, s{sw}, 80"); p(f"s_mul_i32 s{sT1}, s{sT1}, s{sSt}"); p(f"s_add_u32 s{sT0}, s{sT0}, s{sT1}")
    p(f"v_lshrrev_b32 v{vA}, 3, v{vL}"); p(f"v_mul_lo_u32 v{vA}, v{vA}, s{sSt}"); p(f"v_and_b32 v{vD}, 7, v{vL}"); p(f"v_lshlrev_b32 v{vD}, 4, v{vD}")
    p(f"v_add_u32 v{vA}, v{vA}, v{vD}")
    p(f"s_lshl_b32 s{sSt}, s{sSt}, 3")
    for i in range(10):
        p(f"buffer_load_dwordx4 v[{vw+4*i}:{vw+4*i+3}], v{vA}, s[{sA}:{sA+3}], s{sT0} offen")
        p(f"s_add_u32 s{sT0}, s{sT0}, s{sSt}")
    p(f"{tag}_noB1:")
    p("s_waitcnt vmcnt(0)")
    for j in range(5):
        p(f"v_and_b32 v{vx+5+j}, 0xffff0000, v{vx+j}"); p(f"v_lshlrev_b32 v{vx+j}, 16, v{vx+j}")
    p(f"v_add_f32 v{vD}, v{vx}, v{vx+1}")
    for j in range(2, 10): p(f"v_add_f32 v{vD}, v{vD}, v{vx+j}")
    dpp_sum64(p, vD, vE)
    p(f"v_mul_f32 v{vD}, {hx(f2u(1/640))}, v{vD}")
    for j in range(10): p(f"v_sub_f32 v{vx+j}, v{vx+j}, v{vD}")
    p(f"v_mul_f32 v{vA}, v{vx}, v{vx}")
    for j in range(1, 10): p(f"v_fmac_f32 v{vA}, v{vx+j}, v{vx+j}")
    dpp_sum64(p, vA, vE)
    p(f"v_mov_b32 v{vE}, {hx(f2u(1e-5))}"); p(f"v_fmac_f32 v{vE}, {hx(f2u(1/640))}, v{vA}")
    p(f"v_rsq_f32 v{vT}, v{vE}")
    p(f"v_mul_f32 v{vT+1}, v{vD}, v{vT}"); p(f"v_sub_f32 v{vT+1}, 0, v{vT+1}")
    p(f"s_lshl_b32 s{sT0}, s2, 3"); p(f"s_add_u32 s{sT0}, s{sT0}, s{sw}"); p(f"s_lshl_b32 s{sT0}, s{sT0}, 3"); p(f"s_add_u32 s{sT0}, s{sT0}, {WS_XST}")
    p(f"v_mov_b32 v{vA}, 0")
    p(f"v_cmp_eq_u32 vcc, 0, v{vL}"); p(f"s_and_saveexec_b64 s[{sE}:{sE+1}], vcc")
    p(f"buffer_store_dwordx2 v[{vT}:{vT+1}], v{vA}, s[{sWS}:{sWS+3}], s{sT0} offen")
    p(f"s_mov_b64 exec, s[{sE}:{sE+1}]")
    p(f"v_lshlrev_b32 v{vA}, 4, v{vC}")
    p(f"v_cmp_gt_u32 vcc, {120320}, v{vC}"); p(f"s_and_saveexec_b64 s[{sE}:{sE+1}], vcc")
    p(f"s_mov_b32 s{sT0}, {WS_WR}")
    p(f"buffer_store_dwordx4 v[{vr4}:{vr4+3}], v{vA}, s[{sWS}:{sWS+3}], s{sT0} offen {ssc}")
    p(f"s_mov_b64 exec, s[{sE}:{sE+1}]")
    p(f"s_cmp_ge_u32 s2, 57"); p(f"s_cbranch_scc1 {tag}_done")
    for e in range(8): p(f"v_mov_b32 v{va+e}, 0")
    for i in range(10):
        for q in range(4):
            p(f"v_lshlrev_b32 v{vA}, 16, v{vw+4*i+q}"); p(f"v_add_f32 v{va+2*q}, v{va+2*q}, v{vA}")
            p(f"v_and_b32 v{vA}, 0xffff0000, v{vw+4*i+q}"); p(f"v_add_f32 v{va+2*q+1}, v{va+2*q+1}, v{vA}")
    p(f"v_lshlrev_b32 v{vA}, 5, v0")
    p(f"ds_write_b128 v{vA}, v[{va}:{va+3}]"); p(f"ds_write_b128 v{vA}, v[{va+4}:{va+7}] offset:16")
    p("s_waitcnt lgkmcnt(0)"); p("s_barrier")
    p(f"s_cmp_lg_u32 s{sw}, 0"); p(f"s_cbranch_scc1 {tag}_done")
    p(f"v_lshrrev_b32 v{vA}, 3, v{vL}"); p(f"v_lshlrev_b32 v{vA}, 5, v{vA}"); p(f"v_and_b32 v{vD}, 7, v{vL}"); p(f"v_lshlrev_b32 v{vD}, 2, v{vD}")
    p(f"v_add_u32 v{vA}, v{vA}, v{vD}")
    p(f"v_mov_b32 v{vE}, 0")
    for w in range(8):
        for rl in range(8): p(f"ds_read_b32 v{vT+rl}, v{vA} offset:{w*2048+rl*256}")
        p("s_waitcnt lgkmcnt(0)")
        for rl in range(8): p(f"v_add_f32 v{vE}, v{vE}, v{vT+rl}")
    p(f"s_lshl_b32 s{sT0}, s2, 8"); p(f"s_add_u32 s{sT0}, s{sT0}, {WS_CS}")
    p(f"v_lshlrev_b32 v{vA}, 2, v{vL}")
    p(f"buffer_store_dword v{vE}, v{vA}, s[{sWS}:{sWS+3}], s{sT0} offen")
    p(f"{tag}_done:")
    return dict(vgpr=V.n, sgpr=S.n, lds=16384)

def emit_p3(p, D=6, bper=1, prof=False, tag="P3", sc="", ssc=""):
    NST = 24; NSY = 14
    NS = D + 1 + bper
    NB = D + 2
    S = Alloc(4, 100, 's'); V = Alloc(1, 256, 'v')
    R = prologue(p, S, V, ['x', 'out', 'ws'])
    sWS = S('srdWS', 4); sX = S('srdX', 4); sO = S('srdO', 4)
    sw = S('w'); sRt = S('rt'); sNt = S('nt'); sT0 = S('t0'); sT1 = S('t1'); sPar = S('par'); sTb = S('tb')
    sOffW = S('offW'); sOffB = S('offB'); sOffB2 = S('offB2'); sM0 = S('m0b'); sE = S('ex', 2)
    sP0 = S('p0', 2); sP1 = S('p1', 2); sP2 = S('p2', 2)
    vL = V('lane'); vA = V('a'); vB = V('b'); vC = V('c'); v16 = V('l16'); vT0 = V('tr0'); vT1 = V('tr1')
    vXo = V('xoff', 2); vX = V('xv', 8, 4); vRd = V('rd', 2)
    accy = V('accy', 20, 4); accs = V('accs', 20, 4); af = V('af', 40, 4); bf = V('bf', 4*NB, 4)
    AF = lambda i, nb: af + (i & 1)*20 + nb*4
    BF = lambda i: bf + (i % NB)*4
    if prof: prof_stamp(p, sP0)
    p(f"v_lshrrev_b32 v{vA}, 6, v0"); p(f"v_and_b32 v{vL}, 63, v0"); p(f"v_readfirstlane_b32 s{sw}, v{vA}")
    p(f"s_and_b32 s{sT0}, s2, 7"); p(f"s_lshr_b32 s{sT1}, s2, 3")
    p(f"s_lshr_b32 s{sRt}, s{sT0}, 1"); p(f"s_lshl_b32 s{sRt}, s{sRt}, 3")
    p(f"s_and_b32 s{sNt}, s{sT1}, 7"); p(f"s_add_u32 s{sRt}, s{sRt}, s{sNt}")
    p(f"s_and_b32 s{sNt}, s{sT0}, 1"); p(f"s_lshl_b32 s{sNt}, s{sNt}, 2")
    p(f"s_lshr_b32 s{sT1}, s{sT1}, 3"); p(f"s_add_u32 s{sNt}, s{sNt}, s{sT1}")
    p(f"s_and_b32 s{sTb}, s{sw}, 3"); p(f"s_lshr_b32 s{sPar}, s{sw}, 2")
    p(f"v_lshlrev_b32 v{v16}, 4, v{vL}")
    p(f"v_lshrrev_b32 v{vA}, 5, v{vL}"); p(f"v_lshlrev_b32 v{vA}, 4, v{vA}")
    p(f"v_lshrrev_b32 v{vB}, 4, v{vL}"); p(f"v_and_b32 v{vB}, 1, v{vB}"); p(f"v_lshlrev_b32 v{vB}, 2, v{vB}"); p(f"v_add_u32 v{vA}, v{vA}, v{vB}")
    p(f"v_lshrrev_b32 v{vB}, 2, v{vL}"); p(f"v_and_b32 v{vB}, 3, v{vB}"); p(f"v_add_u32 v{vA}, v{vA}, v{vB}")
    p(f"v_mul_u32_u24 v{vA}, 160, v{vA}"); p(f"v_and_b32 v{vB}, 3, v{vL}"); p(f"v_lshlrev_b32 v{vB}, 3, v{vB}"); p(f"v_add_u32 v{vA}, v{vA}, v{vB}")
    p(f"s_mul_i32 s{sT0}, s{sPar}, 5120"); p(f"v_add_u32 v{vT0}, s{sT0}, v{vA}"); p(f"v_add_u32 v{vT1}, 0x10000, v{vT0}")
    sM = S('mg')
    p(f"s_mov_b32 s{sM}, {magic(10, 1024)}")
    p(f"s_lshl_b32 s{sT0}, s{sRt}, 6"); p(f"s_mul_i32 s{sT0}, s{sT0}, 1280"); p(f"s_mul_i32 s{sT1}, s{sNt}, 160"); p(f"s_add_u32 s{sT0}, s{sT0}, s{sT1}")
    for k in range(2):
        p(f"v_add_u32 v{vC}, {512*k}, v0")
        p(f"v_mul_hi_u32 v{vA}, v{vC}, s{sM}"); p(f"v_mul_u32_u24 v{vB}, 10, v{vA}"); p(f"v_sub_u32 v{vB}, v{vC}, v{vB}")
        p(f"v_mul_u32_u24 v{vC}, 1280, v{vA}"); p(f"v_lshlrev_b32 v{vXo+k}, 4, v{vB}"); p(f"v_add_u32 v{vXo+k}, v{vXo+k}, v{vC}")
        p(f"v_add_u32 v{vXo+k}, s{sT0}, v{vXo+k}")
        p(f"v_mul_u32_u24 v{vC}, 336, v{vA}"); p(f"v_lshlrev_b32 v{vRd+k}, 5, v{vB}"); p(f"v_add_u32 v{vRd+k}, v{vRd+k}, v{vC}")
    p("s_waitcnt lgkmcnt(0)")
    srd(p, sWS, R['ws'], size=WS_SIZE)
    srd(p, sX, R['x'], size=2048*1280)
    srd(p, sO, R['out'], size=2048*1280)
    p(f"buffer_load_dwordx4 v[{vX}:{vX+3}], v{vXo}, s[{sX}:{sX+3}], 0 offen")
    p(f"s_cmp_lt_u32 s{sw}, 2"); p(f"s_cbranch_scc0 {tag}_nox2")
    p(f"buffer_load_dwordx4 v[{vX+4}:{vX+7}], v{vXo+1}, s[{sX}:{sX+3}], 0 offen")
    p(f"{tag}_nox2:")
    p(f"s_mul_i32 s{sOffW}, s{sNt}, {47*5120}"); p(f"s_mul_i32 s{sT0}, s{sw}, 1280"); p(f"s_add_u32 s{sOffW}, s{sOffW}, s{sT0}")
    p(f"s_add_u32 s{sOffW}, s{sOffW}, {WS_WR}")
    p(f"s_mov_b32 s{sM0}, s{sT0}")
    p(f"s_lshl_b32 s{sT0}, s{sRt}, 2"); p(f"s_add_u32 s{sT0}, s{sT0}, s{sTb}")
    p(f"s_mul_i32 s{sOffB}, s{sT0}, {54*512}"); p(f"s_lshl_b32 s{sT1}, s{sPar}, 10"); p(f"s_add_u32 s{sOffB}, s{sOffB}, s{sT1}"); p(f"s_add_u32 s{sOffB}, s{sOffB}, {WS_U}")
    p(f"s_mul_i32 s{sOffB2}, s{sT0}, {20*1024}"); p(f"s_add_u32 s{sOffB2}, s{sOffB2}, s{sT1}"); p(f"s_add_u32 s{sOffB2}, s{sOffB2}, {WS_O}")
    def loads(i):
        L = []
        slot = i % NS
        L.append([f"s_add_u32 m0, s{sM0}, {slot*10240}", f"buffer_load_dwordx4 v{v16}, s[{sWS}:{sWS+3}], s{sOffW} offen lds"])
        L.append([f"s_mov_b64 exec, 0xffff", f"buffer_load_dwordx4 v{v16}, s[{sWS}:{sWS+3}], s{sOffW} offen offset:1024 lds", "s_mov_b64 exec, -1",
                  f"s_add_u32 s{sOffW}, s{sOffW}, {10240 if i != NSY-1 else 5120}"])
        if i < NSY:
            L.append([f"buffer_load_dwordx4 v[{BF(i)}:{BF(i)+3}], v{v16}, s[{sWS}:{sWS+3}], s{sOffB} offen {sc}", f"s_add_u32 s{sOffB}, s{sOffB}, 2048"])
        else:
            L.append([f"buffer_load_dwordx4 v[{BF(i)}:{BF(i)+3}], v{v16}, s[{sWS}:{sWS+3}], s{sOffB2} offen {sc}", f"s_add_u32 s{sOffB2}, s{sOffB2}, 2048"])
        return L
    for i in range(D):
        for gr in loads(i):
            for l in gr: p(l)
    def mfmas(j):
        acc = accy if j < NSY else accs
        first = j in (0, NSY)
        return [f"v_mfma_f32_16x16x32_bf16 v[{acc+4*nb}:{acc+4*nb+3}], v[{AF(j,nb)}:{AF(j,nb)+3}], v[{BF(j)}:{BF(j)+3}], " + ("0" if first else f"v[{acc+4*nb}:{acc+4*nb+3}]") for nb in range(5)]
    for i in range(NST + 1):
        if i < NST:
            if i % bper == 0:
                need = min(i + bper - 1, NST - 1); last = min(i + D - 1, NST - 1)
                p(f"s_waitcnt vmcnt({min(63, 3*(last - need))})")
                p("s_barrier")
            slot = i % NS
            for nb in range(5):
                for half in range(2):
                    off = slot*10240 + half*1280 + nb*32
                    vb = vT1 if off >= 65536 else vT0
                    p(f"ds_read_b64_tr_b16 v[{AF(i,nb)+2*half}:{AF(i,nb)+2*half+1}], v{vb} offset:{off & 0xffff}")
        groups = loads(i + D) if (i + D < NST) else []
        if i >= 1:
            j = i - 1
            p(f"s_waitcnt lgkmcnt({10 if i < NST else 0})")
            if j == NSY - 1:
                p(f"s_cmp_eq_u32 s{sPar}, 1"); p(f"s_cbranch_scc1 {tag}_skipm")
            M = mfmas(j)
            for n, m in enumerate(M):
                if j != NSY - 1 and n in (0, 2, 4) and groups:
                    for l in groups.pop(0): p(l)
                p(m)
            if j == NSY - 1: p(f"{tag}_skipm:")
        for gr in groups:
            for l in gr: p(l)
    if prof: prof_stamp(p, sP1)
    p("s_barrier")
    p(f"v_and_b32 v{vA}, 15, v{vL}"); p(f"s_lshl_b32 s{sT0}, s{sTb}, 4"); p(f"v_add_u32 v{vA}, s{sT0}, v{vA}"); p(f"v_mul_u32_u24 v{vA}, 336, v{vA}")
    p(f"v_lshrrev_b32 v{vB}, 4, v{vL}"); p(f"v_lshlrev_b32 v{vB}, 4, v{vB}"); p(f"v_add_u32 v{vA}, v{vA}, v{vB}")
    p(f"s_mul_i32 s{sT0}, s{sPar}, {2*21504}"); p(f"v_add_u32 v{vA}, s{sT0}, v{vA}")
    for nb in range(5):
        p(f"ds_write_b128 v{vA}, v[{accy+4*nb}:{accy+4*nb+3}] offset:{nb*64}")
        p(f"ds_write_b128 v{vA}, v[{accs+4*nb}:{accs+4*nb+3}] offset:{21504 + nb*64}")
    p("s_waitcnt lgkmcnt(0)"); p("s_barrier")
    sNL = S('nl'); p(f"s_mov_b32 s{sNL}, {hx(f2u(-LOG2E))}")
    t = af
    def final(k):
        rd = vRd + k
        for m, (o, dst) in enumerate(((0, t), (16, t+4), (2*21504, t+8), (2*21504+16, t+12), (21504, t+16), (21504+16, t+20), (3*21504, t+24), (3*21504+16, t+28))):
            p(f"ds_read_b128 v[{dst}:{dst+3}], v{rd} offset:{o}")
        p("s_waitcnt lgkmcnt(4)")
        for e in range(8): p(f"v_add_f32 v{t+e}, v{t+e}, v{t+8+e}")
        for e in range(8): p(f"v_mul_f32 v{t+8+e}, s{sNL}, v{t+e}")
        for e in range(8): p(f"v_exp_f32 v{t+8+e}, v{t+8+e}")
        for e in range(8): p(f"v_add_f32 v{t+8+e}, 1.0, v{t+8+e}")
        for e in range(8): p(f"v_rcp_f32 v{t+8+e}, v{t+8+e}")
        for e in range(8): p(f"v_mul_f32 v{t+e}, v{t+e}, v{t+8+e}")
        p("s_waitcnt lgkmcnt(0)")
        for e in range(8): p(f"v_add_f32 v{t+16+e}, v{t+16+e}, v{t+24+e}")
        xv = vX + 4*k
        for e in range(8):
            src = xv + e//2
            p(f"v_lshlrev_b32 v{t+8+e}, 16, v{src}" if e % 2 == 0 else f"v_and_b32 v{t+8+e}, 0xffff0000, v{src}")
        for e in range(8): p(f"v_fmac_f32 v{t+8+e}, v{t+16+e}, v{t+e}")
        for e in range(0, 8, 2): p(f"v_cvt_pk_bf16_f32 v{t+32+e//2}, v{t+8+e}, v{t+8+e+1}")
        p(f"buffer_store_dwordx4 v[{t+32}:{t+35}], v{vXo+k}, s[{sO}:{sO+3}], 0 offen {ssc}")
    final(0)
    p(f"s_cmp_lt_u32 s{sw}, 2"); p(f"s_cbranch_scc0 {tag}_fin")
    final(1)
    p(f"{tag}_fin:")
    if prof:
        prof_stamp(p, sP2)
        S.names['w'] = sw
        emit_prof_store(p, R['ws'], [sP0, sP1, sP2], vA, t+16, S, region=1)
    return dict(vgpr=V.n, sgpr=S.n, lds=max(NS*10240, 4*21504))

NEGBIG = -3.0e38
def emit_att(p, tag="ATT", lds0=0, prof=False, ssc=""):
    S = Alloc(4, 100, 's'); V = Alloc(1, 256, 'v')
    R = prologue(p, S, V, ['ws'])
    sWS = S('srdWS', 4)
    sw = S('w'); sRb = S('rb'); sHp = S('hp'); sT0 = S('t0'); sT1 = S('t1'); sM = S('m'); sE = S('ex', 2); sC = S('c')
    sP0 = S('p0', 2); sP1 = S('p1', 2); sP2 = S('p2', 2)
    vL = V('lane'); vA = V('a'); vB = V('b'); vC = V('c'); vQ = V('q'); vG = V('g')
    vQa = V('qa'); vKa = V('ka'); vKb = V('kb'); vVa = V('va'); vOa = V('oa'); vOb = V('ob')
    bias = V('bias', 8, 4)
    T = []
    for par in range(2):
        T.append(dict(q=V(f'q{par}', 4, 4), kp=V(f'kp{par}', 4, 4), kc=V(f'kc{par}', 4, 4), v0=V(f'v0{par}', 4, 4), v1=V(f'v1{par}', 4, 4),
                      s=V(f's{par}', 8, 4), pb=V(f'pb{par}', 4, 4), o0=V(f'o0{par}', 4, 4), o1=V(f'o1{par}', 4, 4), m=V(f'm{par}'), t=V(f't{par}'), r=V(f'r{par}')))
    LQ = lds0; LK = LQ + 10240; LV = LK + 11520; LO = LV + 11520
    MAT = 160*2048*8
    if prof: prof_stamp(p, sP0)
    p(f"v_lshrrev_b32 v{vA}, 6, v0"); p(f"v_and_b32 v{vL}, 63, v0"); p(f"v_readfirstlane_b32 s{sw}, v{vA}")
    p(f"s_and_b32 s{sT0}, s2, 7"); p(f"s_lshr_b32 s{sT1}, s2, 3")
    p(f"s_lshl_b32 s{sRb}, s{sT0}, 1"); p(f"s_and_b32 s{sT0}, s{sT1}, 1"); p(f"s_add_u32 s{sRb}, s{sRb}, s{sT0}"); p(f"s_lshr_b32 s{sHp}, s{sT1}, 1")
    p(f"s_mov_b32 s{sM}, {magic(72, 1536)}")
    p("s_waitcnt lgkmcnt(0)")
    srd(p, sWS, R['ws'], size=WS_SIZE)
    p(f"s_mul_i32 s{sT0}, s{sHp}, {10*16384}"); p(f"s_lshl_b32 s{sT1}, s{sRb}, 10"); p(f"s_add_u32 s{sT0}, s{sT0}, s{sT1}")
    p(f"s_add_u32 s{sT1}, s{sT0}, {WS_QKV + MAT - 128}")
    p(f"s_add_u32 s{sT0}, s{sT0}, {WS_QKV}")
    sMb = S('mb'); p(f"s_lshl_b32 s{sMb}, s{sw}, 10")
    for k in range(3):
        p(f"v_add_u32 v{vC}, {512*k}, v0")
        p(f"v_mul_hi_u32 v{vA}, v{vC}, s{sM}"); p(f"v_mul_u32_u24 v{vB}, 72, v{vA}"); p(f"v_sub_u32 v{vB}, v{vC}, v{vB}")
        p(f"v_lshlrev_b32 v{vB}, 4, v{vB}")
        p(f"v_cmp_le_u32 vcc, 10, v{vA}"); p(f"v_lshlrev_b32 v{vA}, 14, v{vA}"); p(f"v_add_u32 v{vB}, v{vA}, v{vB}")
        p(f"v_add_u32 v{vA}, {MAT - 10*16384}, v{vB}"); p(f"v_cndmask_b32 v{vB}, v{vB}, v{vA}, vcc")
        p(f"s_add_u32 m0, s{sMb}, {LK + 8192*k}")
        if k == 2:
            p(f"v_cmp_gt_u32 vcc, 1440, v{vC}"); p(f"s_and_saveexec_b64 s[{sE}:{sE+1}], vcc")
            p(f"s_cbranch_execz {tag}_skipkv")
        p(f"buffer_load_dwordx4 v{vB}, s[{sWS}:{sWS+3}], s{sT1} offen lds")
        if k == 2:
            p(f"{tag}_skipkv:"); p(f"s_mov_b64 exec, s[{sE}:{sE+1}]")
    p(f"v_lshlrev_b32 v{vA}, 4, v{vL}")
    p(f"s_lshl_b32 s{sC}, s{sw}, 14"); p(f"s_add_u32 s{sC}, s{sC}, s{sT0}")
    p(f"s_add_u32 m0, s{sMb}, {LQ}")
    p(f"buffer_load_dwordx4 v{vA}, s[{sWS}:{sWS+3}], s{sC} offen lds")
    p(f"s_cmp_lt_u32 s{sw}, 2"); p(f"s_cbranch_scc0 {tag}_noq2")
    p(f"s_add_u32 s{sC}, s{sC}, {8*16384}"); p(f"s_add_u32 m0, s{sMb}, {LQ + 8192}")
    p(f"buffer_load_dwordx4 v{vA}, s[{sWS}:{sWS+3}], s{sC} offen lds")
    p(f"{tag}_noq2:")
    sHd = S('hd'); sB = S('b')
    p(f"s_lshr_b32 s{sHd}, s{sw}, 2"); p(f"s_and_b32 s{sB}, s{sw}, 3")
    p(f"v_and_b32 v{vQ}, 15, v{vL}"); p(f"v_lshrrev_b32 v{vG}, 4, v{vL}")
    p(f"s_mul_i32 s{sT0}, s{sHd}, {5*1024}"); p(f"s_lshl_b32 s{sT1}, s{sB}, 8"); p(f"s_add_u32 s{sT0}, s{sT0}, s{sT1}"); p(f"s_add_u32 s{sT0}, s{sT0}, {LQ}")
    p(f"v_lshlrev_b32 v{vA}, 10, v{vG}"); p(f"v_lshlrev_b32 v{vB}, 4, v{vQ}"); p(f"v_add_u32 v{vA}, v{vA}, v{vB}"); p(f"v_add_u32 v{vQa}, s{sT0}, v{vA}")
    p(f"s_mul_i32 s{sT0}, s{sHd}, {5*1152}"); p(f"s_lshl_b32 s{sT1}, s{sB}, 8"); p(f"s_add_u32 s{sT0}, s{sT0}, s{sT1}"); p(f"s_add_u32 s{sC}, s{sT0}, {LK - 128}")
    p(f"v_mul_u32_u24 v{vA}, 1152, v{vG}"); p(f"v_add_u32 v{vA}, v{vA}, v{vB}"); p(f"v_add_u32 v{vKa}, s{sC}, v{vA}")
    p(f"s_add_u32 s{sC}, s{sC}, {4*1152}"); p(f"v_add_u32 v{vKb}, s{sC}, v{vB}")
    p(f"s_add_u32 s{sC}, s{sT0}, {LV - 128}")
    p(f"v_and_b32 v{vA}, 3, v{vL}"); p(f"v_mul_u32_u24 v{vA}, 1152, v{vA}")
    p(f"v_lshrrev_b32 v{vB}, 2, v{vL}"); p(f"v_lshlrev_b32 v{vB}, 4, v{vB}")
    p(f"v_add_u32 v{vA}, v{vA}, v{vB}"); p(f"v_add_u32 v{vVa}, s{sC}, v{vA}")
    p(f"s_mul_i32 s{sT0}, s{sHd}, 5"); p(f"v_add_u32 v{vA}, s{sT0}, v{vG}")
    p(f"v_lshrrev_b32 v{vB}, 1, v{vA}"); p(f"v_lshlrev_b32 v{vB}, 11, v{vB}"); p(f"v_and_b32 v{vA}, 1, v{vA}"); p(f"v_lshlrev_b32 v{vA}, 3, v{vA}"); p(f"v_add_u32 v{vA}, v{vA}, v{vB}")
    p(f"v_lshlrev_b32 v{vB}, 5, v{vQ}"); p(f"v_add_u32 v{vA}, v{vA}, v{vB}")
    p(f"s_lshl_b32 s{sT1}, s{sB}, 9"); p(f"s_add_u32 s{sT1}, s{sT1}, {LO}"); p(f"v_add_u32 v{vOa}, s{sT1}, v{vA}")
    p(f"s_mul_i32 s{sT0}, s{sHd}, {2*2048+8}"); p(f"s_add_u32 s{sT0}, s{sT0}, {2*2048}"); p(f"s_add_u32 s{sT0}, s{sT0}, s{sT1}")
    p(f"v_add_u32 v{vOb}, s{sT0}, v{vB}")
    p(f"v_lshlrev_b32 v{vA}, 2, v{vG}"); p(f"v_sub_u32 v{vA}, v{vA}, v{vQ}")
    p(f"s_or_b32 s{sT0}, s{sRb}, s{sB}"); p(f"s_cmp_eq_u32 s{sT0}, 0"); p(f"s_cselect_b32 s{sT0}, 100, 9")
    p(f"v_mov_b32 v{vC}, {hx(f2u(NEGBIG))}")
    for e in range(4):
        p(f"v_add_u32 v{vB}, {e}, v{vA}")
        p(f"v_cmp_gt_i32 vcc, s{sT0}, v{vB}"); p(f"v_cndmask_b32 v{bias+e}, 0, v{vC}, vcc")
        p(f"v_add_u32 v{vB}, 7, v{vB}")
        p(f"v_cmp_lt_u32 vcc, 7, v{vB}"); p(f"v_cndmask_b32 v{bias+4+e}, 0, v{vC}, vcc")
    for t in T:
        p(f"v_mov_b32 v{t['q']+2}, 0"); p(f"v_mov_b32 v{t['q']+3}, 0")
    p(f"s_mov_b32 s{sC}, {hx(f2u(20**-0.5*LOG2E))}")
    p("s_waitcnt vmcnt(0)"); p("s_barrier")
    if prof: prof_stamp(p, sP1)
    for par, t in enumerate(T):
        o = 8*par
        p(f"ds_read_b64 v[{t['q']}:{t['q']+1}], v{vQa} offset:{o}")
        p(f"ds_read_b64 v[{t['kp']}:{t['kp']+1}], v{vKa} offset:{o}")
        p(f"ds_read_b64 v[{t['kp']+2}:{t['kp']+3}], v{vKb} offset:{o}")
        p(f"ds_read_b64 v[{t['kc']}:{t['kc']+1}], v{vKa} offset:{o+256}")
        p(f"ds_read_b64 v[{t['kc']+2}:{t['kc']+3}], v{vKb} offset:{o+256}")
        p("s_mov_b64 exec, 0xffff")
        p(f"ds_read_b64 v[{t['q']+2}:{t['q']+3}], v{vQa} offset:{o+4096}")
        p("s_mov_b64 exec, -1")
    for par, t in enumerate(T):
        o = 8*par
        p(f"ds_read_b64_tr_b16 v[{t['v0']}:{t['v0']+1}], v{vVa} offset:{o}")
        p(f"ds_read_b64_tr_b16 v[{t['v0']+2}:{t['v0']+3}], v{vVa} offset:{o+256}")
        p(f"ds_read_b64_tr_b16 v[{t['v1']}:{t['v1']+1}], v{vVa} offset:{o+4*1152}")
        p(f"ds_read_b64_tr_b16 v[{t['v1']+2}:{t['v1']+3}], v{vVa} offset:{o+4*1152+256}")
    for par, t in enumerate(T):
        p(f"s_waitcnt lgkmcnt({8 + (6 if par == 0 else 0)})")
        p(f"v_mfma_f32_16x16x32_bf16 v[{t['s']}:{t['s']+3}], v[{t['kp']}:{t['kp']+3}], v[{t['q']}:{t['q']+3}], v[{bias}:{bias+3}]")
        p(f"v_mfma_f32_16x16x32_bf16 v[{t['s']+4}:{t['s']+7}], v[{t['kc']}:{t['kc']+3}], v[{t['q']}:{t['q']+3}], v[{bias+4}:{bias+7}]")
    def both(f):
        for t in T: f(t)
    for t in T:
        s = t['s']
        p(f"v_max3_f32 v{t['m']}, v{s}, v{s+1}, v{s+2}"); p(f"v_max3_f32 v{t['m']}, v{t['m']}, v{s+3}, v{s+4}")
        p(f"v_max3_f32 v{t['m']}, v{t['m']}, v{s+5}, v{s+6}"); p(f"v_max_f32 v{t['m']}, v{t['m']}, v{s+7}")
    for sw_ in ("v_permlane16_swap_b32", "v_permlane32_swap_b32"):
        for t in T: p(f"v_mov_b32 v{t['t']}, v{t['m']}")
        for t in T: p(f"{sw_} v{t['m']}, v{t['t']}")
        for t in T: p(f"v_max_f32 v{t['m']}, v{t['m']}, v{t['t']}")
    for t in T: p(f"v_mul_f32 v{t['m']}, s{sC}, v{t['m']}")
    for e in range(8):
        for t in T: p(f"v_fma_f32 v{t['s']+e}, v{t['s']+e}, s{sC}, -v{t['m']}")
    for e in range(8):
        for t in T: p(f"v_exp_f32 v{t['s']+e}, v{t['s']+e}")
    for t in T:
        s = t['s']
        for e in range(0, 8, 2): p(f"v_cvt_pk_bf16_f32 v{t['pb']+e//2}, v{s+e}, v{s+e+1}")
    for t in T:
        s = t['s']
        p(f"v_add_f32 v{t['r']}, v{s}, v{s+1}")
        for e in range(2, 8): p(f"v_add_f32 v{t['r']}, v{t['r']}, v{s+e}")
    p("s_waitcnt lgkmcnt(0)")
    for t in T:
        p(f"v_mfma_f32_16x16x32_bf16 v[{t['o0']}:{t['o0']+3}], v[{t['v0']}:{t['v0']+3}], v[{t['pb']}:{t['pb']+3}], 0")
        p(f"v_mfma_f32_16x16x32_bf16 v[{t['o1']}:{t['o1']+3}], v[{t['v1']}:{t['v1']+3}], v[{t['pb']}:{t['pb']+3}], 0")
    for sw_ in ("v_permlane16_swap_b32", "v_permlane32_swap_b32"):
        for t in T: p(f"v_mov_b32 v{t['t']}, v{t['r']}")
        for t in T: p(f"{sw_} v{t['r']}, v{t['t']}")
        for t in T: p(f"v_add_f32 v{t['r']}, v{t['r']}, v{t['t']}")
    for t in T: p(f"v_rcp_f32 v{t['r']}, v{t['r']}")
    for t in T:
        for blk in ('o0', 'o1'):
            for e in range(4): p(f"v_mul_f32 v{t[blk]+e}, v{t[blk]+e}, v{t['r']}")
            p(f"v_cvt_pk_bf16_f32 v{t[blk]}, v{t[blk]}, v{t[blk]+1}"); p(f"v_cvt_pk_bf16_f32 v{t[blk]+1}, v{t[blk]+2}, v{t[blk]+3}")
    for par, t in enumerate(T):
        p(f"ds_write_b64 v{vOa}, v[{t['o0']}:{t['o0']+1}] offset:{16*par}")
    p("s_mov_b64 exec, 0xffff")
    for par, t in enumerate(T):
        p(f"ds_write_b64 v{vOb}, v[{t['o1']}:{t['o1']+1}] offset:{16*par}")
    p("s_mov_b64 exec, -1")
    p(f"s_mul_i32 s{sT0}, s{sHp}, 5"); p(f"s_lshl_b32 s{sT1}, s{sRb}, 3"); p(f"s_mul_i32 s{sT1}, s{sT1}, {20*1024}"); p(f"s_add_u32 s{sT1}, s{sT1}, {WS_O}")
    t = T[0]
    for k in range(2):
        a = t['kp'] + k
        p(f"v_add_u32 v{vC}, {512*k}, v0"); p(f"v_lshrrev_b32 v{vA}, 7, v{vC}"); p(f"v_add_u32 v{vA}, s{sT0}, v{vA}")
        p(f"v_lshrrev_b32 v{vB}, 2, v{vA}"); p(f"v_lshlrev_b32 v{a}, 10, v{vB}"); p(f"v_and_b32 v{vA}, 3, v{vA}"); p(f"v_lshlrev_b32 v{vA}, 8, v{vA}"); p(f"v_add_u32 v{a}, v{a}, v{vA}")
        p(f"v_and_b32 v{vA}, 15, v{vC}"); p(f"v_lshlrev_b32 v{vA}, 4, v{vA}"); p(f"v_add_u32 v{a}, v{a}, v{vA}")
        p(f"v_bfe_u32 v{vA}, v{vC}, 4, 3"); p(f"v_mul_u32_u24 v{vA}, {20*1024}, v{vA}"); p(f"v_add_u32 v{a}, v{a}, v{vA}")
    p(f"v_lshlrev_b32 v{vA}, 4, v0")
    p("s_waitcnt lgkmcnt(0)"); p("s_barrier")
    p(f"ds_read_b128 v[{t['q']}:{t['q']+3}], v{vA} offset:{LO}")
    p(f"s_cmp_lt_u32 s{sw}, 2"); p(f"s_cbranch_scc0 {tag}_o1")
    p(f"ds_read_b128 v[{t['kc']}:{t['kc']+3}], v{vA} offset:{LO+8192}")
    p("s_waitcnt lgkmcnt(0)")
    p(f"buffer_store_dwordx4 v[{t['kc']}:{t['kc']+3}], v{t['kp']+1}, s[{sWS}:{sWS+3}], s{sT1} offen {ssc}")
    p(f"{tag}_o1:")
    p("s_waitcnt lgkmcnt(0)")
    p(f"buffer_store_dwordx4 v[{t['q']}:{t['q']+3}], v{t['kp']}, s[{sWS}:{sWS+3}], s{sT1} offen {ssc}")
    if prof:
        prof_stamp(p, sP2)
        S.names['w'] = sw
        emit_prof_store(p, R['ws'], [sP0, sP1, sP2], vA, T[1]['s'], S, region=2)
    return dict(vgpr=V.n, sgpr=S.n, lds=LO + 10240)

def lay_qkv_np(qkv_u16):
    import numpy as np
    a = qkv_u16.reshape(2048, 3, 160, 4)
    return np.ascontiguousarray(a.transpose(1, 2, 0, 3))
```

```python
import sys
sys.path.insert(0, 'dev')
from build import *
import os
os.makedirs('exp', exist_ok=True)
def mk(ssc, touch, path, nf=4):
    K = [("k0_kernel", emit_k0, dict(touch=touch, ssc=ssc)),
      ("p1_kernel", emit_p1, dict(nfill2=nf, sc=ssc)),
      ("k1b_kernel", emit_k1b, dict(ssc=ssc)),
      ("att_kernel", emit_att, dict(ssc=ssc)),
      ("p2_kernel", emit_p2, dict(D=7, bper=2, ssc=ssc)),
      ("p3_kernel", emit_p3, dict(ssc=ssc))]
    build(K, path)
T1 = (('wsp', 2048*4096),)
T2 = (('wsp', 2048*4096), ('win', 640*3456), ('wqkv', 640*3840))
mk("", (), 'a.s')
mk("sc1", (), 'b.s')
mk("sc0 sc1", (), 'c.s')
mk("nt", (), 'd.s')
mk("", T1, 'e.s')
mk("", T2, 'f.s')
```

```python
import sys
sys.path.insert(0, 'dev')
from build import *
def emit_empty(p, tag="E"):
    return dict(vgpr=8, sgpr=8, lds=0)

def build2(kernels, order, path):
    txt = ""; infos = {}
    for (label, emit, kw) in kernels:
        t, info = standalone(label, emit, **kw)
        txt += t; infos[label] = info
    launches = "".join(f"; @launch kernel={l} grid=(256,1,1) block=(512,1,1) lds={infos[l]['lds']}\n" for l in order)
    open(path, 'w').write(HDR + launches + HEAD + txt)
base = [k[0] for k in V1]
K = V1 + [("e_kernel", emit_empty, {})]
import os
os.makedirs('exp', exist_ok=True)
if __name__ == "__main__": build2(V1, base, 'a.s')
if __name__ == "__main__": build2(K, base + ['e_kernel']*4, 'b.s')
if __name__ == "__main__": build2(V1, ['k0_kernel','p1_kernel','p1_kernel','k1b_kernel','att_kernel','p2_kernel','p3_kernel'], 'c.s')
if __name__ == "__main__": build2(V1, ['k0_kernel','p1_kernel','k1b_kernel','att_kernel','p2_kernel','p2_kernel','p3_kernel'], 'd.s')
if __name__ == "__main__": build2(V1, ['k0_kernel','p1_kernel','k1b_kernel','att_kernel','p2_kernel','p3_kernel','p3_kernel'], 'e.s')
if __name__ == "__main__": build2(K, ['e_kernel']*4 + base, 'f.s')
```

```python
import sys
sys.path.insert(0, 'dev')
from build import *
from build_exp1 import build2
ssc = "sc1"
K = [("k0_kernel", emit_k0, dict(ssc=ssc)),
      ("p1_kernel", emit_p1, dict(nfill2=4, sc=ssc)),
      ("k1b_kernel", emit_k1b, dict(ssc=ssc)),
      ("att_kernel", emit_att, dict(ssc=ssc)),
      ("p2_kernel", emit_p2, dict(D=7, bper=2, ssc=ssc)),
      ("p3_kernel", emit_p3, dict(ssc=ssc))]
def emit_clk(p, tag="CLK"):
    p("s_load_dwordx2 s[4:5], s[0:1], 72")
    p("s_cmp_lg_u32 s2, 0"); p("s_cbranch_scc1 CLK_done")
    p("s_memtime s[8:9]"); p("s_memrealtime s[10:11]"); p("s_waitcnt lgkmcnt(0)")
    p("s_mov_b32 s6, 2000")
    p("CLK_l:"); p("s_sub_u32 s6, s6, 1"); p("s_cmp_lg_u32 s6, 0"); p("s_cbranch_scc1 CLK_l")
    p("s_memtime s[12:13]"); p("s_memrealtime s[14:15]"); p("s_waitcnt lgkmcnt(0)")
    p("s_sub_u32 s12, s12, s8"); p("s_sub_u32 s14, s14, s10")
    p("s_mov_b32 s16, s4"); p("s_mov_b32 s17, s5"); p("s_mov_b32 s18, 256"); p("s_mov_b32 s19, 0x00020000")
    p("v_mov_b32 v1, 0"); p("v_mov_b32 v2, s12"); p("v_mov_b32 v3, s14")
    p("v_cmp_eq_u32 vcc, 0, v0"); p("s_and_saveexec_b64 s[20:21], vcc")
    p("buffer_store_dwordx2 v[2:3], v1, s[16:19], 0 offen")
    p("s_waitcnt vmcnt(0)")
    p("CLK_done:")
    return dict(vgpr=8, sgpr=24, lds=0)
o = [k[0] for k in K]
build2(K, ['k0_kernel'] + o, 'a.s')
build2(K, o[:3] + ['k1b_kernel'] + o[3:], 'b.s')
build2(K, o[:4] + ['att_kernel'] + o[4:], 'c.s')
build2(K, o + o, 'd.s')
build2(K + [("clk_kernel", emit_clk, {})], ['clk_kernel'] + o, 'e.s')
build2(K, o, 'f.s')
```

```python
from asmlib import Prog, vr, sr
from gen import *
import gen

WS_XST = 0xD00000
WS_CS  = 0xD04000
WS_ZST = 0xD10000
WS_QKV = 0x1000000
WS_WR  = 0x1800000
WS_Z2R = 0x1A00000
WS_SIZE = 0x2000000
SZ_QKV = 3*160*2048*8
SZ_WR = 8*47*5120
LOG2E = 1.4426950408889634

def magic(d, n):
    M = (2**32 + d - 1)//d
    for x in (list(range(0, min(n, 70000))) + list(range(max(0, n-70000), n))):
        assert (x*M) >> 32 == x//d, (d, x)
    return M

def prologue(p, S, V, ptrs):
    offs = dict(x=0, wqkv=8, wo=16, win=32, wsp=40, bsp=48, wout=56, out=64, dbg=72, ws=80)
    R = {}
    for n in ptrs:
        R[n] = S('p_' + n, 2)
        p(f"s_load_dwordx2 s[{R[n]}:{R[n]+1}], s[0:1], {offs[n]}")
    return R

def dpp_sum64(p, v, t):
    for d in ("quad_perm:[1,0,3,2]", "quad_perm:[2,3,0,1]", "row_half_mirror", "row_mirror"):
        p(f"v_add_f32_dpp v{v}, v{v}, v{v} {d} row_mask:0xf bank_mask:0xf")
    p(f"v_mov_b32 v{t}, v{v}"); p(f"v_permlane16_swap_b32 v{v}, v{t}"); p(f"v_add_f32 v{v}, v{v}, v{t}")
    p(f"v_mov_b32 v{t}, v{v}"); p(f"v_permlane32_swap_b32 v{v}, v{t}"); p(f"v_add_f32 v{v}, v{v}, v{t}")

def emit_k0(p, tag="K0", touch=(), ssc="", codepf=0):
    S = Alloc(4, 100, 's'); V = Alloc(1, 256, 'v')
    R = prologue(p, S, V, ['x', 'wqkv', 'wo', 'win', 'wout', 'ws', 'wsp'])
    sX = S('srdX', 4); sA = S('srdA', 4); sB = S('srdB', 4); sWS = S('srdWS', 4)
    sw = S('w'); sT0 = S('t0'); sT1 = S('t1'); sM = S('m'); sSt = S('stride'); sE = S('ex', 2)
    vL = V('lane'); vA = V('a'); vB = V('b'); vC = V('c'); vD = V('d'); vE = V('e')
    vx = V('x', 10); vr4 = V('rep', 4); vw = V('wl', 40, 4); va = V('acc', 8, 4); vT = V('t', 8, 4)
    p(f"v_lshrrev_b32 v{vA}, 6, v0"); p(f"v_and_b32 v{vL}, 63, v0"); p(f"v_readfirstlane_b32 s{sw}, v{vA}")
    p("s_waitcnt lgkmcnt(0)")
    srd(p, sX, R['x'], size=2048*1280)
    srd(p, sWS, R['ws'], size=WS_SIZE)
    p(f"s_lshl_b32 s{sT0}, s2, 3"); p(f"s_add_u32 s{sT0}, s{sT0}, s{sw}"); p(f"s_mul_i32 s{sT1}, s{sT0}, 1280")
    p(f"v_lshlrev_b32 v{vA}, 2, v{vL}")
    for j in range(5): p(f"buffer_load_dword v{vx+j}, v{vA}, s[{sX}:{sX+3}], s{sT1} offen offset:{256*j}")
    p(f"s_lshl_b32 s{sT1}, s2, 9"); p(f"v_add_u32 v{vC}, s{sT1}, v0")
    p(f"s_mov_b32 s{sM}, {magic(15040, 131072)}"); p(f"v_mul_hi_u32 v{vA}, v{vC}, s{sM}")
    p(f"v_mul_u32_u24 v{vB}, 15040, v{vA}"); p(f"v_sub_u32 v{vB}, v{vC}, v{vB}")
    p(f"s_mov_b32 s{sM}, {magic(10, 15040)}"); p(f"v_mul_hi_u32 v{vD}, v{vB}, s{sM}")
    p(f"v_mul_u32_u24 v{vE}, 10, v{vD}"); p(f"v_sub_u32 v{vB}, v{vB}, v{vE}")
    p(f"v_lshlrev_b32 v{vB}, 4, v{vB}"); p(f"v_mul_u32_u24 v{vA}, 160, v{vA}"); p(f"v_add_u32 v{vB}, v{vA}, v{vB}")
    p(f"v_and_b32 v{vA}, 0xfffffff3, v{vD}")
    p(f"v_lshrrev_b32 v{vE}, 1, v{vD}"); p(f"v_and_b32 v{vE}, 4, v{vE}"); p(f"v_or_b32 v{vA}, v{vA}, v{vE}")
    p(f"v_lshlrev_b32 v{vE}, 1, v{vD}"); p(f"v_and_b32 v{vE}, 8, v{vE}"); p(f"v_or_b32 v{vA}, v{vA}, v{vE}")
    p(f"v_mul_u32_u24 v{vD}, 1280, v{vA}"); p(f"v_add_u32 v{vB}, v{vB}, v{vD}")
    srd(p, sA, R['wout'], size=864*1280)
    srd(p, sB, R['wo'], size=640*1280)
    p(f"v_mov_b32 v{vr4}, 0"); p(f"v_mov_b32 v{vr4+1}, 0"); p(f"v_mov_b32 v{vr4+2}, 0"); p(f"v_mov_b32 v{vr4+3}, 0")
    p(f"v_cmp_gt_u32 vcc, 864, v{vA}"); p(f"s_and_saveexec_b64 s[{sE}:{sE+1}], vcc")
    p(f"buffer_load_dwordx4 v[{vr4}:{vr4+3}], v{vB}, s[{sA}:{sA+3}], 0 offen")
    p(f"s_andn2_b64 exec, s[{sE}:{sE+1}], exec")
    p(f"v_subrev_u32 v{vB}, {864*1280}, v{vB}")
    p(f"buffer_load_dwordx4 v[{vr4}:{vr4+3}], v{vB}, s[{sB}:{sB+3}], 0 offen")
    p(f"s_mov_b64 exec, s[{sE}:{sE+1}]")
    if codepf:
        sPC = S('pc', 2); vPf = V('pf')
        p(f"s_getpc_b64 s[{sPC}:{sPC+1}]")
        p(f"s_and_b32 s{sPC}, s{sPC}, 0xffffff00")
        p(f"v_lshlrev_b32 v{vA}, 7, v0")
        p(f"v_cmp_gt_u32 vcc, {codepf}, v{vA}"); p(f"s_and_saveexec_b64 s[{sE}:{sE+1}], vcc")
        p(f"global_load_dword v{vPf}, v{vA}, s[{sPC}:{sPC+1}]")
        p(f"s_mov_b64 exec, s[{sE}:{sE+1}]")
    sTs = S('srdT', 4); vTd = V('td', 4)
    for n_, (nm_, nbytes) in enumerate(touch):
        per = nbytes//256
        assert per % 128 == 0 or True
        srd(p, sTs, R[nm_], size=nbytes)
        p(f"s_mul_i32 s{sT0}, s2, {per}")
        p(f"v_lshlrev_b32 v{vA}, 7, v0")
        p(f"v_cmp_gt_u32 vcc, {per}, v{vA}"); p(f"s_and_saveexec_b64 s[{sE}:{sE+1}], vcc")
        p(f"buffer_load_dword v{vTd+n_}, v{vA}, s[{sTs}:{sTs+3}], s{sT0} offen")
        p(f"s_mov_b64 exec, s[{sE}:{sE+1}]")
    p(f"s_cmp_ge_u32 s2, 57"); p(f"s_cbranch_scc1 {tag}_noB1")
    p(f"s_cmp_lt_u32 s2, 27")
    p(f"s_cselect_b32 s{sA}, s{R['win']}, s{R['wqkv']}"); p(f"s_cselect_b32 s{sA+1}, s{R['win']+1}, s{R['wqkv']+1}")
    p(f"s_mov_b32 s{sM}, 3840"); p(f"s_cselect_b32 s{sSt}, 3456, s{sM}"); p(f"s_mul_i32 s{sA+2}, s{sSt}, 640"); p(f"s_mov_b32 s{sA+3}, {SRD3}")
    p(f"s_cselect_b32 s{sT0}, 0, 27"); p(f"s_sub_u32 s{sT0}, s2, s{sT0}"); p(f"s_lshl_b32 s{sT0}, s{sT0}, 7")
    p(f"s_mul_i32 s{sT1}, s{sw}, 80"); p(f"s_mul_i32 s{sT1}, s{sT1}, s{sSt}"); p(f"s_add_u32 s{sT0}, s{sT0}, s{sT1}")
    p(f"v_lshrrev_b32 v{vA}, 3, v{vL}"); p(f"v_mul_lo_u32 v{vA}, v{vA}, s{sSt}"); p(f"v_and_b32 v{vD}, 7, v{vL}"); p(f"v_lshlrev_b32 v{vD}, 4, v{vD}")
    p(f"v_add_u32 v{vA}, v{vA}, v{vD}")
    p(f"s_lshl_b32 s{sSt}, s{sSt}, 3")
    for i in range(10):
        p(f"buffer_load_dwordx4 v[{vw+4*i}:{vw+4*i+3}], v{vA}, s[{sA}:{sA+3}], s{sT0} offen")
        p(f"s_add_u32 s{sT0}, s{sT0}, s{sSt}")
    p(f"{tag}_noB1:")
    p("s_waitcnt vmcnt(0)")
    for j in range(5):
        p(f"v_and_b32 v{vx+5+j}, 0xffff0000, v{vx+j}"); p(f"v_lshlrev_b32 v{vx+j}, 16, v{vx+j}")
    p(f"v_add_f32 v{vD}, v{vx}, v{vx+1}")
    for j in range(2, 10): p(f"v_add_f32 v{vD}, v{vD}, v{vx+j}")
    dpp_sum64(p, vD, vE)
    p(f"v_mul_f32 v{vD}, {hx(f2u(1/640))}, v{vD}")
    for j in range(10): p(f"v_sub_f32 v{vx+j}, v{vx+j}, v{vD}")
    p(f"v_mul_f32 v{vA}, v{vx}, v{vx}")
    for j in range(1, 10): p(f"v_fmac_f32 v{vA}, v{vx+j}, v{vx+j}")
    dpp_sum64(p, vA, vE)
    p(f"v_mov_b32 v{vE}, {hx(f2u(1e-5))}"); p(f"v_fmac_f32 v{vE}, {hx(f2u(1/640))}, v{vA}")
    p(f"v_rsq_f32 v{vT}, v{vE}")
    p(f"v_mul_f32 v{vT+1}, v{vD}, v{vT}"); p(f"v_sub_f32 v{vT+1}, 0, v{vT+1}")
    p(f"s_lshl_b32 s{sT0}, s2, 3"); p(f"s_add_u32 s{sT0}, s{sT0}, s{sw}"); p(f"s_lshl_b32 s{sT0}, s{sT0}, 3"); p(f"s_add_u32 s{sT0}, s{sT0}, {WS_XST}")
    p(f"v_mov_b32 v{vA}, 0")
    p(f"v_cmp_eq_u32 vcc, 0, v{vL}"); p(f"s_and_saveexec_b64 s[{sE}:{sE+1}], vcc")
    p(f"buffer_store_dwordx2 v[{vT}:{vT+1}], v{vA}, s[{sWS}:{sWS+3}], s{sT0} offen")
    p(f"s_mov_b64 exec, s[{sE}:{sE+1}]")
    p(f"v_lshlrev_b32 v{vA}, 4, v{vC}")
    p(f"v_cmp_gt_u32 vcc, {120320}, v{vC}"); p(f"s_and_saveexec_b64 s[{sE}:{sE+1}], vcc")
    p(f"s_mov_b32 s{sT0}, {WS_WR}")
    p(f"buffer_store_dwordx4 v[{vr4}:{vr4+3}], v{vA}, s[{sWS}:{sWS+3}], s{sT0} offen {ssc}")
    p(f"s_mov_b64 exec, s[{sE}:{sE+1}]")
    p(f"s_cmp_ge_u32 s2, 57"); p(f"s_cbranch_scc1 {tag}_done")
    for e in range(8): p(f"v_mov_b32 v{va+e}, 0")
    for i in range(10):
        for q in range(4):
            p(f"v_lshlrev_b32 v{vA}, 16, v{vw+4*i+q}"); p(f"v_add_f32 v{va+2*q}, v{va+2*q}, v{vA}")
            p(f"v_and_b32 v{vA}, 0xffff0000, v{vw+4*i+q}"); p(f"v_add_f32 v{va+2*q+1}, v{va+2*q+1}, v{vA}")
    p(f"v_lshlrev_b32 v{vA}, 5, v0")
    p(f"ds_write_b128 v{vA}, v[{va}:{va+3}]"); p(f"ds_write_b128 v{vA}, v[{va+4}:{va+7}] offset:16")
    p("s_waitcnt lgkmcnt(0)"); p("s_barrier")
    p(f"s_cmp_lg_u32 s{sw}, 0"); p(f"s_cbranch_scc1 {tag}_done")
    p(f"v_lshrrev_b32 v{vA}, 3, v{vL}"); p(f"v_lshlrev_b32 v{vA}, 5, v{vA}"); p(f"v_and_b32 v{vD}, 7, v{vL}"); p(f"v_lshlrev_b32 v{vD}, 2, v{vD}")
    p(f"v_add_u32 v{vA}, v{vA}, v{vD}")
    p(f"v_mov_b32 v{vE}, 0")
    for w in range(8):
        for rl in range(8): p(f"ds_read_b32 v{vT+rl}, v{vA} offset:{w*2048+rl*256}")
        p("s_waitcnt lgkmcnt(0)")
        for rl in range(8): p(f"v_add_f32 v{vE}, v{vE}, v{vT+rl}")
    p(f"s_lshl_b32 s{sT0}, s2, 8"); p(f"s_add_u32 s{sT0}, s{sT0}, {WS_CS}")
    p(f"v_lshlrev_b32 v{vA}, 2, v{vL}")
    p(f"buffer_store_dword v{vE}, v{vA}, s[{sWS}:{sWS+3}], s{sT0} offen")
    p(f"{tag}_done:")
    return dict(vgpr=V.n, sgpr=S.n, lds=16384)

def emit_p3(p, D=6, bper=1, prof=False, tag="P3", sc="", ssc=""):
    NST = 24; NSY = 14
    NS = D + 1 + bper
    NB = D + 2
    S = Alloc(4, 100, 's'); V = Alloc(1, 256, 'v')
    R = prologue(p, S, V, ['x', 'out', 'ws'])
    sWS = S('srdWS', 4); sX = S('srdX', 4); sO = S('srdO', 4)
    sw = S('w'); sRt = S('rt'); sNt = S('nt'); sT0 = S('t0'); sT1 = S('t1'); sPar = S('par'); sTb = S('tb')
    sOffW = S('offW'); sOffB = S('offB'); sOffB2 = S('offB2'); sM0 = S('m0b'); sE = S('ex', 2)
    sP0 = S('p0', 2); sP1 = S('p1', 2); sP2 = S('p2', 2)
    vL = V('lane'); vA = V('a'); vB = V('b'); vC = V('c'); v16 = V('l16'); vT0 = V('tr0'); vT1 = V('tr1')
    vXo = V('xoff', 2); vX = V('xv', 8, 4); vRd = V('rd', 2)
    accy = V('accy', 20, 4); accs = V('accs', 20, 4); af = V('af', 40, 4); bf = V('bf', 4*NB, 4)
    AF = lambda i, nb: af + (i & 1)*20 + nb*4
    BF = lambda i: bf + (i % NB)*4
    if prof: prof_stamp(p, sP0)
    p(f"v_lshrrev_b32 v{vA}, 6, v0"); p(f"v_and_b32 v{vL}, 63, v0"); p(f"v_readfirstlane_b32 s{sw}, v{vA}")
    p(f"s_and_b32 s{sT0}, s2, 7"); p(f"s_lshr_b32 s{sT1}, s2, 3")
    p(f"s_lshr_b32 s{sRt}, s{sT0}, 1"); p(f"s_lshl_b32 s{sRt}, s{sRt}, 3")
    p(f"s_and_b32 s{sNt}, s{sT1}, 7"); p(f"s_add_u32 s{sRt}, s{sRt}, s{sNt}")
    p(f"s_and_b32 s{sNt}, s{sT0}, 1"); p(f"s_lshl_b32 s{sNt}, s{sNt}, 2")
    p(f"s_lshr_b32 s{sT1}, s{sT1}, 3"); p(f"s_add_u32 s{sNt}, s{sNt}, s{sT1}")
    p(f"s_and_b32 s{sTb}, s{sw}, 3"); p(f"s_lshr_b32 s{sPar}, s{sw}, 2")
    p(f"v_lshlrev_b32 v{v16}, 4, v{vL}")
    p(f"v_lshrrev_b32 v{vA}, 5, v{vL}"); p(f"v_lshlrev_b32 v{vA}, 4, v{vA}")
    p(f"v_lshrrev_b32 v{vB}, 4, v{vL}"); p(f"v_and_b32 v{vB}, 1, v{vB}"); p(f"v_lshlrev_b32 v{vB}, 2, v{vB}"); p(f"v_add_u32 v{vA}, v{vA}, v{vB}")
    p(f"v_lshrrev_b32 v{vB}, 2, v{vL}"); p(f"v_and_b32 v{vB}, 3, v{vB}"); p(f"v_add_u32 v{vA}, v{vA}, v{vB}")
    p(f"v_mul_u32_u24 v{vA}, 160, v{vA}"); p(f"v_and_b32 v{vB}, 3, v{vL}"); p(f"v_lshlrev_b32 v{vB}, 3, v{vB}"); p(f"v_add_u32 v{vA}, v{vA}, v{vB}")
    p(f"s_mul_i32 s{sT0}, s{sPar}, 5120"); p(f"v_add_u32 v{vT0}, s{sT0}, v{vA}"); p(f"v_add_u32 v{vT1}, 0x10000, v{vT0}")
    sM = S('mg')
    p(f"s_mov_b32 s{sM}, {magic(10, 1024)}")
    p(f"s_lshl_b32 s{sT0}, s{sRt}, 6"); p(f"s_mul_i32 s{sT0}, s{sT0}, 1280"); p(f"s_mul_i32 s{sT1}, s{sNt}, 160"); p(f"s_add_u32 s{sT0}, s{sT0}, s{sT1}")
    for k in range(2):
        p(f"v_add_u32 v{vC}, {512*k}, v0")
        p(f"v_mul_hi_u32 v{vA}, v{vC}, s{sM}"); p(f"v_mul_u32_u24 v{vB}, 10, v{vA}"); p(f"v_sub_u32 v{vB}, v{vC}, v{vB}")
        p(f"v_mul_u32_u24 v{vC}, 1280, v{vA}"); p(f"v_lshlrev_b32 v{vXo+k}, 4, v{vB}"); p(f"v_add_u32 v{vXo+k}, v{vXo+k}, v{vC}")
        p(f"v_add_u32 v{vXo+k}, s{sT0}, v{vXo+k}")
        p(f"v_mul_u32_u24 v{vC}, 336, v{vA}"); p(f"v_lshlrev_b32 v{vRd+k}, 5, v{vB}"); p(f"v_add_u32 v{vRd+k}, v{vRd+k}, v{vC}")
    p("s_waitcnt lgkmcnt(0)")
    srd(p, sWS, R['ws'], size=WS_SIZE)
    srd(p, sX, R['x'], size=2048*1280)
    srd(p, sO, R['out'], size=2048*1280)
    p(f"buffer_load_dwordx4 v[{vX}:{vX+3}], v{vXo}, s[{sX}:{sX+3}], 0 offen")
    p(f"s_cmp_lt_u32 s{sw}, 2"); p(f"s_cbranch_scc0 {tag}_nox2")
    p(f"buffer_load_dwordx4 v[{vX+4}:{vX+7}], v{vXo+1}, s[{sX}:{sX+3}], 0 offen")
    p(f"{tag}_nox2:")
    p(f"s_mul_i32 s{sOffW}, s{sNt}, {47*5120}"); p(f"s_mul_i32 s{sT0}, s{sw}, 1280"); p(f"s_add_u32 s{sOffW}, s{sOffW}, s{sT0}")
    p(f"s_add_u32 s{sOffW}, s{sOffW}, {WS_WR}")
    p(f"s_mov_b32 s{sM0}, s{sT0}")
    p(f"s_lshl_b32 s{sT0}, s{sRt}, 2"); p(f"s_add_u32 s{sT0}, s{sT0}, s{sTb}")
    p(f"s_mul_i32 s{sOffB}, s{sT0}, {54*512}"); p(f"s_lshl_b32 s{sT1}, s{sPar}, 10"); p(f"s_add_u32 s{sOffB}, s{sOffB}, s{sT1}"); p(f"s_add_u32 s{sOffB}, s{sOffB}, {WS_U}")
    p(f"s_mul_i32 s{sOffB2}, s{sT0}, {20*1024}"); p(f"s_add_u32 s{sOffB2}, s{sOffB2}, s{sT1}"); p(f"s_add_u32 s{sOffB2}, s{sOffB2}, {WS_O}")
    def loads(i):
        L = []
        slot = i % NS
        L.append([f"s_add_u32 m0, s{sM0}, {slot*10240}", f"buffer_load_dwordx4 v{v16}, s[{sWS}:{sWS+3}], s{sOffW} offen lds"])
        L.append([f"s_mov_b64 exec, 0xffff", f"buffer_load_dwordx4 v{v16}, s[{sWS}:{sWS+3}], s{sOffW} offen offset:1024 lds", "s_mov_b64 exec, -1",
                  f"s_add_u32 s{sOffW}, s{sOffW}, {10240 if i != NSY-1 else 5120}"])
        if i < NSY:
            L.append([f"buffer_load_dwordx4 v[{BF(i)}:{BF(i)+3}], v{v16}, s[{sWS}:{sWS+3}], s{sOffB} offen {sc}", f"s_add_u32 s{sOffB}, s{sOffB}, 2048"])
        else:
            L.append([f"buffer_load_dwordx4 v[{BF(i)}:{BF(i)+3}], v{v16}, s[{sWS}:{sWS+3}], s{sOffB2} offen {sc}", f"s_add_u32 s{sOffB2}, s{sOffB2}, 2048"])
        return L
    for i in range(D):
        for gr in loads(i):
            for l in gr: p(l)
    def mfmas(j):
        acc = accy if j < NSY else accs
        first = j in (0, NSY)
        return [f"v_mfma_f32_16x16x32_bf16 v[{acc+4*nb}:{acc+4*nb+3}], v[{AF(j,nb)}:{AF(j,nb)+3}], v[{BF(j)}:{BF(j)+3}], " + ("0" if first else f"v[{acc+4*nb}:{acc+4*nb+3}]") for nb in range(5)]
    for i in range(NST + 1):
        if i < NST:
            if i % bper == 0:
                need = min(i + bper - 1, NST - 1); last = min(i + D - 1, NST - 1)
                p(f"s_waitcnt vmcnt({min(63, 3*(last - need))})")
                p("s_barrier")
            slot = i % NS
            for nb in range(5):
                for half in range(2):
                    off = slot*10240 + half*1280 + nb*32
                    vb = vT1 if off >= 65536 else vT0
                    p(f"ds_read_b64_tr_b16 v[{AF(i,nb)+2*half}:{AF(i,nb)+2*half+1}], v{vb} offset:{off & 0xffff}")
        groups = loads(i + D) if (i + D < NST) else []
        if i >= 1:
            j = i - 1
            p(f"s_waitcnt lgkmcnt({10 if i < NST else 0})")
            if j == NSY - 1:
                p(f"s_cmp_eq_u32 s{sPar}, 1"); p(f"s_cbranch_scc1 {tag}_skipm")
            M = mfmas(j)
            for n, m in enumerate(M):
                if j != NSY - 1 and n in (0, 2, 4) and groups:
                    for l in groups.pop(0): p(l)
                p(m)
            if j == NSY - 1: p(f"{tag}_skipm:")
        for gr in groups:
            for l in gr: p(l)
    if prof: prof_stamp(p, sP1)
    p("s_barrier")
    p(f"v_and_b32 v{vA}, 15, v{vL}"); p(f"s_lshl_b32 s{sT0}, s{sTb}, 4"); p(f"v_add_u32 v{vA}, s{sT0}, v{vA}"); p(f"v_mul_u32_u24 v{vA}, 336, v{vA}")
    p(f"v_lshrrev_b32 v{vB}, 4, v{vL}"); p(f"v_lshlrev_b32 v{vB}, 4, v{vB}"); p(f"v_add_u32 v{vA}, v{vA}, v{vB}")
    p(f"s_mul_i32 s{sT0}, s{sPar}, {2*21504}"); p(f"v_add_u32 v{vA}, s{sT0}, v{vA}")
    for nb in range(5):
        p(f"ds_write_b128 v{vA}, v[{accy+4*nb}:{accy+4*nb+3}] offset:{nb*64}")
        p(f"ds_write_b128 v{vA}, v[{accs+4*nb}:{accs+4*nb+3}] offset:{21504 + nb*64}")
    p("s_waitcnt lgkmcnt(0)"); p("s_barrier")
    sNL = S('nl'); p(f"s_mov_b32 s{sNL}, {hx(f2u(-LOG2E))}")
    t = af
    def final(k):
        rd = vRd + k
        for m, (o, dst) in enumerate(((0, t), (16, t+4), (2*21504, t+8), (2*21504+16, t+12), (21504, t+16), (21504+16, t+20), (3*21504, t+24), (3*21504+16, t+28))):
            p(f"ds_read_b128 v[{dst}:{dst+3}], v{rd} offset:{o}")
        p("s_waitcnt lgkmcnt(4)")
        for e in range(8): p(f"v_add_f32 v{t+e}, v{t+e}, v{t+8+e}")
        for e in range(8): p(f"v_mul_f32 v{t+8+e}, s{sNL}, v{t+e}")
        for e in range(8): p(f"v_exp_f32 v{t+8+e}, v{t+8+e}")
        for e in range(8): p(f"v_add_f32 v{t+8+e}, 1.0, v{t+8+e}")
        for e in range(8): p(f"v_rcp_f32 v{t+8+e}, v{t+8+e}")
        for e in range(8): p(f"v_mul_f32 v{t+e}, v{t+e}, v{t+8+e}")
        p("s_waitcnt lgkmcnt(0)")
        for e in range(8): p(f"v_add_f32 v{t+16+e}, v{t+16+e}, v{t+24+e}")
        xv = vX + 4*k
        for e in range(8):
            src = xv + e//2
            p(f"v_lshlrev_b32 v{t+8+e}, 16, v{src}" if e % 2 == 0 else f"v_and_b32 v{t+8+e}, 0xffff0000, v{src}")
        for e in range(8): p(f"v_fmac_f32 v{t+8+e}, v{t+16+e}, v{t+e}")
        for e in range(0, 8, 2): p(f"v_cvt_pk_bf16_f32 v{t+32+e//2}, v{t+8+e}, v{t+8+e+1}")
        p(f"buffer_store_dwordx4 v[{t+32}:{t+35}], v{vXo+k}, s[{sO}:{sO+3}], 0 offen {ssc}")
    final(0)
    p(f"s_cmp_lt_u32 s{sw}, 2"); p(f"s_cbranch_scc0 {tag}_fin")
    final(1)
    p(f"{tag}_fin:")
    if prof:
        prof_stamp(p, sP2)
        S.names['w'] = sw
        emit_prof_store(p, R['ws'], [sP0, sP1, sP2], vA, t+16, S, region=1)
    return dict(vgpr=V.n, sgpr=S.n, lds=max(NS*10240, 4*21504))

NEGBIG = -3.0e38
def emit_att(p, tag="ATT", lds0=0, prof=False, ssc=""):
    S = Alloc(4, 100, 's'); V = Alloc(1, 256, 'v')
    R = prologue(p, S, V, ['ws'])
    sWS = S('srdWS', 4)
    sw = S('w'); sRb = S('rb'); sHp = S('hp'); sT0 = S('t0'); sT1 = S('t1'); sM = S('m'); sE = S('ex', 2); sC = S('c')
    sP0 = S('p0', 2); sP1 = S('p1', 2); sP2 = S('p2', 2)
    vL = V('lane'); vA = V('a'); vB = V('b'); vC = V('c'); vQ = V('q'); vG = V('g')
    vQa = V('qa'); vKa = V('ka'); vKb = V('kb'); vVa = V('va'); vOa = V('oa'); vOb = V('ob')
    bias = V('bias', 8, 4)
    T = []
    for par in range(2):
        T.append(dict(q=V(f'q{par}', 4, 4), kp=V(f'kp{par}', 4, 4), kc=V(f'kc{par}', 4, 4), v0=V(f'v0{par}', 4, 4), v1=V(f'v1{par}', 4, 4),
                      s=V(f's{par}', 8, 4), pb=V(f'pb{par}', 4, 4), o0=V(f'o0{par}', 4, 4), o1=V(f'o1{par}', 4, 4), m=V(f'm{par}'), t=V(f't{par}'), r=V(f'r{par}')))
    LQ = lds0; LK = LQ + 10240; LV = LK + 11520; LO = LV + 11520
    MAT = 160*2048*8
    if prof: prof_stamp(p, sP0)
    p(f"v_lshrrev_b32 v{vA}, 6, v0"); p(f"v_and_b32 v{vL}, 63, v0"); p(f"v_readfirstlane_b32 s{sw}, v{vA}")
    p(f"s_and_b32 s{sT0}, s2, 7"); p(f"s_lshr_b32 s{sT1}, s2, 3")
    p(f"s_lshl_b32 s{sRb}, s{sT0}, 1"); p(f"s_and_b32 s{sT0}, s{sT1}, 1"); p(f"s_add_u32 s{sRb}, s{sRb}, s{sT0}"); p(f"s_lshr_b32 s{sHp}, s{sT1}, 1")
    p(f"s_mov_b32 s{sM}, {magic(72, 1536)}")
    p("s_waitcnt lgkmcnt(0)")
    srd(p, sWS, R['ws'], size=WS_SIZE)
    p(f"s_mul_i32 s{sT0}, s{sHp}, {10*16384}"); p(f"s_lshl_b32 s{sT1}, s{sRb}, 10"); p(f"s_add_u32 s{sT0}, s{sT0}, s{sT1}")
    p(f"s_add_u32 s{sT1}, s{sT0}, {WS_QKV + MAT - 128}")
    p(f"s_add_u32 s{sT0}, s{sT0}, {WS_QKV}")
    sMb = S('mb'); p(f"s_lshl_b32 s{sMb}, s{sw}, 10")
    for k in range(3):
        p(f"v_add_u32 v{vC}, {512*k}, v0")
        p(f"v_mul_hi_u32 v{vA}, v{vC}, s{sM}"); p(f"v_mul_u32_u24 v{vB}, 72, v{vA}"); p(f"v_sub_u32 v{vB}, v{vC}, v{vB}")
        p(f"v_lshlrev_b32 v{vB}, 4, v{vB}")
        p(f"v_cmp_le_u32 vcc, 10, v{vA}"); p(f"v_lshlrev_b32 v{vA}, 14, v{vA}"); p(f"v_add_u32 v{vB}, v{vA}, v{vB}")
        p(f"v_add_u32 v{vA}, {MAT - 10*16384}, v{vB}"); p(f"v_cndmask_b32 v{vB}, v{vB}, v{vA}, vcc")
        p(f"s_add_u32 m0, s{sMb}, {LK + 8192*k}")
        if k == 2:
            p(f"v_cmp_gt_u32 vcc, 1440, v{vC}"); p(f"s_and_saveexec_b64 s[{sE}:{sE+1}], vcc")
            p(f"s_cbranch_execz {tag}_skipkv")
        p(f"buffer_load_dwordx4 v{vB}, s[{sWS}:{sWS+3}], s{sT1} offen lds")
        if k == 2:
            p(f"{tag}_skipkv:"); p(f"s_mov_b64 exec, s[{sE}:{sE+1}]")
    p(f"v_lshlrev_b32 v{vA}, 4, v{vL}")
    p(f"s_lshl_b32 s{sC}, s{sw}, 14"); p(f"s_add_u32 s{sC}, s{sC}, s{sT0}")
    p(f"s_add_u32 m0, s{sMb}, {LQ}")
    p(f"buffer_load_dwordx4 v{vA}, s[{sWS}:{sWS+3}], s{sC} offen lds")
    p(f"s_cmp_lt_u32 s{sw}, 2"); p(f"s_cbranch_scc0 {tag}_noq2")
    p(f"s_add_u32 s{sC}, s{sC}, {8*16384}"); p(f"s_add_u32 m0, s{sMb}, {LQ + 8192}")
    p(f"buffer_load_dwordx4 v{vA}, s[{sWS}:{sWS+3}], s{sC} offen lds")
    p(f"{tag}_noq2:")
    sHd = S('hd'); sB = S('b')
    p(f"s_lshr_b32 s{sHd}, s{sw}, 2"); p(f"s_and_b32 s{sB}, s{sw}, 3")
    p(f"v_and_b32 v{vQ}, 15, v{vL}"); p(f"v_lshrrev_b32 v{vG}, 4, v{vL}")
    p(f"s_mul_i32 s{sT0}, s{sHd}, {5*1024}"); p(f"s_lshl_b32 s{sT1}, s{sB}, 8"); p(f"s_add_u32 s{sT0}, s{sT0}, s{sT1}"); p(f"s_add_u32 s{sT0}, s{sT0}, {LQ}")
    p(f"v_lshlrev_b32 v{vA}, 10, v{vG}"); p(f"v_lshlrev_b32 v{vB}, 4, v{vQ}"); p(f"v_add_u32 v{vA}, v{vA}, v{vB}"); p(f"v_add_u32 v{vQa}, s{sT0}, v{vA}")
    p(f"s_mul_i32 s{sT0}, s{sHd}, {5*1152}"); p(f"s_lshl_b32 s{sT1}, s{sB}, 8"); p(f"s_add_u32 s{sT0}, s{sT0}, s{sT1}"); p(f"s_add_u32 s{sC}, s{sT0}, {LK - 128}")
    p(f"v_mul_u32_u24 v{vA}, 1152, v{vG}"); p(f"v_add_u32 v{vA}, v{vA}, v{vB}"); p(f"v_add_u32 v{vKa}, s{sC}, v{vA}")
    p(f"s_add_u32 s{sC}, s{sC}, {4*1152}"); p(f"v_add_u32 v{vKb}, s{sC}, v{vB}")
    p(f"s_add_u32 s{sC}, s{sT0}, {LV - 128}")
    p(f"v_and_b32 v{vA}, 3, v{vL}"); p(f"v_mul_u32_u24 v{vA}, 1152, v{vA}")
    p(f"v_lshrrev_b32 v{vB}, 2, v{vL}"); p(f"v_lshlrev_b32 v{vB}, 4, v{vB}")
    p(f"v_add_u32 v{vA}, v{vA}, v{vB}"); p(f"v_add_u32 v{vVa}, s{sC}, v{vA}")
    p(f"s_mul_i32 s{sT0}, s{sHd}, 5"); p(f"v_add_u32 v{vA}, s{sT0}, v{vG}")
    p(f"v_lshrrev_b32 v{vB}, 1, v{vA}"); p(f"v_lshlrev_b32 v{vB}, 11, v{vB}"); p(f"v_and_b32 v{vA}, 1, v{vA}"); p(f"v_lshlrev_b32 v{vA}, 3, v{vA}"); p(f"v_add_u32 v{vA}, v{vA}, v{vB}")
    p(f"v_lshlrev_b32 v{vB}, 5, v{vQ}"); p(f"v_add_u32 v{vA}, v{vA}, v{vB}")
    p(f"s_lshl_b32 s{sT1}, s{sB}, 9"); p(f"s_add_u32 s{sT1}, s{sT1}, {LO}"); p(f"v_add_u32 v{vOa}, s{sT1}, v{vA}")
    p(f"s_mul_i32 s{sT0}, s{sHd}, {2*2048+8}"); p(f"s_add_u32 s{sT0}, s{sT0}, {2*2048}"); p(f"s_add_u32 s{sT0}, s{sT0}, s{sT1}")
    p(f"v_add_u32 v{vOb}, s{sT0}, v{vB}")
    p(f"v_lshlrev_b32 v{vA}, 2, v{vG}"); p(f"v_sub_u32 v{vA}, v{vA}, v{vQ}")
    p(f"s_or_b32 s{sT0}, s{sRb}, s{sB}"); p(f"s_cmp_eq_u32 s{sT0}, 0"); p(f"s_cselect_b32 s{sT0}, 100, 9")
    p(f"v_mov_b32 v{vC}, {hx(f2u(NEGBIG))}")
    for e in range(4):
        p(f"v_add_u32 v{vB}, {e}, v{vA}")
        p(f"v_cmp_gt_i32 vcc, s{sT0}, v{vB}"); p(f"v_cndmask_b32 v{bias+e}, 0, v{vC}, vcc")
        p(f"v_add_u32 v{vB}, 7, v{vB}")
        p(f"v_cmp_lt_u32 vcc, 7, v{vB}"); p(f"v_cndmask_b32 v{bias+4+e}, 0, v{vC}, vcc")
    for t in T:
        p(f"v_mov_b32 v{t['q']+2}, 0"); p(f"v_mov_b32 v{t['q']+3}, 0")
    p(f"s_mov_b32 s{sC}, {hx(f2u(20**-0.5*LOG2E))}")
    p("s_waitcnt vmcnt(0)"); p("s_barrier")
    if prof: prof_stamp(p, sP1)
    for par, t in enumerate(T):
        o = 8*par
        p(f"ds_read_b64 v[{t['q']}:{t['q']+1}], v{vQa} offset:{o}")
        p(f"ds_read_b64 v[{t['kp']}:{t['kp']+1}], v{vKa} offset:{o}")
        p(f"ds_read_b64 v[{t['kp']+2}:{t['kp']+3}], v{vKb} offset:{o}")
        p(f"ds_read_b64 v[{t['kc']}:{t['kc']+1}], v{vKa} offset:{o+256}")
        p(f"ds_read_b64 v[{t['kc']+2}:{t['kc']+3}], v{vKb} offset:{o+256}")
        p("s_mov_b64 exec, 0xffff")
        p(f"ds_read_b64 v[{t['q']+2}:{t['q']+3}], v{vQa} offset:{o+4096}")
        p("s_mov_b64 exec, -1")
    for par, t in enumerate(T):
        o = 8*par
        p(f"ds_read_b64_tr_b16 v[{t['v0']}:{t['v0']+1}], v{vVa} offset:{o}")
        p(f"ds_read_b64_tr_b16 v[{t['v0']+2}:{t['v0']+3}], v{vVa} offset:{o+256}")
        p(f"ds_read_b64_tr_b16 v[{t['v1']}:{t['v1']+1}], v{vVa} offset:{o+4*1152}")
        p(f"ds_read_b64_tr_b16 v[{t['v1']+2}:{t['v1']+3}], v{vVa} offset:{o+4*1152+256}")
    for par, t in enumerate(T):
        p(f"s_waitcnt lgkmcnt({8 + (6 if par == 0 else 0)})")
        p(f"v_mfma_f32_16x16x32_bf16 v[{t['s']}:{t['s']+3}], v[{t['kp']}:{t['kp']+3}], v[{t['q']}:{t['q']+3}], v[{bias}:{bias+3}]")
        p(f"v_mfma_f32_16x16x32_bf16 v[{t['s']+4}:{t['s']+7}], v[{t['kc']}:{t['kc']+3}], v[{t['q']}:{t['q']+3}], v[{bias+4}:{bias+7}]")
    def both(f):
        for t in T: f(t)
    for t in T:
        s = t['s']
        p(f"v_max3_f32 v{t['m']}, v{s}, v{s+1}, v{s+2}"); p(f"v_max3_f32 v{t['m']}, v{t['m']}, v{s+3}, v{s+4}")
        p(f"v_max3_f32 v{t['m']}, v{t['m']}, v{s+5}, v{s+6}"); p(f"v_max_f32 v{t['m']}, v{t['m']}, v{s+7}")
    for sw_ in ("v_permlane16_swap_b32", "v_permlane32_swap_b32"):
        for t in T: p(f"v_mov_b32 v{t['t']}, v{t['m']}")
        for t in T: p(f"{sw_} v{t['m']}, v{t['t']}")
        for t in T: p(f"v_max_f32 v{t['m']}, v{t['m']}, v{t['t']}")
    for t in T: p(f"v_mul_f32 v{t['m']}, s{sC}, v{t['m']}")
    for e in range(8):
        for t in T: p(f"v_fma_f32 v{t['s']+e}, v{t['s']+e}, s{sC}, -v{t['m']}")
    for e in range(8):
        for t in T: p(f"v_exp_f32 v{t['s']+e}, v{t['s']+e}")
    for t in T:
        s = t['s']
        for e in range(0, 8, 2): p(f"v_cvt_pk_bf16_f32 v{t['pb']+e//2}, v{s+e}, v{s+e+1}")
    for t in T:
        s = t['s']
        p(f"v_add_f32 v{t['r']}, v{s}, v{s+1}")
        for e in range(2, 8): p(f"v_add_f32 v{t['r']}, v{t['r']}, v{s+e}")
    p("s_waitcnt lgkmcnt(0)")
    for t in T:
        p(f"v_mfma_f32_16x16x32_bf16 v[{t['o0']}:{t['o0']+3}], v[{t['v0']}:{t['v0']+3}], v[{t['pb']}:{t['pb']+3}], 0")
        p(f"v_mfma_f32_16x16x32_bf16 v[{t['o1']}:{t['o1']+3}], v[{t['v1']}:{t['v1']+3}], v[{t['pb']}:{t['pb']+3}], 0")
    for sw_ in ("v_permlane16_swap_b32", "v_permlane32_swap_b32"):
        for t in T: p(f"v_mov_b32 v{t['t']}, v{t['r']}")
        for t in T: p(f"{sw_} v{t['r']}, v{t['t']}")
        for t in T: p(f"v_add_f32 v{t['r']}, v{t['r']}, v{t['t']}")
    for t in T: p(f"v_rcp_f32 v{t['r']}, v{t['r']}")
    for t in T:
        for blk in ('o0', 'o1'):
            for e in range(4): p(f"v_mul_f32 v{t[blk]+e}, v{t[blk]+e}, v{t['r']}")
            p(f"v_cvt_pk_bf16_f32 v{t[blk]}, v{t[blk]}, v{t[blk]+1}"); p(f"v_cvt_pk_bf16_f32 v{t[blk]+1}, v{t[blk]+2}, v{t[blk]+3}")
    for par, t in enumerate(T):
        p(f"ds_write_b64 v{vOa}, v[{t['o0']}:{t['o0']+1}] offset:{16*par}")
    p("s_mov_b64 exec, 0xffff")
    for par, t in enumerate(T):
        p(f"ds_write_b64 v{vOb}, v[{t['o1']}:{t['o1']+1}] offset:{16*par}")
    p("s_mov_b64 exec, -1")
    p(f"s_mul_i32 s{sT0}, s{sHp}, 5"); p(f"s_lshl_b32 s{sT1}, s{sRb}, 3"); p(f"s_mul_i32 s{sT1}, s{sT1}, {20*1024}"); p(f"s_add_u32 s{sT1}, s{sT1}, {WS_O}")
    t = T[0]
    for k in range(2):
        a = t['kp'] + k
        p(f"v_add_u32 v{vC}, {512*k}, v0"); p(f"v_lshrrev_b32 v{vA}, 7, v{vC}"); p(f"v_add_u32 v{vA}, s{sT0}, v{vA}")
        p(f"v_lshrrev_b32 v{vB}, 2, v{vA}"); p(f"v_lshlrev_b32 v{a}, 10, v{vB}"); p(f"v_and_b32 v{vA}, 3, v{vA}"); p(f"v_lshlrev_b32 v{vA}, 8, v{vA}"); p(f"v_add_u32 v{a}, v{a}, v{vA}")
        p(f"v_and_b32 v{vA}, 15, v{vC}"); p(f"v_lshlrev_b32 v{vA}, 4, v{vA}"); p(f"v_add_u32 v{a}, v{a}, v{vA}")
        p(f"v_bfe_u32 v{vA}, v{vC}, 4, 3"); p(f"v_mul_u32_u24 v{vA}, {20*1024}, v{vA}"); p(f"v_add_u32 v{a}, v{a}, v{vA}")
    p(f"v_lshlrev_b32 v{vA}, 4, v0")
    p("s_waitcnt lgkmcnt(0)"); p("s_barrier")
    p(f"ds_read_b128 v[{t['q']}:{t['q']+3}], v{vA} offset:{LO}")
    p(f"s_cmp_lt_u32 s{sw}, 2"); p(f"s_cbranch_scc0 {tag}_o1")
    p(f"ds_read_b128 v[{t['kc']}:{t['kc']+3}], v{vA} offset:{LO+8192}")
    p("s_waitcnt lgkmcnt(0)")
    p(f"buffer_store_dwordx4 v[{t['kc']}:{t['kc']+3}], v{t['kp']+1}, s[{sWS}:{sWS+3}], s{sT1} offen {ssc}")
    p(f"{tag}_o1:")
    p("s_waitcnt lgkmcnt(0)")
    p(f"buffer_store_dwordx4 v[{t['q']}:{t['q']+3}], v{t['kp']}, s[{sWS}:{sWS+3}], s{sT1} offen {ssc}")
    if prof:
        prof_stamp(p, sP2)
        S.names['w'] = sw
        emit_prof_store(p, R['ws'], [sP0, sP1, sP2], vA, T[1]['s'], S, region=2)
    return dict(vgpr=V.n, sgpr=S.n, lds=LO + 10240)

def lay_qkv_np(qkv_u16):
    import numpy as np
    a = qkv_u16.reshape(2048, 3, 160, 4)
    return np.ascontiguousarray(a.transpose(1, 2, 0, 3))
```

```python
import sys
sys.path.insert(0, 'dev')
from build import *
from build_exp1 import build2, emit_empty
def mk(path, touch=(), codepf=0, pre=[], nf=4):
    ssc = "sc1"
    K = [("k0_kernel", emit_k0, dict(touch=touch, ssc=ssc, codepf=codepf)),
      ("p1_kernel", emit_p1, dict(nfill2=nf, sc=ssc)),
      ("k1b_kernel", emit_k1b, dict(ssc=ssc)),
      ("att_kernel", emit_att, dict(ssc=ssc)),
      ("p2_kernel", emit_p2, dict(D=7, bper=2, ssc=ssc)),
      ("p3_kernel", emit_p3, dict(ssc=ssc))]
    o = [k[0] for k in K]
    if pre: K = K + [("e_kernel", emit_empty, {})]
    build2(K, pre + o, path)
T2 = (('wsp', 2048*4096), ('win', 640*3456), ('wqkv', 640*3840))
mk('a.s')
mk('b.s', codepf=0x8800)
mk('c.s', codepf=0x8800, touch=T2)
mk('d.s', pre=['e_kernel'])
mk('e.s', nf=3)
mk('f.s', nf=5)
```

```python
from asmlib import Prog
from gen import *
from gen2 import *
import gen2

def emit_km(p, tag="KM", lds0=0, ssc="", kfirst=True):
    S = Alloc(4, 100, 's'); V = Alloc(1, 256, 'v')
    R = prologue(p, S, V, ['ws'])
    sWS = S('srdWS', 4)
    sw = S('w'); sRb = S('rb'); sHp = S('hp'); sT0 = S('t0'); sT1 = S('t1'); sM = S('m'); sE = S('ex', 2); sC = S('c')
    vL = V('lane'); vA = V('a'); vB = V('b'); vC = V('c'); vQ = V('q'); vG = V('g')
    vQa = V('qa'); vKa = V('ka'); vKb = V('kb'); vVa = V('va'); vOa = V('oa'); vOb = V('ob')
    bias = V('bias', 8, 4)
    T = []
    for par in range(2):
        T.append(dict(q=V(f'q{par}', 4, 4), kp=V(f'kp{par}', 4, 4), kc=V(f'kc{par}', 4, 4), v0=V(f'v0{par}', 4, 4), v1=V(f'v1{par}', 4, 4),
                      s=V(f's{par}', 8, 4), pb=V(f'pb{par}', 4, 4), o0=V(f'o0{par}', 4, 4), o1=V(f'o1{par}', 4, 4), m=V(f'm{par}'), t=V(f't{par}'), r=V(f'r{par}')))
    kS = V('kst', 2, 2); kP = V('kpart', 28, 4); kM = V('km', 16, 4); kD = V('kd', 8, 4); kO = V('ko', 2); kT = V('kt', 8, 4); kA = V('ka_'); kB = V('kb_')
    LQ = lds0; LK = LQ + 10240; LV = LK + 11520; LO = LV + 11520; LN = LO + 10240
    MAT = 160*2048*8
    p(f"v_lshrrev_b32 v{vA}, 6, v0"); p(f"v_and_b32 v{vL}, 63, v0"); p(f"v_readfirstlane_b32 s{sw}, v{vA}")
    p(f"s_and_b32 s{sT0}, s2, 7"); p(f"s_lshr_b32 s{sT1}, s2, 3")
    p(f"s_lshl_b32 s{sRb}, s{sT0}, 1"); p(f"s_and_b32 s{sT0}, s{sT1}, 1"); p(f"s_add_u32 s{sRb}, s{sRb}, s{sT0}"); p(f"s_lshr_b32 s{sHp}, s{sT1}, 1")
    p(f"s_mov_b32 s{sM}, {magic(72, 1536)}")
    sKs = S('ks'); sPt = S('pt'); sU0 = S('u0'); sU1 = S('u1'); sF = S('f', 2); sZr = S('zr'); sZn = S('zn')
    def k1b_loads():
        p(f"s_lshr_b32 s{sKs}, s2, 2"); p(f"s_and_b32 s{sPt}, s2, 3")
        p(f"s_mul_i32 s{sU0}, s{sPt}, 14"); p(f"s_add_u32 s{sU0}, s{sU0}, s{sw}")
        for k in range(2):
            p(f"s_add_u32 s{sU1}, s{sU0}, {8*k}"); p(f"s_cmp_lt_u32 s{sU1}, 54"); p(f"s_cselect_b32 s{sF}, 0, {hx(OOB)}")
            if k == 1:
                p(f"s_cmp_lt_u32 s{sw}, 6"); p(f"s_cselect_b32 s{sF}, s{sF}, {hx(OOB)}")
            p(f"s_mul_i32 s{sF+1}, s{sKs}, 54"); p(f"s_add_u32 s{sF+1}, s{sF+1}, s{sU1}"); p(f"s_lshl_b32 s{sF+1}, s{sF+1}, 10"); p(f"s_or_b32 s{sF+1}, s{sF+1}, s{sF}")
            p(f"v_lshlrev_b32 v{kA}, 4, v{vL}"); p(f"v_add_u32 v{kO+k}, s{sF+1}, v{kA}")
        p(f"s_mov_b32 s{sZr}, {WS_Z2R}"); p(f"s_mov_b32 s{sZn}, {WS_Z2N}")
        p(f"s_mul_i32 s{sU0}, s{sKs}, {27*256}"); p(f"s_add_u32 s{sU0}, s{sU0}, {WS_ZST}")
        p(f"v_and_b32 v{kA}, 31, v{vL}"); p(f"v_lshlrev_b32 v{kA}, 3, v{kA}"); p(f"v_lshrrev_b32 v{kB}, 5, v{vL}"); p(f"v_lshlrev_b32 v{kT}, 8, v{kB}"); p(f"v_add_u32 v{kA}, v{kA}, v{kT}")
        p(f"v_lshlrev_b32 v{kB}, 31, v{kB}"); p(f"v_or_b32 v{kB}, v{kA}, v{kB}")
        for i in range(14):
            src = kB if i == 13 else kA
            p(f"s_add_u32 s{sU1}, s{sU0}, {i*512}")
            p(f"buffer_load_dwordx2 v[{kP+2*i}:{kP+2*i+1}], v{src}, s[{sWS}:{sWS+3}], s{sU1} offen")
        for k in range(2): p(f"buffer_load_dwordx4 v[{kD+4*k}:{kD+4*k+3}], v{kO+k}, s[{sWS}:{sWS+3}], s{sZr} offen")
    def att_loads():
        p(f"s_mul_i32 s{sT0}, s{sHp}, {10*16384}"); p(f"s_lshl_b32 s{sT1}, s{sRb}, 10"); p(f"s_add_u32 s{sT0}, s{sT0}, s{sT1}")
        p(f"s_add_u32 s{sT1}, s{sT0}, {WS_QKV + MAT - 128}")
        p(f"s_add_u32 s{sT0}, s{sT0}, {WS_QKV}")
        sMb = S('mb'); p(f"s_lshl_b32 s{sMb}, s{sw}, 10")
        for k in range(3):
            p(f"v_add_u32 v{vC}, {512*k}, v0")
            p(f"v_mul_hi_u32 v{vA}, v{vC}, s{sM}"); p(f"v_mul_u32_u24 v{vB}, 72, v{vA}"); p(f"v_sub_u32 v{vB}, v{vC}, v{vB}")
            p(f"v_lshlrev_b32 v{vB}, 4, v{vB}")
            p(f"v_cmp_le_u32 vcc, 10, v{vA}"); p(f"v_lshlrev_b32 v{vA}, 14, v{vA}"); p(f"v_add_u32 v{vB}, v{vA}, v{vB}")
            p(f"v_add_u32 v{vA}, {MAT - 10*16384}, v{vB}"); p(f"v_cndmask_b32 v{vB}, v{vB}, v{vA}, vcc")
            p(f"s_add_u32 m0, s{sMb}, {LK + 8192*k}")
            if k == 2:
                p(f"v_cmp_gt_u32 vcc, 1440, v{vC}"); p(f"s_and_saveexec_b64 s[{sE}:{sE+1}], vcc")
                p(f"s_cbranch_execz {tag}_skipkv")
            p(f"buffer_load_dwordx4 v{vB}, s[{sWS}:{sWS+3}], s{sT1} offen lds")
            if k == 2:
                p(f"{tag}_skipkv:"); p(f"s_mov_b64 exec, s[{sE}:{sE+1}]")
        p(f"v_lshlrev_b32 v{vA}, 4, v{vL}")
        p(f"s_lshl_b32 s{sC}, s{sw}, 14"); p(f"s_add_u32 s{sC}, s{sC}, s{sT0}")
        p(f"s_add_u32 m0, s{sMb}, {LQ}")
        p(f"buffer_load_dwordx4 v{vA}, s[{sWS}:{sWS+3}], s{sC} offen lds")
        p(f"s_cmp_lt_u32 s{sw}, 2"); p(f"s_cbranch_scc0 {tag}_noq2")
        p(f"s_add_u32 s{sC}, s{sC}, {8*16384}"); p(f"s_add_u32 m0, s{sMb}, {LQ + 8192}")
        p(f"buffer_load_dwordx4 v{vA}, s[{sWS}:{sWS+3}], s{sC} offen lds")
        p(f"{tag}_noq2:")
    p("s_waitcnt lgkmcnt(0)")
    srd(p, sWS, R['ws'], size=WS_SIZE)
    if kfirst:
        k1b_loads(); att_loads()
        NATT = 3
    else:
        att_loads(); k1b_loads()
        NATT = 0
    sHd = S('hd'); sB = S('b')
    p(f"s_lshr_b32 s{sHd}, s{sw}, 2"); p(f"s_and_b32 s{sB}, s{sw}, 3")
    p(f"v_and_b32 v{vQ}, 15, v{vL}"); p(f"v_lshrrev_b32 v{vG}, 4, v{vL}")
    p(f"s_mul_i32 s{sT0}, s{sHd}, {5*1024}"); p(f"s_lshl_b32 s{sT1}, s{sB}, 8"); p(f"s_add_u32 s{sT0}, s{sT0}, s{sT1}"); p(f"s_add_u32 s{sT0}, s{sT0}, {LQ}")
    p(f"v_lshlrev_b32 v{vA}, 10, v{vG}"); p(f"v_lshlrev_b32 v{vB}, 4, v{vQ}"); p(f"v_add_u32 v{vA}, v{vA}, v{vB}"); p(f"v_add_u32 v{vQa}, s{sT0}, v{vA}")
    p(f"s_mul_i32 s{sT0}, s{sHd}, {5*1152}"); p(f"s_lshl_b32 s{sT1}, s{sB}, 8"); p(f"s_add_u32 s{sT0}, s{sT0}, s{sT1}"); p(f"s_add_u32 s{sC}, s{sT0}, {LK - 128}")
    p(f"v_mul_u32_u24 v{vA}, 1152, v{vG}"); p(f"v_add_u32 v{vA}, v{vA}, v{vB}"); p(f"v_add_u32 v{vKa}, s{sC}, v{vA}")
    p(f"s_add_u32 s{sC}, s{sC}, {4*1152}"); p(f"v_add_u32 v{vKb}, s{sC}, v{vB}")
    p(f"s_add_u32 s{sC}, s{sT0}, {LV - 128}")
    p(f"v_and_b32 v{vA}, 3, v{vL}"); p(f"v_mul_u32_u24 v{vA}, 1152, v{vA}")
    p(f"v_lshrrev_b32 v{vB}, 2, v{vL}"); p(f"v_lshlrev_b32 v{vB}, 4, v{vB}")
    p(f"v_add_u32 v{vA}, v{vA}, v{vB}"); p(f"v_add_u32 v{vVa}, s{sC}, v{vA}")
    p(f"s_mul_i32 s{sT0}, s{sHd}, 5"); p(f"v_add_u32 v{vA}, s{sT0}, v{vG}")
    p(f"v_lshrrev_b32 v{vB}, 1, v{vA}"); p(f"v_lshlrev_b32 v{vB}, 11, v{vB}"); p(f"v_and_b32 v{vA}, 1, v{vA}"); p(f"v_lshlrev_b32 v{vA}, 3, v{vA}"); p(f"v_add_u32 v{vA}, v{vA}, v{vB}")
    p(f"v_lshlrev_b32 v{vB}, 5, v{vQ}"); p(f"v_add_u32 v{vA}, v{vA}, v{vB}")
    p(f"s_lshl_b32 s{sT1}, s{sB}, 9"); p(f"s_add_u32 s{sT1}, s{sT1}, {LO}"); p(f"v_add_u32 v{vOa}, s{sT1}, v{vA}")
    p(f"s_mul_i32 s{sT0}, s{sHd}, {2*2048+8}"); p(f"s_add_u32 s{sT0}, s{sT0}, {2*2048}"); p(f"s_add_u32 s{sT0}, s{sT0}, s{sT1}")
    p(f"v_add_u32 v{vOb}, s{sT0}, v{vB}")
    p(f"v_lshlrev_b32 v{vA}, 2, v{vG}"); p(f"v_sub_u32 v{vA}, v{vA}, v{vQ}")
    p(f"s_or_b32 s{sT0}, s{sRb}, s{sB}"); p(f"s_cmp_eq_u32 s{sT0}, 0"); p(f"s_cselect_b32 s{sT0}, 100, 9")
    p(f"v_mov_b32 v{vC}, {hx(f2u(NEGBIG))}")
    for e in range(4):
        p(f"v_add_u32 v{vB}, {e}, v{vA}")
        p(f"v_cmp_gt_i32 vcc, s{sT0}, v{vB}"); p(f"v_cndmask_b32 v{bias+e}, 0, v{vC}, vcc")
        p(f"v_add_u32 v{vB}, 7, v{vB}")
        p(f"v_cmp_lt_u32 vcc, 7, v{vB}"); p(f"v_cndmask_b32 v{bias+4+e}, 0, v{vC}, vcc")
    for t in T:
        p(f"v_mov_b32 v{t['q']+2}, 0"); p(f"v_mov_b32 v{t['q']+3}, 0")
    vOo = V('oo', 2); sOo = S('oo')
    p(f"s_mul_i32 s{sT0}, s{sHp}, 5"); p(f"s_lshl_b32 s{sOo}, s{sRb}, 3"); p(f"s_mul_i32 s{sOo}, s{sOo}, {20*1024}"); p(f"s_add_u32 s{sOo}, s{sOo}, {WS_O}")
    for k in range(2):
        a = vOo + k
        p(f"v_add_u32 v{vC}, {512*k}, v0"); p(f"v_lshrrev_b32 v{vA}, 7, v{vC}"); p(f"v_add_u32 v{vA}, s{sT0}, v{vA}")
        p(f"v_lshrrev_b32 v{vB}, 2, v{vA}"); p(f"v_lshlrev_b32 v{a}, 10, v{vB}"); p(f"v_and_b32 v{vA}, 3, v{vA}"); p(f"v_lshlrev_b32 v{vA}, 8, v{vA}"); p(f"v_add_u32 v{a}, v{a}, v{vA}")
        p(f"v_and_b32 v{vA}, 15, v{vC}"); p(f"v_lshlrev_b32 v{vA}, 4, v{vA}"); p(f"v_add_u32 v{a}, v{a}, v{vA}")
        p(f"v_bfe_u32 v{vA}, v{vC}, 4, 3"); p(f"v_mul_u32_u24 v{vA}, {20*1024}, v{vA}"); p(f"v_add_u32 v{a}, v{a}, v{vA}")
    p(f"s_mov_b32 s{sC}, {hx(f2u(20**-0.5*LOG2E))}")
    base = NATT + 2 if kfirst else 2
    p(f"s_waitcnt vmcnt({base})")
    p(f"v_add_f32 v{kS}, v{kP}, v{kP+2}"); p(f"v_add_f32 v{kS+1}, v{kP+1}, v{kP+3}")
    for i in range(2, 14):
        p(f"v_add_f32 v{kS}, v{kS}, v{kP+2*i}"); p(f"v_add_f32 v{kS+1}, v{kS+1}, v{kP+2*i+1}")
    for r in range(2):
        p(f"v_mov_b32 v{kA}, v{kS+r}"); p(f"v_permlane32_swap_b32 v{kS+r}, v{kA}"); p(f"v_add_f32 v{kS+r}, v{kS+r}, v{kA}")
    p(f"v_mul_f32 v{kS}, {hx(f2u(1/864))}, v{kS}")
    p(f"v_mul_f32 v{kS+1}, {hx(f2u(1/864))}, v{kS+1}")
    p(f"v_fma_f32 v{kS+1}, -v{kS}, v{kS}, v{kS+1}")
    p(f"v_max_f32 v{kS+1}, 0, v{kS+1}")
    p(f"v_add_f32 v{kS+1}, {hx(f2u(1e-5))}, v{kS+1}"); p(f"v_rsq_f32 v{kS+1}, v{kS+1}")
    p(f"v_mul_f32 v{kS}, v{kS}, v{kS+1}"); p(f"v_sub_f32 v{kS}, 0, v{kS}")
    p(f"s_lshl_b32 s{sT0}, s{sw}, 8"); p(f"s_add_u32 s{sT0}, s{sT0}, {LN}")
    p(f"v_and_b32 v{kA}, 31, v{vL}"); p(f"v_lshlrev_b32 v{kA}, 3, v{kA}"); p(f"v_add_u32 v{kA}, s{sT0}, v{kA}")
    p(f"ds_write_b64 v{kA}, v[{kS}:{kS+1}]")
    p(f"v_lshrrev_b32 v{kA}, 4, v{vL}"); p(f"v_lshlrev_b32 v{kA}, 6, v{kA}"); p(f"v_add_u32 v{kA}, s{sT0}, v{kA}")
    p("s_waitcnt lgkmcnt(0)")
    for q in range(4): p(f"ds_read_b128 v[{kM+4*q}:{kM+4*q+3}], v{kA} offset:{16*q}")
    p(f"s_waitcnt vmcnt({NATT}) lgkmcnt(0)")
    for k in range(2):
        for e in range(8):
            src = kD + 4*k + e//2
            p(f"v_lshlrev_b32 v{kT+e}, 16, v{src}" if e % 2 == 0 else f"v_and_b32 v{kT+e}, 0xffff0000, v{src}")
        for e in range(8): p(f"v_fma_f32 v{kT+e}, v{kT+e}, v{kM+2*e+1}, v{kM+2*e}")
        for e in range(0, 8, 2): p(f"v_cvt_pk_bf16_f32 v{kD+4*k+e//2}, v{kT+e}, v{kT+e+1}")
    p("s_waitcnt vmcnt(0)"); p("s_barrier")
    for k in range(2):
        p(f"buffer_store_dwordx4 v[{kD+4*k}:{kD+4*k+3}], v{kO+k}, s[{sWS}:{sWS+3}], s{sZn} offen {ssc}")
    for par, t in enumerate(T):
        o = 8*par
        p(f"ds_read_b64 v[{t['q']}:{t['q']+1}], v{vQa} offset:{o}")
        p(f"ds_read_b64 v[{t['kp']}:{t['kp']+1}], v{vKa} offset:{o}")
        p(f"ds_read_b64 v[{t['kp']+2}:{t['kp']+3}], v{vKb} offset:{o}")
        p(f"ds_read_b64 v[{t['kc']}:{t['kc']+1}], v{vKa} offset:{o+256}")
        p(f"ds_read_b64 v[{t['kc']+2}:{t['kc']+3}], v{vKb} offset:{o+256}")
        p("s_mov_b64 exec, 0xffff")
        p(f"ds_read_b64 v[{t['q']+2}:{t['q']+3}], v{vQa} offset:{o+4096}")
        p("s_mov_b64 exec, -1")
    for par, t in enumerate(T):
        o = 8*par
        p(f"ds_read_b64_tr_b16 v[{t['v0']}:{t['v0']+1}], v{vVa} offset:{o}")
        p(f"ds_read_b64_tr_b16 v[{t['v0']+2}:{t['v0']+3}], v{vVa} offset:{o+256}")
        p(f"ds_read_b64_tr_b16 v[{t['v1']}:{t['v1']+1}], v{vVa} offset:{o+4*1152}")
        p(f"ds_read_b64_tr_b16 v[{t['v1']+2}:{t['v1']+3}], v{vVa} offset:{o+4*1152+256}")
    for par, t in enumerate(T):
        p(f"s_waitcnt lgkmcnt({8 + (6 if par == 0 else 0)})")
        p(f"v_mfma_f32_16x16x32_bf16 v[{t['s']}:{t['s']+3}], v[{t['kp']}:{t['kp']+3}], v[{t['q']}:{t['q']+3}], v[{bias}:{bias+3}]")
        p(f"v_mfma_f32_16x16x32_bf16 v[{t['s']+4}:{t['s']+7}], v[{t['kc']}:{t['kc']+3}], v[{t['q']}:{t['q']+3}], v[{bias+4}:{bias+7}]")
    for t in T:
        s = t['s']
        p(f"v_max3_f32 v{t['m']}, v{s}, v{s+1}, v{s+2}"); p(f"v_max3_f32 v{t['m']}, v{t['m']}, v{s+3}, v{s+4}")
        p(f"v_max3_f32 v{t['m']}, v{t['m']}, v{s+5}, v{s+6}"); p(f"v_max_f32 v{t['m']}, v{t['m']}, v{s+7}")
    for sw_ in ("v_permlane16_swap_b32", "v_permlane32_swap_b32"):
        for t in T: p(f"v_mov_b32 v{t['t']}, v{t['m']}")
        for t in T: p(f"{sw_} v{t['m']}, v{t['t']}")
        for t in T: p(f"v_max_f32 v{t['m']}, v{t['m']}, v{t['t']}")
    for t in T: p(f"v_mul_f32 v{t['m']}, s{sC}, v{t['m']}")
    for e in range(8):
        for t in T: p(f"v_fma_f32 v{t['s']+e}, v{t['s']+e}, s{sC}, -v{t['m']}")
    for e in range(8):
        for t in T: p(f"v_exp_f32 v{t['s']+e}, v{t['s']+e}")
    for t in T:
        s = t['s']
        for e in range(0, 8, 2): p(f"v_cvt_pk_bf16_f32 v{t['pb']+e//2}, v{s+e}, v{s+e+1}")
    for t in T:
        s = t['s']
        p(f"v_add_f32 v{t['r']}, v{s}, v{s+1}")
        for e in range(2, 8): p(f"v_add_f32 v{t['r']}, v{t['r']}, v{s+e}")
    p("s_waitcnt lgkmcnt(0)")
    for t in T:
        p(f"v_mfma_f32_16x16x32_bf16 v[{t['o0']}:{t['o0']+3}], v[{t['v0']}:{t['v0']+3}], v[{t['pb']}:{t['pb']+3}], 0")
        p(f"v_mfma_f32_16x16x32_bf16 v[{t['o1']}:{t['o1']+3}], v[{t['v1']}:{t['v1']+3}], v[{t['pb']}:{t['pb']+3}], 0")
    for sw_ in ("v_permlane16_swap_b32", "v_permlane32_swap_b32"):
        for t in T: p(f"v_mov_b32 v{t['t']}, v{t['r']}")
        for t in T: p(f"{sw_} v{t['r']}, v{t['t']}")
        for t in T: p(f"v_add_f32 v{t['r']}, v{t['r']}, v{t['t']}")
    for t in T: p(f"v_rcp_f32 v{t['r']}, v{t['r']}")
    for t in T:
        for blk in ('o0', 'o1'):
            for e in range(4): p(f"v_mul_f32 v{t[blk]+e}, v{t[blk]+e}, v{t['r']}")
            p(f"v_cvt_pk_bf16_f32 v{t[blk]}, v{t[blk]}, v{t[blk]+1}"); p(f"v_cvt_pk_bf16_f32 v{t[blk]+1}, v{t[blk]+2}, v{t[blk]+3}")
    for par, t in enumerate(T):
        p(f"ds_write_b64 v{vOa}, v[{t['o0']}:{t['o0']+1}] offset:{16*par}")
    p("s_mov_b64 exec, 0xffff")
    for par, t in enumerate(T):
        p(f"ds_write_b64 v{vOb}, v[{t['o1']}:{t['o1']+1}] offset:{16*par}")
    p("s_mov_b64 exec, -1")
    t = T[0]
    p(f"v_lshlrev_b32 v{vA}, 4, v0")
    p("s_waitcnt lgkmcnt(0)"); p("s_barrier")
    p(f"ds_read_b128 v[{t['q']}:{t['q']+3}], v{vA} offset:{LO}")
    p(f"s_cmp_lt_u32 s{sw}, 2"); p(f"s_cbranch_scc0 {tag}_o1")
    p(f"ds_read_b128 v[{t['kc']}:{t['kc']+3}], v{vA} offset:{LO+8192}")
    p("s_waitcnt lgkmcnt(0)")
    p(f"buffer_store_dwordx4 v[{t['kc']}:{t['kc']+3}], v{vOo+1}, s[{sWS}:{sWS+3}], s{sOo} offen {ssc}")
    p(f"{tag}_o1:")
    p("s_waitcnt lgkmcnt(0)")
    p(f"buffer_store_dwordx4 v[{t['q']}:{t['q']+3}], v{vOo}, s[{sWS}:{sWS+3}], s{sOo} offen {ssc}")
    return dict(vgpr=V.n, sgpr=S.n, lds=LN + 2048)
```

```python
import sys
sys.path.insert(0, 'dev')
from build import *
from build_exp1 import build2, emit_empty
from gen4 import *
ssc = "sc1"
def mk(path, km=None):
    K = [("k0_kernel", emit_k0, dict(ssc=ssc, codepf=0x8800)),
      ("p1_kernel", emit_p1, dict(nfill2=4, sc=ssc))]
    if km is None:
        K += [("k1b_kernel", emit_k1b, dict(ssc=ssc)), ("att_kernel", emit_att, dict(ssc=ssc))]
    else:
        K += [("km_kernel", emit_km, dict(ssc=ssc, **km))]
    K += [("p2_kernel", emit_p2, dict(D=7, bper=2, ssc=ssc)),
      ("p3_kernel", emit_p3, dict(ssc=ssc))]
    build2(K, [k[0] for k in K], path)
if __name__ == "__main__":
    mk('a.s'); mk('b.s')
    mk('c.s', km=dict(kfirst=True))
    mk('d.s', km=dict(kfirst=False))
```

```python
from asmlib import Prog, vr, sr
from gen import *
import gen

WS_XST = 0xD00000
WS_CS  = 0xD04000
WS_ZST = 0xD10000
WS_QKV = 0x1000000
WS_WR  = 0x1800000
WS_Z2R = 0x1A00000
WS_SIZE = 0x2000000
SZ_QKV = 3*160*2048*8
SZ_WR = 8*47*5120
LOG2E = 1.4426950408889634

def magic(d, n):
    M = (2**32 + d - 1)//d
    for x in (list(range(0, min(n, 70000))) + list(range(max(0, n-70000), n))):
        assert (x*M) >> 32 == x//d, (d, x)
    return M

def prologue(p, S, V, ptrs):
    offs = dict(x=0, wqkv=8, wo=16, win=32, wsp=40, bsp=48, wout=56, out=64, dbg=72, ws=80)
    R = {}
    for n in ptrs:
        R[n] = S('p_' + n, 2)
        p(f"s_load_dwordx2 s[{R[n]}:{R[n]+1}], s[0:1], {offs[n]}")
    return R

def dpp_sum64(p, v, t):
    for d in ("quad_perm:[1,0,3,2]", "quad_perm:[2,3,0,1]", "row_half_mirror", "row_mirror"):
        p(f"v_add_f32_dpp v{v}, v{v}, v{v} {d} row_mask:0xf bank_mask:0xf")
    p(f"v_mov_b32 v{t}, v{v}"); p(f"v_permlane16_swap_b32 v{v}, v{t}"); p(f"v_add_f32 v{v}, v{v}, v{t}")
    p(f"v_mov_b32 v{t}, v{v}"); p(f"v_permlane32_swap_b32 v{v}, v{t}"); p(f"v_add_f32 v{v}, v{v}, v{t}")

def emit_k0(p, tag="K0", touch=(), ssc="", codepf=0):
    S = Alloc(4, 100, 's'); V = Alloc(1, 256, 'v')
    R = prologue(p, S, V, ['x', 'wqkv', 'wo', 'win', 'wout', 'ws', 'wsp'])
    sX = S('srdX', 4); sA = S('srdA', 4); sB = S('srdB', 4); sWS = S('srdWS', 4)
    sw = S('w'); sT0 = S('t0'); sT1 = S('t1'); sM = S('m'); sSt = S('stride'); sE = S('ex', 2)
    vL = V('lane'); vA = V('a'); vB = V('b'); vC = V('c'); vD = V('d'); vE = V('e')
    vx = V('x', 10); vr4 = V('rep', 4); vw = V('wl', 40, 4); va = V('acc', 8, 4); vT = V('t', 8, 4)
    p(f"v_lshrrev_b32 v{vA}, 6, v0"); p(f"v_and_b32 v{vL}, 63, v0"); p(f"v_readfirstlane_b32 s{sw}, v{vA}")
    p("s_waitcnt lgkmcnt(0)")
    srd(p, sX, R['x'], size=2048*1280)
    srd(p, sWS, R['ws'], size=WS_SIZE)
    p(f"s_lshl_b32 s{sT0}, s2, 3"); p(f"s_add_u32 s{sT0}, s{sT0}, s{sw}"); p(f"s_mul_i32 s{sT1}, s{sT0}, 1280")
    p(f"v_lshlrev_b32 v{vA}, 2, v{vL}")
    for j in range(5): p(f"buffer_load_dword v{vx+j}, v{vA}, s[{sX}:{sX+3}], s{sT1} offen offset:{256*j}")
    p(f"s_lshl_b32 s{sT1}, s2, 9"); p(f"v_add_u32 v{vC}, s{sT1}, v0")
    p(f"s_mov_b32 s{sM}, {magic(15040, 131072)}"); p(f"v_mul_hi_u32 v{vA}, v{vC}, s{sM}")
    p(f"v_mul_u32_u24 v{vB}, 15040, v{vA}"); p(f"v_sub_u32 v{vB}, v{vC}, v{vB}")
    p(f"s_mov_b32 s{sM}, {magic(10, 15040)}"); p(f"v_mul_hi_u32 v{vD}, v{vB}, s{sM}")
    p(f"v_mul_u32_u24 v{vE}, 10, v{vD}"); p(f"v_sub_u32 v{vB}, v{vB}, v{vE}")
    p(f"v_lshlrev_b32 v{vB}, 4, v{vB}"); p(f"v_mul_u32_u24 v{vA}, 160, v{vA}"); p(f"v_add_u32 v{vB}, v{vA}, v{vB}")
    p(f"v_and_b32 v{vA}, 0xfffffff3, v{vD}")
    p(f"v_lshrrev_b32 v{vE}, 1, v{vD}"); p(f"v_and_b32 v{vE}, 4, v{vE}"); p(f"v_or_b32 v{vA}, v{vA}, v{vE}")
    p(f"v_lshlrev_b32 v{vE}, 1, v{vD}"); p(f"v_and_b32 v{vE}, 8, v{vE}"); p(f"v_or_b32 v{vA}, v{vA}, v{vE}")
    p(f"v_mul_u32_u24 v{vD}, 1280, v{vA}"); p(f"v_add_u32 v{vB}, v{vB}, v{vD}")
    srd(p, sA, R['wout'], size=864*1280)
    srd(p, sB, R['wo'], size=640*1280)
    p(f"v_mov_b32 v{vr4}, 0"); p(f"v_mov_b32 v{vr4+1}, 0"); p(f"v_mov_b32 v{vr4+2}, 0"); p(f"v_mov_b32 v{vr4+3}, 0")
    p(f"v_cmp_gt_u32 vcc, 864, v{vA}"); p(f"s_and_saveexec_b64 s[{sE}:{sE+1}], vcc")
    p(f"buffer_load_dwordx4 v[{vr4}:{vr4+3}], v{vB}, s[{sA}:{sA+3}], 0 offen")
    p(f"s_andn2_b64 exec, s[{sE}:{sE+1}], exec")
    p(f"v_subrev_u32 v{vB}, {864*1280}, v{vB}")
    p(f"buffer_load_dwordx4 v[{vr4}:{vr4+3}], v{vB}, s[{sB}:{sB+3}], 0 offen")
    p(f"s_mov_b64 exec, s[{sE}:{sE+1}]")
    if codepf:
        sPC = S('pc', 2); vPf = V('pf')
        p(f"s_getpc_b64 s[{sPC}:{sPC+1}]")
        p(f"s_and_b32 s{sPC}, s{sPC}, 0xffffff00")
        p(f"v_lshlrev_b32 v{vA}, 7, v0")
        p(f"v_cmp_gt_u32 vcc, {codepf}, v{vA}"); p(f"s_and_saveexec_b64 s[{sE}:{sE+1}], vcc")
        p(f"global_load_dword v{vPf}, v{vA}, s[{sPC}:{sPC+1}]")
        p(f"s_mov_b64 exec, s[{sE}:{sE+1}]")
    sTs = S('srdT', 4); vTd = V('td', 4)
    for n_, (nm_, nbytes) in enumerate(touch):
        per = nbytes//256
        assert per % 128 == 0 or True
        srd(p, sTs, R[nm_], size=nbytes)
        p(f"s_mul_i32 s{sT0}, s2, {per}")
        p(f"v_lshlrev_b32 v{vA}, 7, v0")
        p(f"v_cmp_gt_u32 vcc, {per}, v{vA}"); p(f"s_and_saveexec_b64 s[{sE}:{sE+1}], vcc")
        p(f"buffer_load_dword v{vTd+n_}, v{vA}, s[{sTs}:{sTs+3}], s{sT0} offen")
        p(f"s_mov_b64 exec, s[{sE}:{sE+1}]")
    p(f"s_cmp_ge_u32 s2, 57"); p(f"s_cbranch_scc1 {tag}_noB1")
    p(f"s_cmp_lt_u32 s2, 27")
    p(f"s_cselect_b32 s{sA}, s{R['win']}, s{R['wqkv']}"); p(f"s_cselect_b32 s{sA+1}, s{R['win']+1}, s{R['wqkv']+1}")
    p(f"s_mov_b32 s{sM}, 3840"); p(f"s_cselect_b32 s{sSt}, 3456, s{sM}"); p(f"s_mul_i32 s{sA+2}, s{sSt}, 640"); p(f"s_mov_b32 s{sA+3}, {SRD3}")
    p(f"s_cselect_b32 s{sT0}, 0, 27"); p(f"s_sub_u32 s{sT0}, s2, s{sT0}"); p(f"s_lshl_b32 s{sT0}, s{sT0}, 7")
    p(f"s_mul_i32 s{sT1}, s{sw}, 80"); p(f"s_mul_i32 s{sT1}, s{sT1}, s{sSt}"); p(f"s_add_u32 s{sT0}, s{sT0}, s{sT1}")
    p(f"v_lshrrev_b32 v{vA}, 3, v{vL}"); p(f"v_mul_lo_u32 v{vA}, v{vA}, s{sSt}"); p(f"v_and_b32 v{vD}, 7, v{vL}"); p(f"v_lshlrev_b32 v{vD}, 4, v{vD}")
    p(f"v_add_u32 v{vA}, v{vA}, v{vD}")
    p(f"s_lshl_b32 s{sSt}, s{sSt}, 3")
    for i in range(10):
        p(f"buffer_load_dwordx4 v[{vw+4*i}:{vw+4*i+3}], v{vA}, s[{sA}:{sA+3}], s{sT0} offen")
        p(f"s_add_u32 s{sT0}, s{sT0}, s{sSt}")
    p(f"{tag}_noB1:")
    p("s_waitcnt vmcnt(0)")
    for j in range(5):
        p(f"v_and_b32 v{vx+5+j}, 0xffff0000, v{vx+j}"); p(f"v_lshlrev_b32 v{vx+j}, 16, v{vx+j}")
    p(f"v_add_f32 v{vD}, v{vx}, v{vx+1}")
    for j in range(2, 10): p(f"v_add_f32 v{vD}, v{vD}, v{vx+j}")
    dpp_sum64(p, vD, vE)
    p(f"v_mul_f32 v{vD}, {hx(f2u(1/640))}, v{vD}")
    for j in range(10): p(f"v_sub_f32 v{vx+j}, v{vx+j}, v{vD}")
    p(f"v_mul_f32 v{vA}, v{vx}, v{vx}")
    for j in range(1, 10): p(f"v_fmac_f32 v{vA}, v{vx+j}, v{vx+j}")
    dpp_sum64(p, vA, vE)
    p(f"v_mov_b32 v{vE}, {hx(f2u(1e-5))}"); p(f"v_fmac_f32 v{vE}, {hx(f2u(1/640))}, v{vA}")
    p(f"v_rsq_f32 v{vT}, v{vE}")
    p(f"v_mul_f32 v{vT+1}, v{vD}, v{vT}"); p(f"v_sub_f32 v{vT+1}, 0, v{vT+1}")
    p(f"s_lshl_b32 s{sT0}, s2, 3"); p(f"s_add_u32 s{sT0}, s{sT0}, s{sw}"); p(f"s_lshl_b32 s{sT0}, s{sT0}, 3"); p(f"s_add_u32 s{sT0}, s{sT0}, {WS_XST}")
    p(f"v_mov_b32 v{vA}, 0")
    p(f"v_cmp_eq_u32 vcc, 0, v{vL}"); p(f"s_and_saveexec_b64 s[{sE}:{sE+1}], vcc")
    p(f"buffer_store_dwordx2 v[{vT}:{vT+1}], v{vA}, s[{sWS}:{sWS+3}], s{sT0} offen")
    p(f"s_mov_b64 exec, s[{sE}:{sE+1}]")
    p(f"v_lshlrev_b32 v{vA}, 4, v{vC}")
    p(f"v_cmp_gt_u32 vcc, {120320}, v{vC}"); p(f"s_and_saveexec_b64 s[{sE}:{sE+1}], vcc")
    p(f"s_mov_b32 s{sT0}, {WS_WR}")
    p(f"buffer_store_dwordx4 v[{vr4}:{vr4+3}], v{vA}, s[{sWS}:{sWS+3}], s{sT0} offen {ssc}")
    p(f"s_mov_b64 exec, s[{sE}:{sE+1}]")
    p(f"s_cmp_ge_u32 s2, 57"); p(f"s_cbranch_scc1 {tag}_done")
    for e in range(8): p(f"v_mov_b32 v{va+e}, 0")
    for i in range(10):
        for q in range(4):
            p(f"v_lshlrev_b32 v{vA}, 16, v{vw+4*i+q}"); p(f"v_add_f32 v{va+2*q}, v{va+2*q}, v{vA}")
            p(f"v_and_b32 v{vA}, 0xffff0000, v{vw+4*i+q}"); p(f"v_add_f32 v{va+2*q+1}, v{va+2*q+1}, v{vA}")
    p(f"v_lshlrev_b32 v{vA}, 5, v0")
    p(f"ds_write_b128 v{vA}, v[{va}:{va+3}]"); p(f"ds_write_b128 v{vA}, v[{va+4}:{va+7}] offset:16")
    p("s_waitcnt lgkmcnt(0)"); p("s_barrier")
    p(f"s_cmp_lg_u32 s{sw}, 0"); p(f"s_cbranch_scc1 {tag}_done")
    p(f"v_lshrrev_b32 v{vA}, 3, v{vL}"); p(f"v_lshlrev_b32 v{vA}, 5, v{vA}"); p(f"v_and_b32 v{vD}, 7, v{vL}"); p(f"v_lshlrev_b32 v{vD}, 2, v{vD}")
    p(f"v_add_u32 v{vA}, v{vA}, v{vD}")
    p(f"v_mov_b32 v{vE}, 0")
    for w in range(8):
        for rl in range(8): p(f"ds_read_b32 v{vT+rl}, v{vA} offset:{w*2048+rl*256}")
        p("s_waitcnt lgkmcnt(0)")
        for rl in range(8): p(f"v_add_f32 v{vE}, v{vE}, v{vT+rl}")
    p(f"s_lshl_b32 s{sT0}, s2, 8"); p(f"s_add_u32 s{sT0}, s{sT0}, {WS_CS}")
    p(f"v_lshlrev_b32 v{vA}, 2, v{vL}")
    p(f"buffer_store_dword v{vE}, v{vA}, s[{sWS}:{sWS+3}], s{sT0} offen")
    p(f"{tag}_done:")
    return dict(vgpr=V.n, sgpr=S.n, lds=16384)

def emit_p3(p, D=6, bper=1, prof=False, tag="P3", sc="", ssc="", fake=0):
    NST = 24; NSY = 14
    NS = D + 1 + bper
    NB = D + 2
    S = Alloc(4, 100, 's'); V = Alloc(1, 256, 'v')
    R = prologue(p, S, V, ['x', 'out', 'ws'])
    sWS = S('srdWS', 4); sX = S('srdX', 4); sO = S('srdO', 4)
    sw = S('w'); sRt = S('rt'); sNt = S('nt'); sT0 = S('t0'); sT1 = S('t1'); sPar = S('par'); sTb = S('tb')
    sOffW = S('offW'); sOffB = S('offB'); sOffB2 = S('offB2'); sM0 = S('m0b'); sE = S('ex', 2)
    sP0 = S('p0', 2); sP1 = S('p1', 2); sP2 = S('p2', 2)
    PST = []
    vL = V('lane'); vA = V('a'); vB = V('b'); vC = V('c'); v16 = V('l16'); vT0 = V('tr0'); vT1 = V('tr1')
    vXo = V('xoff', 2); vX = V('xv', 8, 4); vRd = V('rd', 2)
    accy = V('accy', 20, 4); accs = V('accs', 20, 4); af = V('af', 40, 4); bf = V('bf', 4*NB, 4)
    AF = lambda i, nb: af + (i & 1)*20 + nb*4
    BF = lambda i: bf + (i % NB)*4
    if prof: prof_stamp(p, sP0)
    p(f"v_lshrrev_b32 v{vA}, 6, v0"); p(f"v_and_b32 v{vL}, 63, v0"); p(f"v_readfirstlane_b32 s{sw}, v{vA}")
    p(f"s_and_b32 s{sT0}, s2, 7"); p(f"s_lshr_b32 s{sT1}, s2, 3")
    p(f"s_lshr_b32 s{sRt}, s{sT0}, 1"); p(f"s_lshl_b32 s{sRt}, s{sRt}, 3")
    p(f"s_and_b32 s{sNt}, s{sT1}, 7"); p(f"s_add_u32 s{sRt}, s{sRt}, s{sNt}")
    p(f"s_and_b32 s{sNt}, s{sT0}, 1"); p(f"s_lshl_b32 s{sNt}, s{sNt}, 2")
    p(f"s_lshr_b32 s{sT1}, s{sT1}, 3"); p(f"s_add_u32 s{sNt}, s{sNt}, s{sT1}")
    p(f"s_and_b32 s{sTb}, s{sw}, 3"); p(f"s_lshr_b32 s{sPar}, s{sw}, 2")
    p(f"v_lshlrev_b32 v{v16}, 4, v{vL}")
    p(f"v_lshrrev_b32 v{vA}, 5, v{vL}"); p(f"v_lshlrev_b32 v{vA}, 4, v{vA}")
    p(f"v_lshrrev_b32 v{vB}, 4, v{vL}"); p(f"v_and_b32 v{vB}, 1, v{vB}"); p(f"v_lshlrev_b32 v{vB}, 2, v{vB}"); p(f"v_add_u32 v{vA}, v{vA}, v{vB}")
    p(f"v_lshrrev_b32 v{vB}, 2, v{vL}"); p(f"v_and_b32 v{vB}, 3, v{vB}"); p(f"v_add_u32 v{vA}, v{vA}, v{vB}")
    p(f"v_mul_u32_u24 v{vA}, 160, v{vA}"); p(f"v_and_b32 v{vB}, 3, v{vL}"); p(f"v_lshlrev_b32 v{vB}, 3, v{vB}"); p(f"v_add_u32 v{vA}, v{vA}, v{vB}")
    p(f"s_mul_i32 s{sT0}, s{sPar}, 5120"); p(f"v_add_u32 v{vT0}, s{sT0}, v{vA}"); p(f"v_add_u32 v{vT1}, 0x10000, v{vT0}")
    if fake == 1:
        vFk0 = V('fk0'); vFk1 = V('fk1')
        p(f"s_mul_i32 s{sT0}, s{sPar}, 5120"); p(f"v_add_u32 v{vFk0}, s{sT0}, v{v16}"); p(f"v_add_u32 v{vFk1}, 0x10000, v{vFk0}")
    sM = S('mg')
    p(f"s_mov_b32 s{sM}, {magic(10, 1024)}")
    p(f"s_lshl_b32 s{sT0}, s{sRt}, 6"); p(f"s_mul_i32 s{sT0}, s{sT0}, 1280"); p(f"s_mul_i32 s{sT1}, s{sNt}, 160"); p(f"s_add_u32 s{sT0}, s{sT0}, s{sT1}")
    for k in range(2):
        p(f"v_add_u32 v{vC}, {512*k}, v0")
        p(f"v_mul_hi_u32 v{vA}, v{vC}, s{sM}"); p(f"v_mul_u32_u24 v{vB}, 10, v{vA}"); p(f"v_sub_u32 v{vB}, v{vC}, v{vB}")
        p(f"v_mul_u32_u24 v{vC}, 1280, v{vA}"); p(f"v_lshlrev_b32 v{vXo+k}, 4, v{vB}"); p(f"v_add_u32 v{vXo+k}, v{vXo+k}, v{vC}")
        p(f"v_add_u32 v{vXo+k}, s{sT0}, v{vXo+k}")
        p(f"v_mul_u32_u24 v{vC}, 336, v{vA}"); p(f"v_lshlrev_b32 v{vRd+k}, 5, v{vB}"); p(f"v_add_u32 v{vRd+k}, v{vRd+k}, v{vC}")
    p("s_waitcnt lgkmcnt(0)")
    srd(p, sWS, R['ws'], size=WS_SIZE)
    srd(p, sX, R['x'], size=2048*1280)
    srd(p, sO, R['out'], size=2048*1280)
    p(f"buffer_load_dwordx4 v[{vX}:{vX+3}], v{vXo}, s[{sX}:{sX+3}], 0 offen")
    p(f"s_cmp_lt_u32 s{sw}, 2"); p(f"s_cbranch_scc0 {tag}_nox2")
    p(f"buffer_load_dwordx4 v[{vX+4}:{vX+7}], v{vXo+1}, s[{sX}:{sX+3}], 0 offen")
    p(f"{tag}_nox2:")
    p(f"s_mul_i32 s{sOffW}, s{sNt}, {47*5120}"); p(f"s_mul_i32 s{sT0}, s{sw}, 1280"); p(f"s_add_u32 s{sOffW}, s{sOffW}, s{sT0}")
    p(f"s_add_u32 s{sOffW}, s{sOffW}, {WS_WR}")
    p(f"s_mov_b32 s{sM0}, s{sT0}")
    p(f"s_lshl_b32 s{sT0}, s{sRt}, 2"); p(f"s_add_u32 s{sT0}, s{sT0}, s{sTb}")
    p(f"s_mul_i32 s{sOffB}, s{sT0}, {54*512}"); p(f"s_lshl_b32 s{sT1}, s{sPar}, 10"); p(f"s_add_u32 s{sOffB}, s{sOffB}, s{sT1}"); p(f"s_add_u32 s{sOffB}, s{sOffB}, {WS_U}")
    p(f"s_mul_i32 s{sOffB2}, s{sT0}, {20*1024}"); p(f"s_add_u32 s{sOffB2}, s{sOffB2}, s{sT1}"); p(f"s_add_u32 s{sOffB2}, s{sOffB2}, {WS_O}")
    def loads(i):
        L = []
        slot = i % NS
        L.append([f"s_add_u32 m0, s{sM0}, {slot*10240}", f"buffer_load_dwordx4 v{v16}, s[{sWS}:{sWS+3}], s{sOffW} offen lds"])
        L.append([f"s_mov_b64 exec, 0xffff", f"buffer_load_dwordx4 v{v16}, s[{sWS}:{sWS+3}], s{sOffW} offen offset:1024 lds", "s_mov_b64 exec, -1",
                  f"s_add_u32 s{sOffW}, s{sOffW}, {10240 if i != NSY-1 else 5120}"])
        if i < NSY:
            L.append([f"buffer_load_dwordx4 v[{BF(i)}:{BF(i)+3}], v{v16}, s[{sWS}:{sWS+3}], s{sOffB} offen {sc}", f"s_add_u32 s{sOffB}, s{sOffB}, 2048"])
        else:
            L.append([f"buffer_load_dwordx4 v[{BF(i)}:{BF(i)+3}], v{v16}, s[{sWS}:{sWS+3}], s{sOffB2} offen {sc}", f"s_add_u32 s{sOffB2}, s{sOffB2}, 2048"])
        return L
    if prof:
        r_ = S('psk', 2); PST.append(r_); prof_stamp(p, r_)
    for i in range(D):
        for gr in loads(i):
            for l in gr: p(l)
    if prof:
        r_ = S('psl', 2); PST.append(r_); prof_stamp(p, r_)
    def mfmas(j):
        acc = accy if j < NSY else accs
        first = j in (0, NSY)
        return [f"v_mfma_f32_16x16x32_bf16 v[{acc+4*nb}:{acc+4*nb+3}], v[{AF(j,nb)}:{AF(j,nb)+3}], v[{BF(j)}:{BF(j)+3}], " + ("0" if first else f"v[{acc+4*nb}:{acc+4*nb+3}]") for nb in range(5)]
    for i in range(NST + 1):
        if i < NST:
            if i % bper == 0:
                need = min(i + bper - 1, NST - 1); last = min(i + D - 1, NST - 1)
                p(f"s_waitcnt vmcnt({min(63, 3*(last - need))})")
                p("s_barrier")
                if prof and i in (0, 1, 4, 8, 12, 16, 20, 23):
                    r_ = S(f'ps{i}', 2); PST.append(r_); prof_stamp(p, r_)
            slot = i % NS
            for nb in range(5 if fake == 1 else 0):
                off = slot*10240 + nb*1024
                vb = vFk1 if off >= 65536 else vFk0
                p(f"ds_read_b128 v[{AF(i,nb)}:{AF(i,nb)+3}], v{vb} offset:{off & 0xffff}")
            for nb in range(5 if fake in (0, 3) else 0):
                for half in range(2 if fake == 0 else 1):
                    off = slot*10240 + half*1280 + nb*32
                    vb = vT1 if off >= 65536 else vT0
                    p(f"ds_read_b64_tr_b16 v[{AF(i,nb)+2*half}:{AF(i,nb)+2*half+1}], v{vb} offset:{off & 0xffff}")
        groups = loads(i + D) if (i + D < NST) else []
        if i >= 1:
            j = i - 1
            p(f"s_waitcnt lgkmcnt({({0:10,1:5,2:0,3:5}[fake]) if i < NST else 0})")
            if j == NSY - 1:
                p(f"s_cmp_eq_u32 s{sPar}, 1"); p(f"s_cbranch_scc1 {tag}_skipm")
            M = mfmas(j)
            for n, m in enumerate(M):
                if j != NSY - 1 and n in (0, 2, 4) and groups:
                    for l in groups.pop(0): p(l)
                p(m)
            if j == NSY - 1: p(f"{tag}_skipm:")
        for gr in groups:
            for l in gr: p(l)
    if prof: prof_stamp(p, sP1)
    p("s_barrier")
    p(f"v_and_b32 v{vA}, 15, v{vL}"); p(f"s_lshl_b32 s{sT0}, s{sTb}, 4"); p(f"v_add_u32 v{vA}, s{sT0}, v{vA}"); p(f"v_mul_u32_u24 v{vA}, 336, v{vA}")
    p(f"v_lshrrev_b32 v{vB}, 4, v{vL}"); p(f"v_lshlrev_b32 v{vB}, 4, v{vB}"); p(f"v_add_u32 v{vA}, v{vA}, v{vB}")
    p(f"s_mul_i32 s{sT0}, s{sPar}, {2*21504}"); p(f"v_add_u32 v{vA}, s{sT0}, v{vA}")
    for nb in range(5):
        p(f"ds_write_b128 v{vA}, v[{accy+4*nb}:{accy+4*nb+3}] offset:{nb*64}")
        p(f"ds_write_b128 v{vA}, v[{accs+4*nb}:{accs+4*nb+3}] offset:{21504 + nb*64}")
    p("s_waitcnt lgkmcnt(0)"); p("s_barrier")
    sNL = S('nl'); p(f"s_mov_b32 s{sNL}, {hx(f2u(-LOG2E))}")
    t = af
    def final(k):
        rd = vRd + k
        for m, (o, dst) in enumerate(((0, t), (16, t+4), (2*21504, t+8), (2*21504+16, t+12), (21504, t+16), (21504+16, t+20), (3*21504, t+24), (3*21504+16, t+28))):
            p(f"ds_read_b128 v[{dst}:{dst+3}], v{rd} offset:{o}")
        p("s_waitcnt lgkmcnt(4)")
        for e in range(8): p(f"v_add_f32 v{t+e}, v{t+e}, v{t+8+e}")
        for e in range(8): p(f"v_mul_f32 v{t+8+e}, s{sNL}, v{t+e}")
        for e in range(8): p(f"v_exp_f32 v{t+8+e}, v{t+8+e}")
        for e in range(8): p(f"v_add_f32 v{t+8+e}, 1.0, v{t+8+e}")
        for e in range(8): p(f"v_rcp_f32 v{t+8+e}, v{t+8+e}")
        for e in range(8): p(f"v_mul_f32 v{t+e}, v{t+e}, v{t+8+e}")
        p("s_waitcnt lgkmcnt(0)")
        for e in range(8): p(f"v_add_f32 v{t+16+e}, v{t+16+e}, v{t+24+e}")
        xv = vX + 4*k
        for e in range(8):
            src = xv + e//2
            p(f"v_lshlrev_b32 v{t+8+e}, 16, v{src}" if e % 2 == 0 else f"v_and_b32 v{t+8+e}, 0xffff0000, v{src}")
        for e in range(8): p(f"v_fmac_f32 v{t+8+e}, v{t+16+e}, v{t+e}")
        for e in range(0, 8, 2): p(f"v_cvt_pk_bf16_f32 v{t+32+e//2}, v{t+8+e}, v{t+8+e+1}")
        p(f"buffer_store_dwordx4 v[{t+32}:{t+35}], v{vXo+k}, s[{sO}:{sO+3}], 0 offen {ssc}")
    final(0)
    p(f"s_cmp_lt_u32 s{sw}, 2"); p(f"s_cbranch_scc0 {tag}_fin")
    final(1)
    p(f"{tag}_fin:")
    if prof:
        prof_stamp(p, sP2)
        S.names['w'] = sw
        emit_prof_store(p, R['ws'], [sP0, sP1, sP2] + PST, vA, t+16, S, region=1)
    return dict(vgpr=V.n, sgpr=S.n, lds=max(NS*10240, 4*21504))

NEGBIG = -3.0e38
def emit_att(p, tag="ATT", lds0=0, prof=False, ssc=""):
    S = Alloc(4, 100, 's'); V = Alloc(1, 256, 'v')
    R = prologue(p, S, V, ['ws'])
    sWS = S('srdWS', 4)
    sw = S('w'); sRb = S('rb'); sHp = S('hp'); sT0 = S('t0'); sT1 = S('t1'); sM = S('m'); sE = S('ex', 2); sC = S('c')
    sP0 = S('p0', 2); sP1 = S('p1', 2); sP2 = S('p2', 2)
    vL = V('lane'); vA = V('a'); vB = V('b'); vC = V('c'); vQ = V('q'); vG = V('g')
    vQa = V('qa'); vKa = V('ka'); vKb = V('kb'); vVa = V('va'); vOa = V('oa'); vOb = V('ob')
    bias = V('bias', 8, 4)
    T = []
    for par in range(2):
        T.append(dict(q=V(f'q{par}', 4, 4), kp=V(f'kp{par}', 4, 4), kc=V(f'kc{par}', 4, 4), v0=V(f'v0{par}', 4, 4), v1=V(f'v1{par}', 4, 4),
                      s=V(f's{par}', 8, 4), pb=V(f'pb{par}', 4, 4), o0=V(f'o0{par}', 4, 4), o1=V(f'o1{par}', 4, 4), m=V(f'm{par}'), t=V(f't{par}'), r=V(f'r{par}')))
    LQ = lds0; LK = LQ + 10240; LV = LK + 11520; LO = LV + 11520
    MAT = 160*2048*8
    if prof: prof_stamp(p, sP0)
    p(f"v_lshrrev_b32 v{vA}, 6, v0"); p(f"v_and_b32 v{vL}, 63, v0"); p(f"v_readfirstlane_b32 s{sw}, v{vA}")
    p(f"s_and_b32 s{sT0}, s2, 7"); p(f"s_lshr_b32 s{sT1}, s2, 3")
    p(f"s_lshl_b32 s{sRb}, s{sT0}, 1"); p(f"s_and_b32 s{sT0}, s{sT1}, 1"); p(f"s_add_u32 s{sRb}, s{sRb}, s{sT0}"); p(f"s_lshr_b32 s{sHp}, s{sT1}, 1")
    p(f"s_mov_b32 s{sM}, {magic(72, 1536)}")
    p("s_waitcnt lgkmcnt(0)")
    srd(p, sWS, R['ws'], size=WS_SIZE)
    p(f"s_mul_i32 s{sT0}, s{sHp}, {10*16384}"); p(f"s_lshl_b32 s{sT1}, s{sRb}, 10"); p(f"s_add_u32 s{sT0}, s{sT0}, s{sT1}")
    p(f"s_add_u32 s{sT1}, s{sT0}, {WS_QKV + MAT - 128}")
    p(f"s_add_u32 s{sT0}, s{sT0}, {WS_QKV}")
    sMb = S('mb'); p(f"s_lshl_b32 s{sMb}, s{sw}, 10")
    for k in range(3):
        p(f"v_add_u32 v{vC}, {512*k}, v0")
        p(f"v_mul_hi_u32 v{vA}, v{vC}, s{sM}"); p(f"v_mul_u32_u24 v{vB}, 72, v{vA}"); p(f"v_sub_u32 v{vB}, v{vC}, v{vB}")
        p(f"v_lshlrev_b32 v{vB}, 4, v{vB}")
        p(f"v_cmp_le_u32 vcc, 10, v{vA}"); p(f"v_lshlrev_b32 v{vA}, 14, v{vA}"); p(f"v_add_u32 v{vB}, v{vA}, v{vB}")
        p(f"v_add_u32 v{vA}, {MAT - 10*16384}, v{vB}"); p(f"v_cndmask_b32 v{vB}, v{vB}, v{vA}, vcc")
        p(f"s_add_u32 m0, s{sMb}, {LK + 8192*k}")
        if k == 2:
            p(f"v_cmp_gt_u32 vcc, 1440, v{vC}"); p(f"s_and_saveexec_b64 s[{sE}:{sE+1}], vcc")
            p(f"s_cbranch_execz {tag}_skipkv")
        p(f"buffer_load_dwordx4 v{vB}, s[{sWS}:{sWS+3}], s{sT1} offen lds")
        if k == 2:
            p(f"{tag}_skipkv:"); p(f"s_mov_b64 exec, s[{sE}:{sE+1}]")
    p(f"v_lshlrev_b32 v{vA}, 4, v{vL}")
    p(f"s_lshl_b32 s{sC}, s{sw}, 14"); p(f"s_add_u32 s{sC}, s{sC}, s{sT0}")
    p(f"s_add_u32 m0, s{sMb}, {LQ}")
    p(f"buffer_load_dwordx4 v{vA}, s[{sWS}:{sWS+3}], s{sC} offen lds")
    p(f"s_cmp_lt_u32 s{sw}, 2"); p(f"s_cbranch_scc0 {tag}_noq2")
    p(f"s_add_u32 s{sC}, s{sC}, {8*16384}"); p(f"s_add_u32 m0, s{sMb}, {LQ + 8192}")
    p(f"buffer_load_dwordx4 v{vA}, s[{sWS}:{sWS+3}], s{sC} offen lds")
    p(f"{tag}_noq2:")
    sHd = S('hd'); sB = S('b')
    p(f"s_lshr_b32 s{sHd}, s{sw}, 2"); p(f"s_and_b32 s{sB}, s{sw}, 3")
    p(f"v_and_b32 v{vQ}, 15, v{vL}"); p(f"v_lshrrev_b32 v{vG}, 4, v{vL}")
    p(f"s_mul_i32 s{sT0}, s{sHd}, {5*1024}"); p(f"s_lshl_b32 s{sT1}, s{sB}, 8"); p(f"s_add_u32 s{sT0}, s{sT0}, s{sT1}"); p(f"s_add_u32 s{sT0}, s{sT0}, {LQ}")
    p(f"v_lshlrev_b32 v{vA}, 10, v{vG}"); p(f"v_lshlrev_b32 v{vB}, 4, v{vQ}"); p(f"v_add_u32 v{vA}, v{vA}, v{vB}"); p(f"v_add_u32 v{vQa}, s{sT0}, v{vA}")
    p(f"s_mul_i32 s{sT0}, s{sHd}, {5*1152}"); p(f"s_lshl_b32 s{sT1}, s{sB}, 8"); p(f"s_add_u32 s{sT0}, s{sT0}, s{sT1}"); p(f"s_add_u32 s{sC}, s{sT0}, {LK - 128}")
    p(f"v_mul_u32_u24 v{vA}, 1152, v{vG}"); p(f"v_add_u32 v{vA}, v{vA}, v{vB}"); p(f"v_add_u32 v{vKa}, s{sC}, v{vA}")
    p(f"s_add_u32 s{sC}, s{sC}, {4*1152}"); p(f"v_add_u32 v{vKb}, s{sC}, v{vB}")
    p(f"s_add_u32 s{sC}, s{sT0}, {LV - 128}")
    p(f"v_and_b32 v{vA}, 3, v{vL}"); p(f"v_mul_u32_u24 v{vA}, 1152, v{vA}")
    p(f"v_lshrrev_b32 v{vB}, 2, v{vL}"); p(f"v_lshlrev_b32 v{vB}, 4, v{vB}")
    p(f"v_add_u32 v{vA}, v{vA}, v{vB}"); p(f"v_add_u32 v{vVa}, s{sC}, v{vA}")
    p(f"s_mul_i32 s{sT0}, s{sHd}, 5"); p(f"v_add_u32 v{vA}, s{sT0}, v{vG}")
    p(f"v_lshrrev_b32 v{vB}, 1, v{vA}"); p(f"v_lshlrev_b32 v{vB}, 11, v{vB}"); p(f"v_and_b32 v{vA}, 1, v{vA}"); p(f"v_lshlrev_b32 v{vA}, 3, v{vA}"); p(f"v_add_u32 v{vA}, v{vA}, v{vB}")
    p(f"v_lshlrev_b32 v{vB}, 5, v{vQ}"); p(f"v_add_u32 v{vA}, v{vA}, v{vB}")
    p(f"s_lshl_b32 s{sT1}, s{sB}, 9"); p(f"s_add_u32 s{sT1}, s{sT1}, {LO}"); p(f"v_add_u32 v{vOa}, s{sT1}, v{vA}")
    p(f"s_mul_i32 s{sT0}, s{sHd}, {2*2048+8}"); p(f"s_add_u32 s{sT0}, s{sT0}, {2*2048}"); p(f"s_add_u32 s{sT0}, s{sT0}, s{sT1}")
    p(f"v_add_u32 v{vOb}, s{sT0}, v{vB}")
    p(f"v_lshlrev_b32 v{vA}, 2, v{vG}"); p(f"v_sub_u32 v{vA}, v{vA}, v{vQ}")
    p(f"s_or_b32 s{sT0}, s{sRb}, s{sB}"); p(f"s_cmp_eq_u32 s{sT0}, 0"); p(f"s_cselect_b32 s{sT0}, 100, 9")
    p(f"v_mov_b32 v{vC}, {hx(f2u(NEGBIG))}")
    for e in range(4):
        p(f"v_add_u32 v{vB}, {e}, v{vA}")
        p(f"v_cmp_gt_i32 vcc, s{sT0}, v{vB}"); p(f"v_cndmask_b32 v{bias+e}, 0, v{vC}, vcc")
        p(f"v_add_u32 v{vB}, 7, v{vB}")
        p(f"v_cmp_lt_u32 vcc, 7, v{vB}"); p(f"v_cndmask_b32 v{bias+4+e}, 0, v{vC}, vcc")
    for t in T:
        p(f"v_mov_b32 v{t['q']+2}, 0"); p(f"v_mov_b32 v{t['q']+3}, 0")
    p(f"s_mov_b32 s{sC}, {hx(f2u(20**-0.5*LOG2E))}")
    p("s_waitcnt vmcnt(0)"); p("s_barrier")
    if prof: prof_stamp(p, sP1)
    for par, t in enumerate(T):
        o = 8*par
        p(f"ds_read_b64 v[{t['q']}:{t['q']+1}], v{vQa} offset:{o}")
        p(f"ds_read_b64 v[{t['kp']}:{t['kp']+1}], v{vKa} offset:{o}")
        p(f"ds_read_b64 v[{t['kp']+2}:{t['kp']+3}], v{vKb} offset:{o}")
        p(f"ds_read_b64 v[{t['kc']}:{t['kc']+1}], v{vKa} offset:{o+256}")
        p(f"ds_read_b64 v[{t['kc']+2}:{t['kc']+3}], v{vKb} offset:{o+256}")
        p("s_mov_b64 exec, 0xffff")
        p(f"ds_read_b64 v[{t['q']+2}:{t['q']+3}], v{vQa} offset:{o+4096}")
        p("s_mov_b64 exec, -1")
    for par, t in enumerate(T):
        o = 8*par
        p(f"ds_read_b64_tr_b16 v[{t['v0']}:{t['v0']+1}], v{vVa} offset:{o}")
        p(f"ds_read_b64_tr_b16 v[{t['v0']+2}:{t['v0']+3}], v{vVa} offset:{o+256}")
        p(f"ds_read_b64_tr_b16 v[{t['v1']}:{t['v1']+1}], v{vVa} offset:{o+4*1152}")
        p(f"ds_read_b64_tr_b16 v[{t['v1']+2}:{t['v1']+3}], v{vVa} offset:{o+4*1152+256}")
    for par, t in enumerate(T):
        p(f"s_waitcnt lgkmcnt({8 + (6 if par == 0 else 0)})")
        p(f"v_mfma_f32_16x16x32_bf16 v[{t['s']}:{t['s']+3}], v[{t['kp']}:{t['kp']+3}], v[{t['q']}:{t['q']+3}], v[{bias}:{bias+3}]")
        p(f"v_mfma_f32_16x16x32_bf16 v[{t['s']+4}:{t['s']+7}], v[{t['kc']}:{t['kc']+3}], v[{t['q']}:{t['q']+3}], v[{bias+4}:{bias+7}]")
    def both(f):
        for t in T: f(t)
    for t in T:
        s = t['s']
        p(f"v_max3_f32 v{t['m']}, v{s}, v{s+1}, v{s+2}"); p(f"v_max3_f32 v{t['m']}, v{t['m']}, v{s+3}, v{s+4}")
        p(f"v_max3_f32 v{t['m']}, v{t['m']}, v{s+5}, v{s+6}"); p(f"v_max_f32 v{t['m']}, v{t['m']}, v{s+7}")
    for sw_ in ("v_permlane16_swap_b32", "v_permlane32_swap_b32"):
        for t in T: p(f"v_mov_b32 v{t['t']}, v{t['m']}")
        for t in T: p(f"{sw_} v{t['m']}, v{t['t']}")
        for t in T: p(f"v_max_f32 v{t['m']}, v{t['m']}, v{t['t']}")
    for t in T: p(f"v_mul_f32 v{t['m']}, s{sC}, v{t['m']}")
    for e in range(8):
        for t in T: p(f"v_fma_f32 v{t['s']+e}, v{t['s']+e}, s{sC}, -v{t['m']}")
    for e in range(8):
        for t in T: p(f"v_exp_f32 v{t['s']+e}, v{t['s']+e}")
    for t in T:
        s = t['s']
        for e in range(0, 8, 2): p(f"v_cvt_pk_bf16_f32 v{t['pb']+e//2}, v{s+e}, v{s+e+1}")
    for t in T:
        s = t['s']
        p(f"v_add_f32 v{t['r']}, v{s}, v{s+1}")
        for e in range(2, 8): p(f"v_add_f32 v{t['r']}, v{t['r']}, v{s+e}")
    p("s_waitcnt lgkmcnt(0)")
    for t in T:
        p(f"v_mfma_f32_16x16x32_bf16 v[{t['o0']}:{t['o0']+3}], v[{t['v0']}:{t['v0']+3}], v[{t['pb']}:{t['pb']+3}], 0")
        p(f"v_mfma_f32_16x16x32_bf16 v[{t['o1']}:{t['o1']+3}], v[{t['v1']}:{t['v1']+3}], v[{t['pb']}:{t['pb']+3}], 0")
    for sw_ in ("v_permlane16_swap_b32", "v_permlane32_swap_b32"):
        for t in T: p(f"v_mov_b32 v{t['t']}, v{t['r']}")
        for t in T: p(f"{sw_} v{t['r']}, v{t['t']}")
        for t in T: p(f"v_add_f32 v{t['r']}, v{t['r']}, v{t['t']}")
    for t in T: p(f"v_rcp_f32 v{t['r']}, v{t['r']}")
    for t in T:
        for blk in ('o0', 'o1'):
            for e in range(4): p(f"v_mul_f32 v{t[blk]+e}, v{t[blk]+e}, v{t['r']}")
            p(f"v_cvt_pk_bf16_f32 v{t[blk]}, v{t[blk]}, v{t[blk]+1}"); p(f"v_cvt_pk_bf16_f32 v{t[blk]+1}, v{t[blk]+2}, v{t[blk]+3}")
    for par, t in enumerate(T):
        p(f"ds_write_b64 v{vOa}, v[{t['o0']}:{t['o0']+1}] offset:{16*par}")
    p("s_mov_b64 exec, 0xffff")
    for par, t in enumerate(T):
        p(f"ds_write_b64 v{vOb}, v[{t['o1']}:{t['o1']+1}] offset:{16*par}")
    p("s_mov_b64 exec, -1")
    p(f"s_mul_i32 s{sT0}, s{sHp}, 5"); p(f"s_lshl_b32 s{sT1}, s{sRb}, 3"); p(f"s_mul_i32 s{sT1}, s{sT1}, {20*1024}"); p(f"s_add_u32 s{sT1}, s{sT1}, {WS_O}")
    t = T[0]
    for k in range(2):
        a = t['kp'] + k
        p(f"v_add_u32 v{vC}, {512*k}, v0"); p(f"v_lshrrev_b32 v{vA}, 7, v{vC}"); p(f"v_add_u32 v{vA}, s{sT0}, v{vA}")
        p(f"v_lshrrev_b32 v{vB}, 2, v{vA}"); p(f"v_lshlrev_b32 v{a}, 10, v{vB}"); p(f"v_and_b32 v{vA}, 3, v{vA}"); p(f"v_lshlrev_b32 v{vA}, 8, v{vA}"); p(f"v_add_u32 v{a}, v{a}, v{vA}")
        p(f"v_and_b32 v{vA}, 15, v{vC}"); p(f"v_lshlrev_b32 v{vA}, 4, v{vA}"); p(f"v_add_u32 v{a}, v{a}, v{vA}")
        p(f"v_bfe_u32 v{vA}, v{vC}, 4, 3"); p(f"v_mul_u32_u24 v{vA}, {20*1024}, v{vA}"); p(f"v_add_u32 v{a}, v{a}, v{vA}")
    p(f"v_lshlrev_b32 v{vA}, 4, v0")
    p("s_waitcnt lgkmcnt(0)"); p("s_barrier")
    p(f"ds_read_b128 v[{t['q']}:{t['q']+3}], v{vA} offset:{LO}")
    p(f"s_cmp_lt_u32 s{sw}, 2"); p(f"s_cbranch_scc0 {tag}_o1")
    p(f"ds_read_b128 v[{t['kc']}:{t['kc']+3}], v{vA} offset:{LO+8192}")
    p("s_waitcnt lgkmcnt(0)")
    p(f"buffer_store_dwordx4 v[{t['kc']}:{t['kc']+3}], v{t['kp']+1}, s[{sWS}:{sWS+3}], s{sT1} offen {ssc}")
    p(f"{tag}_o1:")
    p("s_waitcnt lgkmcnt(0)")
    p(f"buffer_store_dwordx4 v[{t['q']}:{t['q']+3}], v{t['kp']}, s[{sWS}:{sWS+3}], s{sT1} offen {ssc}")
    if prof:
        prof_stamp(p, sP2)
        S.names['w'] = sw
        emit_prof_store(p, R['ws'], [sP0, sP1, sP2], vA, T[1]['s'], S, region=2)
    return dict(vgpr=V.n, sgpr=S.n, lds=LO + 10240)

def lay_qkv_np(qkv_u16):
    import numpy as np
    a = qkv_u16.reshape(2048, 3, 160, 4)
    return np.ascontiguousarray(a.transpose(1, 2, 0, 3))
```

```python
from asmlib import Prog
from gen import *
from gen2 import *

WS_FLG = 0xD80000
SPIN = 100000

class VQ:
    def __init__(self): self.n = 0; self.marks = {}
    def op(self, k=1): self.n += k
    def mark(self, name): self.marks[name] = self.n
    def after(self, name): return self.n - self.marks[name]

def emit_k2(p, D=7, bper=2, D3=6, tag="K2", ssc="sc1", prof=False, samexcd=False, flagst=3, pollst=4, chkst=6, usc=""):
    NST = 32; DZ = D; NZ = DZ + 2; NS = D + 1 + bper
    NSS = 10; NSY = 14; NST3 = NSS + NSY; NS3 = D3 + 2; NB = D3 + 2
    L3 = NS*8192
    assert L3 + NS3*10240 <= 163840
    S = Alloc(4, 100, 's'); V = Alloc(1, 256, 'v')
    sW = S('srdW', 4); sWS = S('srdWS', 4); sB = S('srdB', 4); sX = S('srdX', 4); sO = S('srdO', 4); sD = S('srdD', 4)
    R = dict(x=sX, wsp=sW, bsp=sB, out=sO, dbg=sD, ws=sWS)
    for nm, off in (('ws', 80), ('wsp', 40), ('bsp', 48), ('dbg', 72), ('x', 0), ('out', 64)):
        p(f"s_load_dwordx2 s[{R[nm]}:{R[nm]+1}], s[0:1], {off}")
    def srdfin(s_, size):
        p(f"s_mov_b32 s{s_+2}, {hx(size)}"); p(f"s_mov_b32 s{s_+3}, {SRD3}")
    sw = S('w'); sRt = S('rt'); sCt = S('ct'); sB0 = S('b0'); sNb = S('nb'); sT0 = S('t0'); sT1 = S('t1')
    sOffZ = S('offZ'); sOffZ1 = S('offZ1'); sC1 = S('c1'); sK = S('k54'); sK2 = S('k2'); sK3 = S('k3')
    sPar = S('par'); sTb = S('tb'); sOffW = S('offW'); sOffB = S('offB'); sOffB2 = S('offB2'); sM0 = S('m0b'); sE = S('ex', 2)
    sU = S('offU'); sZ1 = S('offZ1p'); sNon = S('nonce', 2); sFo = S('flagoff'); sSp = S('spin')
    st0 = Stamps(p, S, bool(prof))
    class _St:
        L = st0.L; names = st0.names
        def __call__(self, n):
            if prof and (prof is True or n in prof): st0(n)
    st = _St()
    v16 = V('l16'); vT0 = V('tr0'); vT1 = V('tr1'); vXo = V('xoff', 2); vRd = V('rd', 2); vX = V('xv', 8, 4); bf3 = V('bf3', 4*NB, 4)
    vN = V('nonce', 2, 2); vF = V('flag', 2, 2); vFo = V('fo')
    base2 = V.n
    vT = V('t'); vG = V('g'); vA = V('a'); vA2 = V('a2')
    vZ = V('z'); vB00 = V('b00'); vB01 = V('b01'); vB10 = V('b10'); vB11 = V('b11'); vC2 = V('c2')
    vBias = V('bias', 4); vZp = V('zp', 8, 2); vGe = V('ge', 16); vTmp = V('tmp', 2); vS = V('st'); vL = V('ld')
    acc = V('acc', 16, 4); bf = V('bf', 64, 4); zb = V('zb', 8*NZ, 4)
    nv = V.n
    accy = bf; accs = bf + 20; af = bf + 40
    vB = vA2; vC = vTmp
    ACC = lambda tb: acc + tb*4
    BF = lambda i, par, tb: bf + (i & 1)*32 + par*16 + tb*4
    ZB = lambda i, par: zb + (i % NZ)*8 + par*4
    AF = lambda i, nb: af + (i & 1)*20 + nb*4
    BF3 = lambda i: bf3 + (i % NB)*4
    st('start')
    p(f"v_lshrrev_b32 v{vA}, 6, v0")
    p(f"v_readfirstlane_b32 s{sw}, v{vA}")
    p(f"s_or_b32 s{sT0}, s2, s{sw}"); p(f"s_cmp_lg_u32 s{sT0}, 0"); p(f"s_cbranch_scc1 {tag}_nonon")
    p(f"s_memrealtime s[{sNon}:{sNon+1}]")
    p("s_waitcnt lgkmcnt(0)")
    p(f"s_or_b32 s{sNon}, s{sNon}, 1")
    srdfin(sD, 256)
    p(f"v_mov_b32 v{vN}, s{sNon}"); p(f"v_mov_b32 v{vN+1}, s{sNon+1}"); p(f"v_mov_b32 v{vFo}, 0")
    p("s_mov_b64 exec, 1")
    p(f"buffer_store_dwordx2 v[{vN}:{vN+1}], v{vFo}, s[{sD}:{sD+3}], 0 offen sc1")
    p("s_mov_b64 exec, -1")
    p(f"{tag}_nonon:")
    p(f"s_and_b32 s{sT0}, s2, 7")
    p(f"s_lshr_b32 s{sT1}, s2, 3")
    if samexcd:
        p(f"s_lshl_b32 s{sRt}, s{sT0}, 2"); p(f"s_and_b32 s{sCt}, s{sT1}, 3"); p(f"s_add_u32 s{sRt}, s{sRt}, s{sCt}")
        p(f"s_lshr_b32 s{sCt}, s{sT1}, 2")
    else:
        p(f"s_lshr_b32 s{sRt}, s{sT0}, 1"); p(f"s_lshl_b32 s{sRt}, s{sRt}, 3")
        p(f"s_and_b32 s{sCt}, s{sT1}, 7"); p(f"s_add_u32 s{sRt}, s{sRt}, s{sCt}")
        p(f"s_and_b32 s{sCt}, s{sT0}, 1"); p(f"s_lshl_b32 s{sCt}, s{sCt}, 2")
        p(f"s_lshr_b32 s{sT1}, s{sT1}, 3"); p(f"s_add_u32 s{sCt}, s{sCt}, s{sT1}")
    p(f"s_mul_i32 s{sB0}, s{sCt}, 7"); p(f"s_mul_i32 s{sT0}, s{sCt}, 6"); p(f"s_add_u32 s{sT0}, s{sT0}, 6")
    p(f"s_min_u32 s{sB0}, s{sB0}, s{sT0}")
    p(f"s_cmp_lt_u32 s{sCt}, 6"); p(f"s_cselect_b32 s{sNb}, 7, 6")
    p(f"s_and_b32 s{sTb}, s{sw}, 3"); p(f"s_lshr_b32 s{sPar}, s{sw}, 2")

    def p3_setup():
        vLn = vGe; t0 = vGe + 1; t1 = vGe + 2; t2 = vGe + 3
        sM = sE
        p(f"v_and_b32 v{vLn}, 63, v0")
        p(f"v_lshlrev_b32 v{v16}, 4, v{vLn}")
        p(f"v_lshrrev_b32 v{t0}, 5, v{vLn}"); p(f"v_lshlrev_b32 v{t0}, 4, v{t0}")
        p(f"v_lshrrev_b32 v{t1}, 4, v{vLn}"); p(f"v_and_b32 v{t1}, 1, v{t1}"); p(f"v_lshlrev_b32 v{t1}, 2, v{t1}"); p(f"v_add_u32 v{t0}, v{t0}, v{t1}")
        p(f"v_lshrrev_b32 v{t1}, 2, v{vLn}"); p(f"v_and_b32 v{t1}, 3, v{t1}"); p(f"v_add_u32 v{t0}, v{t0}, v{t1}")
        p(f"v_mul_u32_u24 v{t0}, 160, v{t0}"); p(f"v_and_b32 v{t1}, 3, v{vLn}"); p(f"v_lshlrev_b32 v{t1}, 3, v{t1}"); p(f"v_add_u32 v{t0}, v{t0}, v{t1}")
        p(f"s_mul_i32 s{sT0}, s{sPar}, 5120"); p(f"s_add_u32 s{sT0}, s{sT0}, {L3}"); p(f"v_add_u32 v{vT0}, s{sT0}, v{t0}"); p(f"v_add_u32 v{vT1}, 0x10000, v{vT0}")
        p(f"s_mov_b32 s{sM}, {magic(10, 1024)}")
        p(f"s_lshl_b32 s{sT0}, s{sRt}, 6"); p(f"s_mul_i32 s{sT0}, s{sT0}, 1280"); p(f"s_mul_i32 s{sT1}, s{sCt}, 160"); p(f"s_add_u32 s{sT0}, s{sT0}, s{sT1}")
        for k in range(2):
            p(f"v_add_u32 v{t2}, {512*k}, v0")
            p(f"v_mul_hi_u32 v{t0}, v{t2}, s{sM}"); p(f"v_mul_u32_u24 v{t1}, 10, v{t0}"); p(f"v_sub_u32 v{t1}, v{t2}, v{t1}")
            p(f"v_mul_u32_u24 v{t2}, 1280, v{t0}"); p(f"v_lshlrev_b32 v{vXo+k}, 4, v{t1}"); p(f"v_add_u32 v{vXo+k}, v{vXo+k}, v{t2}")
            p(f"v_add_u32 v{vXo+k}, s{sT0}, v{vXo+k}")
            p(f"v_mul_u32_u24 v{t2}, 336, v{t0}"); p(f"v_lshlrev_b32 v{vRd+k}, 5, v{t1}"); p(f"v_add_u32 v{vRd+k}, v{vRd+k}, v{t2}")
        p(f"s_cmp_lt_u32 s{sw}, 2"); p(f"s_cselect_b32 s{sT0}, 0, {hx(OOB)}"); p(f"v_or_b32 v{vXo+1}, s{sT0}, v{vXo+1}")
        p(f"v_and_b32 v{vFo}, 7, v{vLn}"); p(f"v_lshlrev_b32 v{vFo}, 3, v{vFo}")
        p(f"s_lshl_b32 s{sFo}, s{sRt}, 6"); p(f"s_add_u32 s{sFo}, s{sFo}, {WS_FLG}")
        p(f"s_mul_i32 s{sOffW}, s{sCt}, {47*5120}"); p(f"s_mul_i32 s{sT0}, s{sw}, 1280"); p(f"s_add_u32 s{sOffW}, s{sOffW}, s{sT0}")
        p(f"s_add_u32 s{sOffW}, s{sOffW}, {WS_WR + 27*5120}")
        p(f"s_add_u32 s{sM0}, s{sT0}, {L3}")
        p(f"s_lshl_b32 s{sT0}, s{sRt}, 2"); p(f"s_add_u32 s{sT0}, s{sT0}, s{sTb}")
        p(f"s_mul_i32 s{sOffB}, s{sT0}, {54*512}"); p(f"s_lshl_b32 s{sT1}, s{sPar}, 10"); p(f"s_add_u32 s{sOffB}, s{sOffB}, s{sT1}"); p(f"s_add_u32 s{sOffB}, s{sOffB}, {WS_U}")
        p(f"s_mul_i32 s{sOffB2}, s{sT0}, {20*1024}"); p(f"s_add_u32 s{sOffB2}, s{sOffB2}, s{sT1}"); p(f"s_add_u32 s{sOffB2}, s{sOffB2}, {WS_O}")
    def wl3(i):
        slot = i % NS3
        adv = 10240 if i != NSS - 1 else (10240 - 47*5120) & 0xffffffff
        return [[f"s_add_u32 m0, s{sM0}, {slot*10240}", f"buffer_load_dwordx4 v{v16}, s[{sWS}:{sWS+3}], s{sOffW} offen lds"],
                [f"s_mov_b64 exec, 0xffff", f"buffer_load_dwordx4 v{v16}, s[{sWS}:{sWS+3}], s{sOffW} offen offset:1024 lds", "s_mov_b64 exec, -1",
                 f"s_add_u32 s{sOffW}, s{sOffW}, {hx(adv)}"]]
    def bl3(i):
        if i < NSS:
            return [f"buffer_load_dwordx4 v[{BF3(i)}:{BF3(i)+3}], v{v16}, s[{sWS}:{sWS+3}], s{sOffB2} offen", f"s_add_u32 s{sOffB2}, s{sOffB2}, 2048"]
        return [f"buffer_load_dwordx4 v[{BF3(i)}:{BF3(i)+3}], v{v16}, s[{sWS}:{sWS+3}], s{sOffB} offen {usc}", f"s_add_u32 s{sOffB}, s{sOffB}, 2048"]
    PF0 = NST - DZ
    assert D3 <= NST - PF0
    def pf3(s): return wl3(s) + [bl3(s)]

    p("s_waitcnt lgkmcnt(0)")
    srdfin(sWS, WS_SIZE); srdfin(sX, 2048*1280); srdfin(sO, 2048*1280); srdfin(sD, 256); srdfin(sB, 4096)
    p(f"s_cmp_ge_u32 s{sw}, s{sNb}")
    p(f"s_cbranch_scc1 {tag}_helper")
    p(f"v_and_b32 v{vA}, 63, v0")
    p(f"v_and_b32 v{vT}, 15, v{vA}"); p(f"v_lshrrev_b32 v{vG}, 4, v{vA}")
    p(f"s_add_u32 s{sB0}, s{sB0}, s{sw}")
    p(f"s_lshl_b32 s{sT0}, s{sB0}, 10")
    p(f"v_lshlrev_b32 v{vA}, 4, v{vA}"); p(f"v_add_u32 v{vZ}, s{sT0}, v{vA}")
    p(f"s_mov_b32 s{sOffZ}, {WS_Z2N}"); p(f"s_mov_b32 s{sOffZ1}, {WS_Z2N + 54*1024}")
    def zloads(i):
        return [[f"buffer_load_dwordx4 v[{ZB(i,0)}:{ZB(i,0)+3}], v{vZ}, s[{sWS}:{sWS+3}], s{sOffZ} offen", f"s_add_u32 s{sOffZ}, s{sOffZ}, {2*54*1024}"],
                [f"buffer_load_dwordx4 v[{ZB(i,1)}:{ZB(i,1)+3}], v{vZ}, s[{sWS}:{sWS+3}], s{sOffZ1} offen", f"s_add_u32 s{sOffZ1}, s{sOffZ1}, {2*54*1024}"]]
    q = VQ()
    for i in range(2):
        for gr in zloads(i):
            for l in gr: p(l)
        q.op(2); q.mark(f"z{i}")
    p(f"v_lshrrev_b32 v{vA2}, 1, v{vT}"); p(f"v_xor_b32 v{vA}, v{vG}, v{vA2}"); p(f"v_lshlrev_b32 v{vA}, 4, v{vA}")
    p(f"v_lshlrev_b32 v{vA2}, 7, v{vT}"); p(f"v_add_u32 v{vB00}, v{vA}, v{vA2}")
    p(f"v_xor_b32 v{vB10}, 64, v{vB00}")
    p(f"v_add_u32 v{vB01}, 0x10000, v{vB00}"); p(f"v_add_u32 v{vB11}, 0x10000, v{vB10}")
    p(f"s_mov_b32 s{sC1}, {hx(f2u(C1))}"); p(f"v_mov_b32 v{vC2}, {hx(f2u(C2))}")
    p(f"s_mov_b32 s{sK}, {54*512}"); p(f"s_mov_b32 s{sK2}, {2*54*512}"); p(f"s_mov_b32 s{sK3}, {3*54*512}")
    p(f"s_lshl_b32 s{sT0}, s{sRt}, 2"); p(f"s_mul_i32 s{sT1}, s{sT0}, 54"); p(f"s_add_u32 s{sT1}, s{sT1}, s{sB0}"); p(f"s_lshl_b32 s{sT1}, s{sT1}, 9")
    p(f"v_and_b32 v{vA}, 1, v{vG}"); p(f"v_lshlrev_b32 v{vA}, 8, v{vA}")
    p(f"v_lshlrev_b32 v{vA2}, 4, v{vT}"); p(f"v_add_u32 v{vA}, v{vA}, v{vA2}")
    p(f"v_lshrrev_b32 v{vA2}, 1, v{vG}"); p(f"v_lshlrev_b32 v{vA2}, 3, v{vA2}"); p(f"v_add_u32 v{vA}, v{vA}, v{vA2}")
    p(f"v_add_u32 v{vL}, s{sT1}, v{vA}"); p(f"v_add_u32 v{vL}, {WS_Z1P}, v{vL}")
    p(f"v_lshrrev_b32 v{vA}, 1, v{vG}"); p(f"v_lshlrev_b32 v{vA}, 8, v{vA}")
    p(f"v_lshlrev_b32 v{vA2}, 4, v{vT}"); p(f"v_add_u32 v{vA}, v{vA}, v{vA2}")
    p(f"v_and_b32 v{vA2}, 1, v{vG}"); p(f"v_lshlrev_b32 v{vA2}, 3, v{vA2}"); p(f"v_add_u32 v{vA}, v{vA}, v{vA2}")
    p(f"v_add_u32 v{vS}, s{sT1}, v{vA}"); p(f"v_add_u32 v{vS}, {WS_U}, v{vS}")
    KS = ["0", f"s{sK}", f"s{sK2}", f"s{sK3}"]
    for k in range(4):
        p(f"buffer_load_dwordx2 v[{vZp+2*k}:{vZp+2*k+1}], v{vL}, s[{sWS}:{sWS+3}], {KS[k]} offen")
    p(f"s_lshl_b32 s{sT0}, s{sT0}, 5")
    p(f"v_lshlrev_b32 v{vA}, 1, v{vT}"); p(f"v_add_u32 v{vA}, s{sT0}, v{vA}")
    for k in range(4):
        p(f"buffer_load_ushort v{vBias+k}, v{vA}, s[{sB}:{sB+3}], 0 offen offset:{32*k}")
    q.op(8); q.mark("z1p")
    for i in range(2, DZ):
        for gr in zloads(i):
            for l in gr: p(l)
        q.op(2); q.mark(f"z{i}")
    p3_setup()
    st('setup')
    gel = []
    for qq in range(16):
        k, c = qq//4, qq % 4
        src = vZp + k*2 + c//2
        ops = [f"v_lshlrev_b32 v{vGe+qq}, 16, v{src}" if c % 2 == 0 else f"v_and_b32 v{vGe+qq}, 0xffff0000, v{src}"]
        ops += gelu_ops(vGe+qq, vTmp + (qq & 1), sC1, vC2)
        gel.append(ops)
    def mfmas(i):
        L = []
        for par in range(2):
            for tb in range(4):
                c = "0" if (i == 0 and par == 0) else f"v[{ACC(tb)}:{ACC(tb)+3}]"
                L.append(f"v_mfma_f32_16x16x32_bf16 v[{ACC(tb)}:{ACC(tb)+3}], v[{ZB(i,par)}:{ZB(i,par)+3}], v[{BF(i,par,tb)}:{BF(i,par,tb)+3}], {c}")
        return L
    for i in range(NST + 1):
        if i < NST:
            if i % bper == 0: p("s_barrier")
            if i in (0, 8, 16, 24): st(f's{i}')
            slot = i % NS
            for par in range(2):
                for tb in range(4):
                    off = slot*8192 + tb*2048
                    vb = [[vB00, vB01], [vB10, vB11]][par][off >= 65536]
                    p(f"ds_read_b128 v[{BF(i,par,tb)}:{BF(i,par,tb)+3}], v{vb} offset:{off & 0xffff}")
        if i + DZ < NST: groups = [(g, 1) for g in zloads(i + DZ)]; mk = f"z{i+DZ}"
        elif i - PF0 < D3 and i < NST: groups = [(g, 1) for g in pf3(i - PF0)]; mk = f"p{i-PF0}"
        else: groups = []; mk = None
        if i >= 1:
            j = i - 1
            need = f"z{j}"
            out = q.after(need)
            if j == 2: out = min(out, q.after("z1p"))
            p(f"s_waitcnt vmcnt({min(out,63)}) lgkmcnt({8 if i < NST else 0})")
            M = mfmas(j)
            g = list(gel[i-3]) if 3 <= i < 19 else []
            pos = (0, 4) if len(groups) == 2 else (0, 3, 6)
            for n, m in enumerate(M):
                if n in pos and groups:
                    gr, k = groups.pop(0)
                    for l in gr: p(l)
                    q.op(k)
                p(m)
                if g: p(g.pop(0))
            for l in g: p(l)
        for gr, k in groups:
            for l in gr: p(l)
            q.op(k)
        if mk: q.mark(mk)
    st('main2')
    for k in range(4): p(f"v_lshlrev_b32 v{vBias+k}, 16, v{vBias+k}")
    for qq in range(16): p(f"v_add_f32 v{acc+qq}, v{acc+qq}, v{vBias+qq//4}")
    for qq in range(16): p(f"v_mul_f32 v{acc+qq}, v{acc+qq}, v{vGe+qq}")
    for qq in range(0, 16, 2): p(f"v_cvt_pk_bf16_f32 v{acc+qq//2}, v{acc+qq}, v{acc+qq+1}")
    for k in range(4):
        p(f"buffer_store_dwordx2 v[{acc+2*k}:{acc+2*k+1}], v{vS}, s[{sWS}:{sWS+3}], {KS[k]} offen {ssc}")
    p(f"s_branch {tag}_p3")
    p(f"{tag}_helper:")
    p(f"s_cmp_eq_u32 s{sw}, 7")
    p(f"s_cbranch_scc1 {tag}_loader")
    p3_setup()
    for i in range(NST):
        if i % bper == 0: p("s_barrier")
        if PF0 <= i < PF0 + D3:
            for gr in pf3(i - PF0):
                for l in gr: p(l)
    p(f"s_branch {tag}_p3")
    p(f"{tag}_loader:")
    p(f"v_and_b32 v{vL}, 63, v0")
    p(f"v_lshrrev_b32 v{vG}, 4, v{vL}"); p(f"v_and_b32 v{vA2}, 7, v{vL}"); p(f"v_xor_b32 v{vA}, v{vG}, v{vA2}")
    p(f"v_lshlrev_b32 v{vA}, 4, v{vA}")
    p(f"v_lshrrev_b32 v{vA2}, 3, v{vL}"); p(f"v_lshlrev_b32 v{vA2}, 12, v{vA2}")
    p(f"v_add_u32 v{vB00}, v{vA}, v{vA2}"); p(f"v_xor_b32 v{vB10}, 64, v{vB00}")
    p(f"v_add_u32 v{vB10}, 0x8000, v{vB10}")
    p(f"s_lshl_b32 s{sT0}, s{sRt}, 18")
    p(f"s_add_u32 s{sW}, s{sW}, s{sT0}"); p(f"s_addc_u32 s{sW+1}, s{sW+1}, 0"); srdfin(sW, 64*4096)
    sq = [sK, sK2, sK3, sOffZ]
    for qq in range(4): p(f"s_mov_b32 s{sq[qq]}, {qq*65536}")
    def wloads(i):
        L = []
        slot = i % NS
        for qq in range(8):
            L.append(f"s_mov_b32 m0, {slot*8192 + qq*1024}")
            L.append(f"buffer_load_dwordx4 v{vB10 if qq & 1 else vB00}, s[{sW}:{sW+3}], s{sq[qq//2]} offen lds")
        for qq in range(4): L.append(f"s_add_u32 s{sq[qq]}, s{sq[qq]}, 128")
        return L
    ql = VQ()
    for i in range(D):
        for l in wloads(i): p(l)
        ql.op(8); ql.mark(f"w{i}")
        if i == 1:
            p3_setup()
    for i in range(NST):
        if i % bper == 0:
            need = min(i + bper - 1, NST - 1)
            p(f"s_waitcnt vmcnt({min(63, ql.after(f'w{need}'))})")
            p("s_barrier")
        if i + D < NST:
            for l in wloads(i + D): p(l)
            ql.op(8); ql.mark(f"w{i+D}")
        elif i - PF0 < D3:
            for gr in pf3(i - PF0):
                for l in gr: p(l)
            ql.op(3)
    p(f"{tag}_p3:")
    st('p3')
    q = VQ()
    for s in range(D3):
        q.op(2); q.mark(f"W{s}"); q.op(1); q.mark(f"B{s}")
    q.mark("ST")
    def mfmas3(j):
        a = accs if j < NSS else accy
        first = j in (0, NSS)
        return [f"v_mfma_f32_16x16x32_bf16 v[{a+4*nb}:{a+4*nb+3}], v[{AF(j,nb)}:{AF(j,nb)+3}], v[{BF3(j)}:{BF3(j)+3}], " + ("0" if first else f"v[{a+4*nb}:{a+4*nb+3}]") for nb in range(5)]
    nextB = D3
    for i in range(NST3 + 1):
        if i < NST3:
            n = q.after(f"W{i}")
            if i == flagst: n = min(n, q.after("ST"), q.after("NON"))
            p(f"s_waitcnt vmcnt({min(63, n)})")
            if i == flagst:
                p(f"v_readfirstlane_b32 s{sNon}, v{vN}"); p(f"v_readfirstlane_b32 s{sNon+1}, v{vN+1}")
                p(f"s_cmp_eq_u32 s{sNon}, 0"); p(f"s_cbranch_scc1 {tag}_nspin")
                p(f"{tag}_nok:")
            p("s_barrier")
            if i in (0, 4, 8, 10, 12, 16, 20): st(f'q{i}')
            if i == flagst:
                p(f"s_cmp_lg_u32 s{sw}, 0"); p(f"s_cbranch_scc1 {tag}_noflag")
                p(f"s_lshl_b32 s{sT0}, s{sCt}, 3"); p(f"s_add_u32 s{sT0}, s{sT0}, s{sFo}")
                p(f"v_mov_b32 v{vF}, 0")
                p("s_mov_b64 exec, 1")
                p(f"buffer_store_dwordx2 v[{vN}:{vN+1}], v{vF}, s[{sWS}:{sWS+3}], s{sT0} offen sc1")
                p("s_mov_b64 exec, -1")
                p(f"{tag}_noflag:")
            slot = i % NS3
            for nb in range(5):
                for half in range(2):
                    off = slot*10240 + half*1280 + nb*32
                    vb = vT1 if off >= 65536 else vT0
                    p(f"ds_read_b64_tr_b16 v[{AF(i,nb)+2*half}:{AF(i,nb)+2*half+1}], v{vb} offset:{off & 0xffff}")
        groups = []
        if i + D3 < NST3: groups += [(g, f"W{i+D3}" if k else None) for k, g in enumerate(wl3(i + D3))]
        if i == 0: groups.append(([f"buffer_load_dwordx2 v[{vN}:{vN+1}], v{vFo}, s[{sD}:{sD+3}], 0 offen sc1".replace(f"v{vFo},", f"v{vC},")], "NON"))
        if i == pollst: groups.append(([f"buffer_load_dwordx2 v[{vF}:{vF+1}], v{vFo}, s[{sWS}:{sWS+3}], s{sFo} offen sc1"], "FLG"))
        if i == pollst + 1:
            groups.append(([f"buffer_load_dwordx4 v[{vX}:{vX+3}], v{vXo}, s[{sX}:{sX+3}], 0 offen"], None))
            groups.append(([f"buffer_load_dwordx4 v[{vX+4}:{vX+7}], v{vXo+1}, s[{sX}:{sX+3}], 0 offen"], "X"))
        pre = []
        while nextB < NST3 and nextB <= i + D3 and (nextB < NSS or i >= chkst):
            groups.append((bl3(nextB), f"B{nextB}")); nextB += 1
        if i == 0: p(f"v_mov_b32 v{vC}, 0")
        if i == chkst:
            p(f"s_waitcnt vmcnt({min(63, q.after('FLG'))})")
            p(f"{tag}_fchk:")
            p(f"v_cmp_ne_u32 vcc, s{sNon}, v{vF}"); p(f"s_mov_b64 s[{sE}:{sE+1}], vcc")
            p(f"v_cmp_ne_u32 vcc, s{sNon+1}, v{vF+1}"); p(f"s_or_b64 s[{sE}:{sE+1}], s[{sE}:{sE+1}], vcc")
            p(f"s_cmp_lg_u64 s[{sE}:{sE+1}], 0"); p(f"s_cbranch_scc1 {tag}_fspin")
            p(f"{tag}_fok:")
            st('fok')
        if i >= 1:
            j = i - 1
            p(f"s_waitcnt vmcnt({min(63, q.after(f'B{j}'))}) lgkmcnt({10 if i < NST3 else 0})")
            if j == NST3 - 1:
                p(f"s_cmp_eq_u32 s{sPar}, 1"); p(f"s_cbranch_scc1 {tag}_skipm")
            M = mfmas3(j)
            for n, m in enumerate(M):
                if j != NST3 - 1 and groups:
                    gr, mk = groups.pop(0)
                    for l in gr: p(l)
                    q.op(1)
                    if mk: q.mark(mk)
                p(m)
            if j == NST3 - 1: p(f"{tag}_skipm:")
        for gr, mk in groups:
            for l in gr: p(l)
            q.op(1)
            if mk: q.mark(mk)
    st('main3')
    vA_ = vA; vLn = vT
    p("s_barrier")
    p(f"v_lshrrev_b32 v{vLn}, 4, v{v16}")
    p(f"v_and_b32 v{vA_}, 15, v{vLn}"); p(f"s_lshl_b32 s{sT0}, s{sTb}, 4"); p(f"v_add_u32 v{vA_}, s{sT0}, v{vA_}"); p(f"v_mul_u32_u24 v{vA_}, 336, v{vA_}")
    p(f"v_lshrrev_b32 v{vB}, 4, v{vLn}"); p(f"v_lshlrev_b32 v{vB}, 4, v{vB}"); p(f"v_add_u32 v{vA_}, v{vA_}, v{vB}")
    p(f"s_mul_i32 s{sT0}, s{sPar}, {2*21504}"); p(f"v_add_u32 v{vA_}, s{sT0}, v{vA_}")
    for nb in range(5):
        p(f"ds_write_b128 v{vA_}, v[{accy+4*nb}:{accy+4*nb+3}] offset:{nb*64}")
        p(f"ds_write_b128 v{vA_}, v[{accs+4*nb}:{accs+4*nb+3}] offset:{21504 + nb*64}")
    p("s_waitcnt lgkmcnt(0)"); p("s_barrier")
    sNL = sK; p(f"s_mov_b32 s{sNL}, {hx(f2u(-LOG2E))}")
    t = af
    def final(k):
        rd = vRd + k
        for m, (o, dst) in enumerate(((0, t), (16, t+4), (2*21504, t+8), (2*21504+16, t+12), (21504, t+16), (21504+16, t+20), (3*21504, t+24), (3*21504+16, t+28))):
            p(f"ds_read_b128 v[{dst}:{dst+3}], v{rd} offset:{o}")
        p("s_waitcnt lgkmcnt(4)")
        for e in range(8): p(f"v_add_f32 v{t+e}, v{t+e}, v{t+8+e}")
        for e in range(8): p(f"v_mul_f32 v{t+8+e}, s{sNL}, v{t+e}")
        for e in range(8): p(f"v_exp_f32 v{t+8+e}, v{t+8+e}")
        for e in range(8): p(f"v_add_f32 v{t+8+e}, 1.0, v{t+8+e}")
        for e in range(8): p(f"v_rcp_f32 v{t+8+e}, v{t+8+e}")
        for e in range(8): p(f"v_mul_f32 v{t+e}, v{t+e}, v{t+8+e}")
        p("s_waitcnt lgkmcnt(0)")
        for e in range(8): p(f"v_add_f32 v{t+16+e}, v{t+16+e}, v{t+24+e}")
        xv = vX + 4*k
        for e in range(8):
            src = xv + e//2
            p(f"v_lshlrev_b32 v{t+8+e}, 16, v{src}" if e % 2 == 0 else f"v_and_b32 v{t+8+e}, 0xffff0000, v{src}")
        for e in range(8): p(f"v_fmac_f32 v{t+8+e}, v{t+16+e}, v{t+e}")
        for e in range(0, 8, 2): p(f"v_cvt_pk_bf16_f32 v{t+32+e//2}, v{t+8+e}, v{t+8+e+1}")
        p(f"buffer_store_dwordx4 v[{t+32}:{t+35}], v{vXo+k}, s[{sO}:{sO+3}], 0 offen {ssc}")
    p(f"s_waitcnt vmcnt(0)")
    final(0)
    p(f"s_cmp_lt_u32 s{sw}, 2"); p(f"s_cbranch_scc0 {tag}_fin")
    final(1)
    p(f"{tag}_fin:")
    if prof:
        st('end')
        S.names['w'] = sw
        emit_prof_store(p, R['ws'], st.L, vA, t+16, S, region=1)
    p(f"s_branch {tag}_done")
    p(f"{tag}_nspin:")
    p(f"s_mov_b32 s{sSp}, {SPIN}")
    p(f"{tag}_nspin_l:")
    p(f"buffer_load_dwordx2 v[{vN}:{vN+1}], v{vC}, s[{sD}:{sD+3}], 0 offen sc1")
    p("s_waitcnt vmcnt(0)")
    p(f"v_readfirstlane_b32 s{sNon}, v{vN}"); p(f"v_readfirstlane_b32 s{sNon+1}, v{vN+1}")
    p(f"s_cmp_lg_u32 s{sNon}, 0"); p(f"s_cbranch_scc1 {tag}_nok")
    p(f"s_sub_u32 s{sSp}, s{sSp}, 1"); p(f"s_cmp_lg_u32 s{sSp}, 0"); p(f"s_cbranch_scc1 {tag}_nspin_l")
    p(f"s_branch {tag}_nok")
    p(f"{tag}_fspin:")
    p(f"s_mov_b32 s{sSp}, {SPIN}")
    p(f"{tag}_fspin_l:")
    p(f"buffer_load_dwordx2 v[{vF}:{vF+1}], v{vFo}, s[{sWS}:{sWS+3}], s{sFo} offen sc1")
    p("s_waitcnt vmcnt(0)")
    p(f"v_cmp_ne_u32 vcc, s{sNon}, v{vF}"); p(f"s_mov_b64 s[{sE}:{sE+1}], vcc")
    p(f"v_cmp_ne_u32 vcc, s{sNon+1}, v{vF+1}"); p(f"s_or_b64 s[{sE}:{sE+1}], s[{sE}:{sE+1}], vcc")
    p(f"s_cmp_eq_u64 s[{sE}:{sE+1}], 0"); p(f"s_cbranch_scc1 {tag}_fok")
    p(f"s_sub_u32 s{sSp}, s{sSp}, 1"); p(f"s_cmp_lg_u32 s{sSp}, 0"); p(f"s_cbranch_scc1 {tag}_fspin_l")
    p(f"s_branch {tag}_fok")
    p(f"{tag}_done:")
    return dict(vgpr=nv, sgpr=S.n, lds=L3 + NS3*10240, stamps=st.names)
```

```python
import sys
sys.path.insert(0, 'dev')
from build import *
from build_exp1 import build2, emit_empty
from gen4 import *
from gen5 import *
ssc = "sc1"
def mk(path, k2=None, p1kw={}, k0kw={}):
    K = [("k0_kernel", emit_k0, dict(ssc=ssc, codepf=0x8800, **k0kw)),
      ("p1_kernel", emit_p1, dict(nfill2=4, sc=ssc, **p1kw)),
      ("km_kernel", emit_km, dict(ssc=ssc))]
    if k2 is None:
        K += [("p2_kernel", emit_p2, dict(D=7, bper=2, ssc=ssc)), ("p3_kernel", emit_p3, dict(ssc=ssc))]
    else:
        K += [("k2_kernel", emit_k2, dict(ssc=ssc, **k2))]
    build2(K, [k[0] for k in K], path)
if __name__ == "__main__":
    mk('a.s'); mk('b.s')
    mk('c.s', k2={})
    mk('d.s', k2=dict(samexcd=True))
    mk('e.s', k2=dict(flagst=2, pollst=4, chkst=6))
    mk('f.s', k2=dict(flagst=2, pollst=5, chkst=7))
```

```python
from asmlib import Prog
from gen import *
from gen2 import *

WS_FLG = 0xD80000
SPIN = 100000

class VQ:
    def __init__(self): self.n = 0; self.marks = {}
    def op(self, k=1): self.n += k
    def mark(self, name): self.marks[name] = self.n
    def after(self, name): return self.n - self.marks[name]

def emit_k2(p, D=7, bper=2, D3=6, tag="K2", ssc="sc1", prof=False, samexcd=False, flagst=3, pollst=4, chkst=6, usc="", balance=True, w0poll=True, npoll=4, pslp=0):
    NST = 32; DZ = D; NZ = DZ + 2; NS = D + 1 + bper
    NSS = 10; NSY = 14; NST3 = NSS + NSY; NS3 = D3 + 2; NB = D3 + 2
    L3 = NS*8192
    assert L3 + NS3*10240 <= 163840
    S = Alloc(4, 100, 's'); V = Alloc(1, 256, 'v')
    sW = S('srdW', 4); sWS = S('srdWS', 4); sB = S('srdB', 4); sX = S('srdX', 4); sO = S('srdO', 4); sD = S('srdD', 4)
    R = dict(x=sX, wsp=sW, bsp=sB, out=sO, dbg=sD, ws=sWS)
    for nm, off in (('ws', 80), ('wsp', 40), ('bsp', 48), ('dbg', 72), ('x', 0), ('out', 64)):
        p(f"s_load_dwordx2 s[{R[nm]}:{R[nm]+1}], s[0:1], {off}")
    def srdfin(s_, size):
        p(f"s_mov_b32 s{s_+2}, {hx(size)}"); p(f"s_mov_b32 s{s_+3}, {SRD3}")
    sw = S('w'); sRt = S('rt'); sCt = S('ct'); sB0 = S('b0'); sNb = S('nb'); sT0 = S('t0'); sT1 = S('t1')
    sOffZ = S('offZ'); sOffZ1 = S('offZ1'); sC1 = S('c1'); sK = S('k54'); sK2 = S('k2'); sK3 = S('k3')
    sPar = S('par'); sTb = S('tb'); sOffW = S('offW'); sOffB = S('offB'); sOffB2 = S('offB2'); sM0 = S('m0b'); sE = S('ex', 2)
    sU = S('offU'); sZ1 = S('offZ1p'); sNon = S('nonce', 2); sFo = S('flagoff'); sSp = S('spin')
    st0 = Stamps(p, S, bool(prof))
    class _St:
        L = st0.L; names = st0.names
        def __call__(self, n):
            if prof and (prof is True or n in prof): st0(n)
    st = _St()
    v16 = V('l16'); vT0 = V('tr0'); vT1 = V('tr1'); vXo = V('xoff', 2); vRd = V('rd', 2); vX = V('xv', 8, 4); bf3 = V('bf3', 4*NB, 4)
    vN = V('nonce', 2, 2); vF = V('flag', 2, 2); vFo = V('fo')
    vP = None
    base2 = V.n
    vT = V('t'); vG = V('g'); vA = V('a'); vA2 = V('a2')
    vZ = V('z'); vB00 = V('b00'); vB01 = V('b01'); vB10 = V('b10'); vB11 = V('b11'); vC2 = V('c2')
    vBias = V('bias', 4); vZp = V('zp', 8, 2); vGe = V('ge', 16); vTmp = V('tmp', 2); vS = V('st'); vL = V('ld')
    acc = V('acc', 16, 4); bf = V('bf', 64, 4); zb = V('zb', 8*NZ, 4)
    nv = V.n
    vP = vGe
    accy = bf; accs = bf + 20; af = bf + 40
    vB = vA2; vC = vTmp
    ACC = lambda tb: acc + tb*4
    BF = lambda i, par, tb: bf + (i & 1)*32 + par*16 + tb*4
    ZB = lambda i, par: zb + (i % NZ)*8 + par*4
    AF = lambda i, nb: af + (i & 1)*20 + nb*4
    BF3 = lambda i: bf3 + (i % NB)*4
    st('start')
    p(f"v_lshrrev_b32 v{vA}, 6, v0")
    p(f"v_readfirstlane_b32 s{sw}, v{vA}")
    p(f"s_or_b32 s{sT0}, s2, s{sw}"); p(f"s_cmp_lg_u32 s{sT0}, 0"); p(f"s_cbranch_scc1 {tag}_nonon")
    p(f"s_memrealtime s[{sNon}:{sNon+1}]")
    p("s_waitcnt lgkmcnt(0)")
    p(f"s_or_b32 s{sNon}, s{sNon}, 1")
    srdfin(sD, 256)
    p(f"v_mov_b32 v{vN}, s{sNon}"); p(f"v_mov_b32 v{vN+1}, s{sNon+1}"); p(f"v_mov_b32 v{vFo}, 0")
    p("s_mov_b64 exec, 1")
    p(f"buffer_store_dwordx2 v[{vN}:{vN+1}], v{vFo}, s[{sD}:{sD+3}], 0 offen sc1")
    p("s_mov_b64 exec, -1")
    p(f"{tag}_nonon:")
    p(f"s_and_b32 s{sT0}, s2, 7")
    p(f"s_lshr_b32 s{sT1}, s2, 3")
    if samexcd:
        p(f"s_lshl_b32 s{sRt}, s{sT0}, 2"); p(f"s_and_b32 s{sCt}, s{sT1}, 3"); p(f"s_add_u32 s{sRt}, s{sRt}, s{sCt}")
        p(f"s_lshr_b32 s{sCt}, s{sT1}, 2")
    else:
        p(f"s_lshr_b32 s{sRt}, s{sT0}, 1"); p(f"s_lshl_b32 s{sRt}, s{sRt}, 3")
        p(f"s_and_b32 s{sCt}, s{sT1}, 7"); p(f"s_add_u32 s{sRt}, s{sRt}, s{sCt}")
        p(f"s_and_b32 s{sCt}, s{sT0}, 1"); p(f"s_lshl_b32 s{sCt}, s{sCt}, 2")
        p(f"s_lshr_b32 s{sT1}, s{sT1}, 3"); p(f"s_add_u32 s{sCt}, s{sCt}, s{sT1}")
        if balance:
            p(f"s_lshl_b32 s{sCt}, s{sCt}, 2"); p(f"s_lshr_b32 s{sCt}, 0x75436210, s{sCt}"); p(f"s_and_b32 s{sCt}, s{sCt}, 7")
    p(f"s_mul_i32 s{sB0}, s{sCt}, 7"); p(f"s_mul_i32 s{sT0}, s{sCt}, 6"); p(f"s_add_u32 s{sT0}, s{sT0}, 6")
    p(f"s_min_u32 s{sB0}, s{sB0}, s{sT0}")
    p(f"s_cmp_lt_u32 s{sCt}, 6"); p(f"s_cselect_b32 s{sNb}, 7, 6")
    p(f"s_and_b32 s{sTb}, s{sw}, 3"); p(f"s_lshr_b32 s{sPar}, s{sw}, 2")

    def p3_setup():
        vLn = vGe; t0 = vGe + 1; t1 = vGe + 2; t2 = vGe + 3
        sM = sE
        p(f"v_and_b32 v{vLn}, 63, v0")
        p(f"v_lshlrev_b32 v{v16}, 4, v{vLn}")
        p(f"v_lshrrev_b32 v{t0}, 5, v{vLn}"); p(f"v_lshlrev_b32 v{t0}, 4, v{t0}")
        p(f"v_lshrrev_b32 v{t1}, 4, v{vLn}"); p(f"v_and_b32 v{t1}, 1, v{t1}"); p(f"v_lshlrev_b32 v{t1}, 2, v{t1}"); p(f"v_add_u32 v{t0}, v{t0}, v{t1}")
        p(f"v_lshrrev_b32 v{t1}, 2, v{vLn}"); p(f"v_and_b32 v{t1}, 3, v{t1}"); p(f"v_add_u32 v{t0}, v{t0}, v{t1}")
        p(f"v_mul_u32_u24 v{t0}, 160, v{t0}"); p(f"v_and_b32 v{t1}, 3, v{vLn}"); p(f"v_lshlrev_b32 v{t1}, 3, v{t1}"); p(f"v_add_u32 v{t0}, v{t0}, v{t1}")
        p(f"s_mul_i32 s{sT0}, s{sPar}, 5120"); p(f"s_add_u32 s{sT0}, s{sT0}, {L3}"); p(f"v_add_u32 v{vT0}, s{sT0}, v{t0}"); p(f"v_add_u32 v{vT1}, 0x10000, v{vT0}")
        p(f"s_mov_b32 s{sM}, {magic(10, 1024)}")
        p(f"s_lshl_b32 s{sT0}, s{sRt}, 6"); p(f"s_mul_i32 s{sT0}, s{sT0}, 1280"); p(f"s_mul_i32 s{sT1}, s{sCt}, 160"); p(f"s_add_u32 s{sT0}, s{sT0}, s{sT1}")
        for k in range(2):
            p(f"v_add_u32 v{t2}, {512*k}, v0")
            p(f"v_mul_hi_u32 v{t0}, v{t2}, s{sM}"); p(f"v_mul_u32_u24 v{t1}, 10, v{t0}"); p(f"v_sub_u32 v{t1}, v{t2}, v{t1}")
            p(f"v_mul_u32_u24 v{t2}, 1280, v{t0}"); p(f"v_lshlrev_b32 v{vXo+k}, 4, v{t1}"); p(f"v_add_u32 v{vXo+k}, v{vXo+k}, v{t2}")
            p(f"v_add_u32 v{vXo+k}, s{sT0}, v{vXo+k}")
            p(f"v_mul_u32_u24 v{t2}, 336, v{t0}"); p(f"v_lshlrev_b32 v{vRd+k}, 5, v{t1}"); p(f"v_add_u32 v{vRd+k}, v{vRd+k}, v{t2}")
        p(f"s_cmp_lt_u32 s{sw}, 2"); p(f"s_cselect_b32 s{sT0}, 0, {hx(OOB)}"); p(f"v_or_b32 v{vXo+1}, s{sT0}, v{vXo+1}")
        p(f"v_and_b32 v{vFo}, 7, v{vLn}"); p(f"v_lshlrev_b32 v{vFo}, 3, v{vFo}")
        p(f"s_lshl_b32 s{sFo}, s{sRt}, 6"); p(f"s_add_u32 s{sFo}, s{sFo}, {WS_FLG}")
        p(f"s_mul_i32 s{sOffW}, s{sCt}, {47*5120}"); p(f"s_mul_i32 s{sT0}, s{sw}, 1280"); p(f"s_add_u32 s{sOffW}, s{sOffW}, s{sT0}")
        p(f"s_add_u32 s{sOffW}, s{sOffW}, {WS_WR + 27*5120}")
        p(f"s_add_u32 s{sM0}, s{sT0}, {L3}")
        p(f"s_lshl_b32 s{sT0}, s{sRt}, 2"); p(f"s_add_u32 s{sT0}, s{sT0}, s{sTb}")
        p(f"s_mul_i32 s{sOffB}, s{sT0}, {54*512}"); p(f"s_lshl_b32 s{sT1}, s{sPar}, 10"); p(f"s_add_u32 s{sOffB}, s{sOffB}, s{sT1}"); p(f"s_add_u32 s{sOffB}, s{sOffB}, {WS_U}")
        p(f"s_mul_i32 s{sOffB2}, s{sT0}, {20*1024}"); p(f"s_add_u32 s{sOffB2}, s{sOffB2}, s{sT1}"); p(f"s_add_u32 s{sOffB2}, s{sOffB2}, {WS_O}")
    def wl3(i):
        slot = i % NS3
        adv = 10240 if i != NSS - 1 else (10240 - 47*5120) & 0xffffffff
        return [[f"s_add_u32 m0, s{sM0}, {slot*10240}", f"buffer_load_dwordx4 v{v16}, s[{sWS}:{sWS+3}], s{sOffW} offen lds"],
                [f"s_mov_b64 exec, 0xffff", f"buffer_load_dwordx4 v{v16}, s[{sWS}:{sWS+3}], s{sOffW} offen offset:1024 lds", "s_mov_b64 exec, -1",
                 f"s_add_u32 s{sOffW}, s{sOffW}, {hx(adv)}"]]
    def bl3(i):
        if i < NSS:
            return [f"buffer_load_dwordx4 v[{BF3(i)}:{BF3(i)+3}], v{v16}, s[{sWS}:{sWS+3}], s{sOffB2} offen", f"s_add_u32 s{sOffB2}, s{sOffB2}, 2048"]
        return [f"buffer_load_dwordx4 v[{BF3(i)}:{BF3(i)+3}], v{v16}, s[{sWS}:{sWS+3}], s{sOffB} offen {usc}", f"s_add_u32 s{sOffB}, s{sOffB}, 2048"]
    PF0 = NST - DZ
    assert D3 <= NST - PF0
    def pf3(s): return wl3(s) + [bl3(s)]

    p("s_waitcnt lgkmcnt(0)")
    srdfin(sWS, WS_SIZE); srdfin(sX, 2048*1280); srdfin(sO, 2048*1280); srdfin(sD, 256); srdfin(sB, 4096)
    p(f"s_cmp_ge_u32 s{sw}, s{sNb}")
    p(f"s_cbranch_scc1 {tag}_helper")
    p(f"v_and_b32 v{vA}, 63, v0")
    p(f"v_and_b32 v{vT}, 15, v{vA}"); p(f"v_lshrrev_b32 v{vG}, 4, v{vA}")
    p(f"s_add_u32 s{sB0}, s{sB0}, s{sw}")
    p(f"s_lshl_b32 s{sT0}, s{sB0}, 10")
    p(f"v_lshlrev_b32 v{vA}, 4, v{vA}"); p(f"v_add_u32 v{vZ}, s{sT0}, v{vA}")
    p(f"s_mov_b32 s{sOffZ}, {WS_Z2N}"); p(f"s_mov_b32 s{sOffZ1}, {WS_Z2N + 54*1024}")
    def zloads(i):
        return [[f"buffer_load_dwordx4 v[{ZB(i,0)}:{ZB(i,0)+3}], v{vZ}, s[{sWS}:{sWS+3}], s{sOffZ} offen", f"s_add_u32 s{sOffZ}, s{sOffZ}, {2*54*1024}"],
                [f"buffer_load_dwordx4 v[{ZB(i,1)}:{ZB(i,1)+3}], v{vZ}, s[{sWS}:{sWS+3}], s{sOffZ1} offen", f"s_add_u32 s{sOffZ1}, s{sOffZ1}, {2*54*1024}"]]
    q = VQ()
    for i in range(2):
        for gr in zloads(i):
            for l in gr: p(l)
        q.op(2); q.mark(f"z{i}")
    p(f"v_lshrrev_b32 v{vA2}, 1, v{vT}"); p(f"v_xor_b32 v{vA}, v{vG}, v{vA2}"); p(f"v_lshlrev_b32 v{vA}, 4, v{vA}")
    p(f"v_lshlrev_b32 v{vA2}, 7, v{vT}"); p(f"v_add_u32 v{vB00}, v{vA}, v{vA2}")
    p(f"v_xor_b32 v{vB10}, 64, v{vB00}")
    p(f"v_add_u32 v{vB01}, 0x10000, v{vB00}"); p(f"v_add_u32 v{vB11}, 0x10000, v{vB10}")
    p(f"s_mov_b32 s{sC1}, {hx(f2u(C1))}"); p(f"v_mov_b32 v{vC2}, {hx(f2u(C2))}")
    p(f"s_mov_b32 s{sK}, {54*512}"); p(f"s_mov_b32 s{sK2}, {2*54*512}"); p(f"s_mov_b32 s{sK3}, {3*54*512}")
    p(f"s_lshl_b32 s{sT0}, s{sRt}, 2"); p(f"s_mul_i32 s{sT1}, s{sT0}, 54"); p(f"s_add_u32 s{sT1}, s{sT1}, s{sB0}"); p(f"s_lshl_b32 s{sT1}, s{sT1}, 9")
    p(f"v_and_b32 v{vA}, 1, v{vG}"); p(f"v_lshlrev_b32 v{vA}, 8, v{vA}")
    p(f"v_lshlrev_b32 v{vA2}, 4, v{vT}"); p(f"v_add_u32 v{vA}, v{vA}, v{vA2}")
    p(f"v_lshrrev_b32 v{vA2}, 1, v{vG}"); p(f"v_lshlrev_b32 v{vA2}, 3, v{vA2}"); p(f"v_add_u32 v{vA}, v{vA}, v{vA2}")
    p(f"v_add_u32 v{vL}, s{sT1}, v{vA}"); p(f"v_add_u32 v{vL}, {WS_Z1P}, v{vL}")
    p(f"v_lshrrev_b32 v{vA}, 1, v{vG}"); p(f"v_lshlrev_b32 v{vA}, 8, v{vA}")
    p(f"v_lshlrev_b32 v{vA2}, 4, v{vT}"); p(f"v_add_u32 v{vA}, v{vA}, v{vA2}")
    p(f"v_and_b32 v{vA2}, 1, v{vG}"); p(f"v_lshlrev_b32 v{vA2}, 3, v{vA2}"); p(f"v_add_u32 v{vA}, v{vA}, v{vA2}")
    p(f"v_add_u32 v{vS}, s{sT1}, v{vA}"); p(f"v_add_u32 v{vS}, {WS_U}, v{vS}")
    KS = ["0", f"s{sK}", f"s{sK2}", f"s{sK3}"]
    for k in range(4):
        p(f"buffer_load_dwordx2 v[{vZp+2*k}:{vZp+2*k+1}], v{vL}, s[{sWS}:{sWS+3}], {KS[k]} offen")
    p(f"s_lshl_b32 s{sT0}, s{sT0}, 5")
    p(f"v_lshlrev_b32 v{vA}, 1, v{vT}"); p(f"v_add_u32 v{vA}, s{sT0}, v{vA}")
    for k in range(4):
        p(f"buffer_load_ushort v{vBias+k}, v{vA}, s[{sB}:{sB+3}], 0 offen offset:{32*k}")
    q.op(8); q.mark("z1p")
    for i in range(2, DZ):
        for gr in zloads(i):
            for l in gr: p(l)
        q.op(2); q.mark(f"z{i}")
    p3_setup()
    st('setup')
    gel = []
    for qq in range(16):
        k, c = qq//4, qq % 4
        src = vZp + k*2 + c//2
        ops = [f"v_lshlrev_b32 v{vGe+qq}, 16, v{src}" if c % 2 == 0 else f"v_and_b32 v{vGe+qq}, 0xffff0000, v{src}"]
        ops += gelu_ops(vGe+qq, vTmp + (qq & 1), sC1, vC2)
        gel.append(ops)
    def mfmas(i):
        L = []
        for par in range(2):
            for tb in range(4):
                c = "0" if (i == 0 and par == 0) else f"v[{ACC(tb)}:{ACC(tb)+3}]"
                L.append(f"v_mfma_f32_16x16x32_bf16 v[{ACC(tb)}:{ACC(tb)+3}], v[{ZB(i,par)}:{ZB(i,par)+3}], v[{BF(i,par,tb)}:{BF(i,par,tb)+3}], {c}")
        return L
    for i in range(NST + 1):
        if i < NST:
            if i % bper == 0: p("s_barrier")
            if i in (0, 8, 16, 24): st(f's{i}')
            slot = i % NS
            for par in range(2):
                for tb in range(4):
                    off = slot*8192 + tb*2048
                    vb = [[vB00, vB01], [vB10, vB11]][par][off >= 65536]
                    p(f"ds_read_b128 v[{BF(i,par,tb)}:{BF(i,par,tb)+3}], v{vb} offset:{off & 0xffff}")
        if i + DZ < NST: groups = [(g, 1) for g in zloads(i + DZ)]; mk = f"z{i+DZ}"
        elif i - PF0 < D3 and i < NST: groups = [(g, 1) for g in pf3(i - PF0)]; mk = f"p{i-PF0}"
        else: groups = []; mk = None
        if i >= 1:
            j = i - 1
            need = f"z{j}"
            out = q.after(need)
            if j == 2: out = min(out, q.after("z1p"))
            p(f"s_waitcnt vmcnt({min(out,63)}) lgkmcnt({8 if i < NST else 0})")
            M = mfmas(j)
            g = list(gel[i-3]) if 3 <= i < 19 else []
            pos = (0, 4) if len(groups) == 2 else (0, 3, 6)
            for n, m in enumerate(M):
                if n in pos and groups:
                    gr, k = groups.pop(0)
                    for l in gr: p(l)
                    q.op(k)
                p(m)
                if g: p(g.pop(0))
            for l in g: p(l)
        for gr, k in groups:
            for l in gr: p(l)
            q.op(k)
        if mk: q.mark(mk)
    st('main2')
    for k in range(4): p(f"v_lshlrev_b32 v{vBias+k}, 16, v{vBias+k}")
    for qq in range(16): p(f"v_add_f32 v{acc+qq}, v{acc+qq}, v{vBias+qq//4}")
    for qq in range(16): p(f"v_mul_f32 v{acc+qq}, v{acc+qq}, v{vGe+qq}")
    for qq in range(0, 16, 2): p(f"v_cvt_pk_bf16_f32 v{acc+qq//2}, v{acc+qq}, v{acc+qq+1}")
    for k in range(4):
        p(f"buffer_store_dwordx2 v[{acc+2*k}:{acc+2*k+1}], v{vS}, s[{sWS}:{sWS+3}], {KS[k]} offen {ssc}")
    p(f"s_branch {tag}_p3")
    p(f"{tag}_helper:")
    p(f"s_cmp_eq_u32 s{sw}, 7")
    p(f"s_cbranch_scc1 {tag}_loader")
    p3_setup()
    for i in range(NST):
        if i % bper == 0: p("s_barrier")
        if PF0 <= i < PF0 + D3:
            for gr in pf3(i - PF0):
                for l in gr: p(l)
    p(f"s_branch {tag}_p3")
    p(f"{tag}_loader:")
    p(f"v_and_b32 v{vL}, 63, v0")
    p(f"v_lshrrev_b32 v{vG}, 4, v{vL}"); p(f"v_and_b32 v{vA2}, 7, v{vL}"); p(f"v_xor_b32 v{vA}, v{vG}, v{vA2}")
    p(f"v_lshlrev_b32 v{vA}, 4, v{vA}")
    p(f"v_lshrrev_b32 v{vA2}, 3, v{vL}"); p(f"v_lshlrev_b32 v{vA2}, 12, v{vA2}")
    p(f"v_add_u32 v{vB00}, v{vA}, v{vA2}"); p(f"v_xor_b32 v{vB10}, 64, v{vB00}")
    p(f"v_add_u32 v{vB10}, 0x8000, v{vB10}")
    p(f"s_lshl_b32 s{sT0}, s{sRt}, 18")
    p(f"s_add_u32 s{sW}, s{sW}, s{sT0}"); p(f"s_addc_u32 s{sW+1}, s{sW+1}, 0"); srdfin(sW, 64*4096)
    sq = [sK, sK2, sK3, sOffZ]
    for qq in range(4): p(f"s_mov_b32 s{sq[qq]}, {qq*65536}")
    def wloads(i):
        L = []
        slot = i % NS
        for qq in range(8):
            L.append(f"s_mov_b32 m0, {slot*8192 + qq*1024}")
            L.append(f"buffer_load_dwordx4 v{vB10 if qq & 1 else vB00}, s[{sW}:{sW+3}], s{sq[qq//2]} offen lds")
        for qq in range(4): L.append(f"s_add_u32 s{sq[qq]}, s{sq[qq]}, 128")
        return L
    ql = VQ()
    for i in range(D):
        for l in wloads(i): p(l)
        ql.op(8); ql.mark(f"w{i}")
        if i == 1:
            p3_setup()
    for i in range(NST):
        if i % bper == 0:
            need = min(i + bper - 1, NST - 1)
            p(f"s_waitcnt vmcnt({min(63, ql.after(f'w{need}'))})")
            p("s_barrier")
        if i + D < NST:
            for l in wloads(i + D): p(l)
            ql.op(8); ql.mark(f"w{i+D}")
        elif i - PF0 < D3:
            for gr in pf3(i - PF0):
                for l in gr: p(l)
            ql.op(3)
    p(f"{tag}_p3:")
    st('p3')
    q = VQ()
    for s in range(D3):
        q.op(2); q.mark(f"W{s}"); q.op(1); q.mark(f"B{s}")
    q.mark("ST")
    def mfmas3(j):
        a = accs if j < NSS else accy
        first = j in (0, NSS)
        return [f"v_mfma_f32_16x16x32_bf16 v[{a+4*nb}:{a+4*nb+3}], v[{AF(j,nb)}:{AF(j,nb)+3}], v[{BF3(j)}:{BF3(j)+3}], " + ("0" if first else f"v[{a+4*nb}:{a+4*nb+3}]") for nb in range(5)]
    nextB = D3
    for i in range(NST3 + 1):
        if i < NST3:
            n = q.after(f"W{i}")
            if i == flagst: n = min(n, q.after("ST"), q.after("NON"))
            p(f"s_waitcnt vmcnt({min(63, n)})")
            if i == flagst:
                p(f"v_readfirstlane_b32 s{sNon}, v{vN}"); p(f"v_readfirstlane_b32 s{sNon+1}, v{vN+1}")
                p(f"s_cmp_eq_u32 s{sNon}, 0"); p(f"s_cbranch_scc1 {tag}_nspin")
                p(f"{tag}_nok:")
            if w0poll and i == chkst:
                p(f"s_cmp_lg_u32 s{sw}, 0"); p(f"s_cbranch_scc1 {tag}_fok")
                p(f"s_waitcnt vmcnt({min(63, q.after('FLG'))})")
                p(f"v_cmp_ne_u32 vcc, s{sNon}, v{vF}"); p(f"s_mov_b64 s[{sE}:{sE+1}], vcc")
                p(f"v_cmp_ne_u32 vcc, s{sNon+1}, v{vF+1}"); p(f"s_or_b64 s[{sE}:{sE+1}], s[{sE}:{sE+1}], vcc")
                p(f"s_cmp_lg_u64 s[{sE}:{sE+1}], 0"); p(f"s_cbranch_scc1 {tag}_fspin")
                p(f"{tag}_fok:")
            p("s_barrier")
            if w0poll and i == chkst: st('fok')
            if i == flagst: st('flg')
            if i in (0, 4, 8, 10, 12, 16, 20): st(f'q{i}')
            if i == flagst:
                p(f"s_cmp_lg_u32 s{sw}, 0"); p(f"s_cbranch_scc1 {tag}_noflag")
                p(f"s_lshl_b32 s{sT0}, s{sCt}, 3"); p(f"s_add_u32 s{sT0}, s{sT0}, s{sFo}")
                p(f"v_mov_b32 v{vF}, 0")
                p("s_mov_b64 exec, 1")
                p(f"buffer_store_dwordx2 v[{vN}:{vN+1}], v{vF}, s[{sWS}:{sWS+3}], s{sT0} offen sc1")
                p("s_mov_b64 exec, -1")
                p(f"{tag}_noflag:")
            slot = i % NS3
            for nb in range(5):
                for half in range(2):
                    off = slot*10240 + half*1280 + nb*32
                    vb = vT1 if off >= 65536 else vT0
                    p(f"ds_read_b64_tr_b16 v[{AF(i,nb)+2*half}:{AF(i,nb)+2*half+1}], v{vb} offset:{off & 0xffff}")
        groups = []
        if i + D3 < NST3: groups += [(g, f"W{i+D3}" if k else None) for k, g in enumerate(wl3(i + D3))]
        if i == 0: groups.append(([f"buffer_load_dwordx2 v[{vN}:{vN+1}], v{vFo}, s[{sD}:{sD+3}], 0 offen sc1".replace(f"v{vFo},", f"v{vC},")], "NON"))
        if i == pollst:
            ld = f"buffer_load_dwordx2 v[{vF}:{vF+1}], v{vFo}, s[{sWS}:{sWS+3}], s{sFo} offen sc1"
            if w0poll: groups.append(([f"s_cmp_eq_u32 s{sw}, 0", f"s_cselect_b64 exec, -1, 0xffffffff00000000" if False else f"s_cselect_b32 s{sT0}, s{sFo}, {hx(OOB)}", ld.replace(f"s{sFo} offen", f"s{sT0} offen")], "FLG"))
            else: groups.append(([ld], "FLG"))
        if i == pollst + 1:
            groups.append(([f"buffer_load_dwordx4 v[{vX}:{vX+3}], v{vXo}, s[{sX}:{sX+3}], 0 offen"], None))
            groups.append(([f"buffer_load_dwordx4 v[{vX+4}:{vX+7}], v{vXo+1}, s[{sX}:{sX+3}], 0 offen"], "X"))
        pre = []
        while nextB < NST3 and nextB <= i + D3 and (nextB < NSS or i >= chkst):
            groups.append((bl3(nextB), f"B{nextB}")); nextB += 1
        if i == 0: p(f"v_mov_b32 v{vC}, 0")
        if i == chkst and not w0poll:
            p(f"s_waitcnt vmcnt({min(63, q.after('FLG'))})")
            p(f"{tag}_fchk:")
            p(f"v_cmp_ne_u32 vcc, s{sNon}, v{vF}"); p(f"s_mov_b64 s[{sE}:{sE+1}], vcc")
            p(f"v_cmp_ne_u32 vcc, s{sNon+1}, v{vF+1}"); p(f"s_or_b64 s[{sE}:{sE+1}], s[{sE}:{sE+1}], vcc")
            p(f"s_cmp_lg_u64 s[{sE}:{sE+1}], 0"); p(f"s_cbranch_scc1 {tag}_fspin")
            p(f"{tag}_fok:")
            st('fok')
        if i >= 1:
            j = i - 1
            p(f"s_waitcnt vmcnt({min(63, q.after(f'B{j}'))}) lgkmcnt({10 if i < NST3 else 0})")
            if j == NST3 - 1:
                p(f"s_cmp_eq_u32 s{sPar}, 1"); p(f"s_cbranch_scc1 {tag}_skipm")
            M = mfmas3(j)
            for n, m in enumerate(M):
                if j != NST3 - 1 and groups:
                    gr, mk = groups.pop(0)
                    for l in gr: p(l)
                    q.op(1)
                    if mk: q.mark(mk)
                p(m)
            if j == NST3 - 1: p(f"{tag}_skipm:")
        for gr, mk in groups:
            for l in gr: p(l)
            q.op(1)
            if mk: q.mark(mk)
    st('main3')
    vA_ = vA; vLn = vT
    p("s_barrier")
    p(f"v_lshrrev_b32 v{vLn}, 4, v{v16}")
    p(f"v_and_b32 v{vA_}, 15, v{vLn}"); p(f"s_lshl_b32 s{sT0}, s{sTb}, 4"); p(f"v_add_u32 v{vA_}, s{sT0}, v{vA_}"); p(f"v_mul_u32_u24 v{vA_}, 336, v{vA_}")
    p(f"v_lshrrev_b32 v{vB}, 4, v{vLn}"); p(f"v_lshlrev_b32 v{vB}, 4, v{vB}"); p(f"v_add_u32 v{vA_}, v{vA_}, v{vB}")
    p(f"s_mul_i32 s{sT0}, s{sPar}, {2*21504}"); p(f"v_add_u32 v{vA_}, s{sT0}, v{vA_}")
    for nb in range(5):
        p(f"ds_write_b128 v{vA_}, v[{accy+4*nb}:{accy+4*nb+3}] offset:{nb*64}")
        p(f"ds_write_b128 v{vA_}, v[{accs+4*nb}:{accs+4*nb+3}] offset:{21504 + nb*64}")
    p("s_waitcnt lgkmcnt(0)"); p("s_barrier")
    sNL = sK; p(f"s_mov_b32 s{sNL}, {hx(f2u(-LOG2E))}")
    t = af
    def final(k):
        rd = vRd + k
        for m, (o, dst) in enumerate(((0, t), (16, t+4), (2*21504, t+8), (2*21504+16, t+12), (21504, t+16), (21504+16, t+20), (3*21504, t+24), (3*21504+16, t+28))):
            p(f"ds_read_b128 v[{dst}:{dst+3}], v{rd} offset:{o}")
        p("s_waitcnt lgkmcnt(4)")
        for e in range(8): p(f"v_add_f32 v{t+e}, v{t+e}, v{t+8+e}")
        for e in range(8): p(f"v_mul_f32 v{t+8+e}, s{sNL}, v{t+e}")
        for e in range(8): p(f"v_exp_f32 v{t+8+e}, v{t+8+e}")
        for e in range(8): p(f"v_add_f32 v{t+8+e}, 1.0, v{t+8+e}")
        for e in range(8): p(f"v_rcp_f32 v{t+8+e}, v{t+8+e}")
        for e in range(8): p(f"v_mul_f32 v{t+e}, v{t+e}, v{t+8+e}")
        p("s_waitcnt lgkmcnt(0)")
        for e in range(8): p(f"v_add_f32 v{t+16+e}, v{t+16+e}, v{t+24+e}")
        xv = vX + 4*k
        for e in range(8):
            src = xv + e//2
            p(f"v_lshlrev_b32 v{t+8+e}, 16, v{src}" if e % 2 == 0 else f"v_and_b32 v{t+8+e}, 0xffff0000, v{src}")
        for e in range(8): p(f"v_fmac_f32 v{t+8+e}, v{t+16+e}, v{t+e}")
        for e in range(0, 8, 2): p(f"v_cvt_pk_bf16_f32 v{t+32+e//2}, v{t+8+e}, v{t+8+e+1}")
        p(f"buffer_store_dwordx4 v[{t+32}:{t+35}], v{vXo+k}, s[{sO}:{sO+3}], 0 offen {ssc}")
    p(f"s_waitcnt vmcnt(0)")
    final(0)
    p(f"s_cmp_lt_u32 s{sw}, 2"); p(f"s_cbranch_scc0 {tag}_fin")
    final(1)
    p(f"{tag}_fin:")
    if prof:
        st('end')
        S.names['w'] = sw
        emit_prof_store(p, R['ws'], st.L, vA, t+16, S, region=1)
    p(f"s_branch {tag}_done")
    p(f"{tag}_nspin:")
    p(f"s_mov_b32 s{sSp}, {SPIN}")
    p(f"{tag}_nspin_l:")
    p(f"buffer_load_dwordx2 v[{vN}:{vN+1}], v{vC}, s[{sD}:{sD+3}], 0 offen sc1")
    p("s_waitcnt vmcnt(0)")
    p(f"v_readfirstlane_b32 s{sNon}, v{vN}"); p(f"v_readfirstlane_b32 s{sNon+1}, v{vN+1}")
    p(f"s_cmp_lg_u32 s{sNon}, 0"); p(f"s_cbranch_scc1 {tag}_nok")
    p(f"s_sub_u32 s{sSp}, s{sSp}, 1"); p(f"s_cmp_lg_u32 s{sSp}, 0"); p(f"s_cbranch_scc1 {tag}_nspin_l")
    p(f"s_branch {tag}_nok")
    p(f"{tag}_fspin:")
    p(f"s_mov_b32 s{sSp}, {SPIN}")
    FR = [vF, vX, vX+2, vX+4] if False else [vF, af, af+2, af+4]
    def poll(r): p(f"buffer_load_dwordx2 v[{r}:{r+1}], v{vFo}, s[{sWS}:{sWS+3}], s{sFo} offen sc1")
    def chk(r):
        p(f"v_cmp_ne_u32 vcc, s{sNon}, v{r}"); p(f"s_mov_b64 s[{sE}:{sE+1}], vcc")
        p(f"v_cmp_ne_u32 vcc, s{sNon+1}, v{r+1}"); p(f"s_or_b64 s[{sE}:{sE+1}], s[{sE}:{sE+1}], vcc")
        p(f"s_cmp_eq_u64 s[{sE}:{sE+1}], 0"); p(f"s_cbranch_scc1 {tag}_fexit")
    if w0poll and npoll > 1:
        R4 = [vP + 2*k for k in range(npoll)]
        for k in range(npoll - 1):
            poll(R4[k])
            if pslp: p(f"s_sleep {pslp}")
        p(f"{tag}_fspin_l:")
        for k in range(npoll):
            poll(R4[(k + npoll - 1) % npoll])
            p(f"s_waitcnt vmcnt({npoll - 1})")
            chk(R4[k])
            if pslp: p(f"s_sleep {pslp}")
        p(f"s_sub_u32 s{sSp}, s{sSp}, 1"); p(f"s_cmp_lg_u32 s{sSp}, 0"); p(f"s_cbranch_scc1 {tag}_fspin_l")
        p(f"{tag}_fexit:")
        p(f"s_branch {tag}_fok")
    else:
        p(f"{tag}_fspin_l:")
        poll(vF)
        p("s_waitcnt vmcnt(0)")
        chk(vF)
        p(f"s_sub_u32 s{sSp}, s{sSp}, 1"); p(f"s_cmp_lg_u32 s{sSp}, 0"); p(f"s_cbranch_scc1 {tag}_fspin_l")
        p(f"{tag}_fexit:")
        p(f"s_branch {tag}_fok")
    p(f"{tag}_done:")
    return dict(vgpr=nv, sgpr=S.n, lds=L3 + NS3*10240, stamps=st.names)
```

```python
import sys
sys.path.insert(0, 'dev')
from build import *
from build_exp1 import build2, emit_empty
from gen4 import *
from gen5 import *
ssc = "sc1"
def mk(path, k2=None, p1kw={}, k0kw={}):
    K = [("k0_kernel", emit_k0, dict(ssc=ssc, codepf=0x8800, **k0kw)),
      ("p1_kernel", emit_p1, dict(nfill2=4, sc=ssc, **p1kw)),
      ("km_kernel", emit_km, dict(ssc=ssc))]
    if k2 is None:
        K += [("p2_kernel", emit_p2, dict(D=7, bper=2, ssc=ssc)), ("p3_kernel", emit_p3, dict(ssc=ssc))]
    else:
        K += [("k2_kernel", emit_k2, dict(ssc=ssc, **k2))]
    build2(K, [k[0] for k in K], path)
if __name__ == "__main__":
    mk('a.s'); mk('b.s')
    mk('c.s', k2=dict(pslp=0))
    mk('d.s', k2=dict(pslp=0, npoll=1))
    mk('e.s', k2=dict(pslp=0, w0poll=False, flagst=3, pollst=4, chkst=6))
    mk('f.s', k2=dict(pslp=0, flagst=2, pollst=4, chkst=6))
```

```python
from asmlib import Prog
from gen import *
from gen2 import *

WS_NON = 0xD90000
WS_CG  = 0xE00000
WS_XG  = 0xE80000
WS_ZG  = 0xE90000
SPIN = 200000

def dpp_sum64_ops(v, t):
    L = []
    for d in ("quad_perm:[1,0,3,2]", "quad_perm:[2,3,0,1]", "row_half_mirror", "row_mirror"):
        L.append(f"v_add_f32_dpp v{v}, v{v}, v{v} {d} row_mask:0xf bank_mask:0xf")
    L += [f"v_mov_b32 v{t}, v{v}", f"v_permlane16_swap_b32 v{v}, v{t}", f"v_add_f32 v{v}, v{v}, v{t}",
          f"v_mov_b32 v{t}, v{v}", f"v_permlane32_swap_b32 v{v}, v{t}", f"v_add_f32 v{v}, v{v}, v{t}"]
    return L

def xstats_ops(vx, vD, vE, vQ, dst):
    L = []
    for j in range(5):
        L.append(f"v_and_b32 v{vx+5+j}, 0xffff0000, v{vx+j}"); L.append(f"v_lshlrev_b32 v{vx+j}, 16, v{vx+j}")
    L.append(f"v_add_f32 v{vD}, v{vx}, v{vx+1}"); L.append(f"v_add_f32 v{vE}, v{vx+2}, v{vx+3}")
    for j in range(4, 10, 2):
        L.append(f"v_add_f32 v{vD}, v{vD}, v{vx+j}"); L.append(f"v_add_f32 v{vE}, v{vE}, v{vx+j+1}")
    L.append(f"v_add_f32 v{vD}, v{vD}, v{vE}")
    L += dpp_sum64_ops(vD, vE)
    L.append(f"v_mul_f32 v{vD}, {hx(f2u(1/640))}, v{vD}")
    for j in range(10): L.append(f"v_sub_f32 v{vx+j}, v{vx+j}, v{vD}")
    L.append(f"v_mul_f32 v{vQ}, v{vx}, v{vx}"); L.append(f"v_mul_f32 v{vE}, v{vx+1}, v{vx+1}")
    for j in range(2, 10, 2):
        L.append(f"v_fmac_f32 v{vQ}, v{vx+j}, v{vx+j}"); L.append(f"v_fmac_f32 v{vE}, v{vx+j+1}, v{vx+j+1}")
    L.append(f"v_add_f32 v{vQ}, v{vQ}, v{vE}")
    L += dpp_sum64_ops(vQ, vE)
    L.append(f"v_mov_b32 v{vE}, {hx(f2u(1e-5))}"); L.append(f"v_fmac_f32 v{vE}, {hx(f2u(1/640))}, v{vQ}")
    L.append(f"v_rsq_f32 v{dst}, v{vE}")
    L.append(f"v_mul_f32 v{dst+1}, v{vD}, v{dst}"); L.append(f"v_sub_f32 v{dst+1}, 0, v{dst+1}")
    return L

def emit_p1x(p, tag="P1", prof=False, nfill1=8, nfill2=4, sc="", pw=0, ng=26, nc=37, codepf=0, touch=False, z2n=False, pfid=8, g0=6, nonb=2, npro=3, statpos=3):
    S = Alloc(4, 100, 's'); V = Alloc(1, 256, 'v')
    sX = S('srdX', 4); sWi = S('srdWi', 4); sWq = S('srdWq', 4); sWS = S('srdWS', 4); sD = S('srdD', 4); sP = S('srdP', 4)
    for r_, off in ((sWS, 80), (sX, 0), (sWi, 32), (sWq, 8), (sD, 72)):
        p(f"s_load_dwordx2 s[{r_}:{r_+1}], s[0:1], {off}")
    def fin(s_, size):
        p(f"s_mov_b32 s{s_+2}, {hx(size)}"); p(f"s_mov_b32 s{s_+3}, {SRD3}")
    sw = S('w'); sRb = S('rb'); sCg = S('cg'); sRg = S('rg'); sCh = S('ch'); sT0 = S('t0'); sT1 = S('t1'); sT2 = S('t2')
    sLA = S('LA'); sLB = S('LB'); sOX = S('oX'); sOW0 = S('oW0'); sOW1 = S('oW1'); sMb = S('mb'); sE = S('ex', 2)
    sC1 = S('c1'); sQo = S('qo'); sZ2o = S('z2o'); sJ = S('j'); sV1 = S('v1'); sV2 = S('v2'); sWSo = S('wso')
    sN = S('nonce', 2); sSp = S('spin'); sXG = S('xg'); sCG = S('cgo'); sSt = S('stride'); sXr = S('xrow')
    st = Stamps(p, S, prof)
    vL = V('lane'); vW = V('wrd'); vW2 = V('wrd2'); vDW = V('dmaW'); vDQ = V('dmaQ'); vSt = V('xst', 2); vCs = V('cs'); vC2 = V('c2')
    vZ1 = V('z1o'); vQo = V('qoff'); vSw = V('stw'); vSr = V('str'); vZs = V('zso'); vA = V('a'); vB = V('b'); vL0 = V('l0')
    T = V('T', 8, 4)
    WF = V('wf', 16, 4)
    AZ1 = V('az1', 16, 4); AZ2 = V('az2', 16, 4); AQ = V('aq', 16, 4)
    X = V('x', 160, 4)
    vXa = [AQ + j for j in range(4)]; vDX0 = AQ + 4; vDX1 = AQ + 5
    xr = X + 120; wl = X + 132; ca = X + 144; vPo = X + 148; XP = X + 152; CP = X + 156
    pA = X + 112; pB = X + 114; pC = X + 116; vNo = X + 118; vPf = X + 119; vD_ = X + 130; vE_ = X + 131; vQ_ = X + 149
    GX = AQ + 4; GC = [T, T + 4, AQ + 8, AQ + 12]
    TBL = 131072; STG = TBL + 1024
    LDS = STG + 8*2048
    NONL = STG
    st('start')
    p(f"s_memrealtime s[{sN}:{sN+1}]")
    p(f"v_lshrrev_b32 v{vA}, 6, v0"); p(f"v_and_b32 v{vL}, 63, v0"); p(f"v_readfirstlane_b32 s{sw}, v{vA}")
    if codepf:
        p(f"s_getpc_b64 s[{sE}:{sE+1}]")
        p(f"s_and_b32 s{sE}, s{sE}, 0xffffff00")
        p(f"v_lshlrev_b32 v{vA}, 7, v0")
        p(f"s_cmp_lt_u32 s2, {pfid}"); p(f"s_cselect_b64 exec, -1, 1")
        for k in range((codepf + 65535)//65536):
            if k: p(f"v_add_u32 v{vA}, 0x10000, v{vA}")
            p(f"v_min_u32 v{vB}, {codepf - 4}, v{vA}")
            p(f"global_load_dword v{vPf}, v{vB}, s[{sE}:{sE+1}]")
        p("s_mov_b64 exec, -1")
    p(f"s_and_b32 s{sT0}, s2, 7"); p(f"s_lshr_b32 s{sT1}, s2, 3")
    p(f"s_and_b32 s{sRb}, s{sT0}, 1"); p(f"s_lshl_b32 s{sRb}, s{sRb}, 3"); p(f"s_and_b32 s{sT2}, s{sT1}, 7"); p(f"s_add_u32 s{sRb}, s{sRb}, s{sT2}")
    p(f"s_lshr_b32 s{sCg}, s{sT0}, 1"); p(f"s_lshl_b32 s{sCg}, s{sCg}, 2"); p(f"s_lshr_b32 s{sT2}, s{sT1}, 3"); p(f"s_add_u32 s{sCg}, s{sCg}, s{sT2}")
    p(f"s_lshl_b32 s{sXG}, s{sRb}, 7"); p(f"s_lshl_b32 s{sT0}, s{sCg}, 3"); p(f"s_add_u32 s{sXG}, s{sXG}, s{sT0}"); p(f"s_add_u32 s{sXG}, s{sXG}, s{sw}")
    p(f"s_mul_i32 s{sXr}, s{sXG}, 1280")
    p(f"s_lshl_b32 s{sXG}, s{sXG}, 4"); p(f"s_add_u32 s{sXG}, s{sXG}, {WS_XG}")
    p(f"v_min_u32 v{vL0}, 1, v{vL}"); p(f"v_lshlrev_b32 v{vL0}, 31, v{vL0}")
    p(f"s_cmp_eq_u32 s{sw}, 0"); p(f"s_cselect_b32 s{sT0}, 0, {hx(OOB)}"); p(f"v_or_b32 v{vPo}, s{sT0}, v{vL0}")
    p(f"s_cmp_eq_u32 s2, 0"); p(f"s_cselect_b32 s{sT0}, 0, {hx(OOB)}"); p(f"v_or_b32 v{vNo}, s{sT0}, v{vPo}")
    vXo_ = X + 142; vPo_ = X + 143
    p(f"v_lshlrev_b32 v{vXo_}, 2, v{vL}")
    p(f"s_cmp_eq_u32 s{sCg}, 15"); p(f"s_cbranch_scc1 {tag}_aux")
    p(f"s_and_b32 s{sRg}, s{sw}, 3"); p(f"s_lshr_b32 s{sCh}, s{sw}, 2")
    p(f"s_min_u32 s{sLA}, s{sCg}, 13"); p(f"s_add_u32 s{sLB}, s{sCg}, 14"); p(f"s_cmp_lt_u32 s{sCg}, 13"); p(f"s_cselect_b32 s{sLB}, s{sLB}, 13")
    p(f"v_lshrrev_b32 v{T+2}, 4, v{vL}"); p(f"v_and_b32 v{T+3}, 7, v{vL}"); p(f"v_xor_b32 v{T+2}, v{T+2}, v{T+3}"); p(f"v_lshlrev_b32 v{T+2}, 4, v{T+2}")
    p(f"v_lshrrev_b32 v{T+3}, 3, v{vL}"); p(f"v_mul_u32_u24 v{T}, 1280, v{T+3}"); p(f"v_add_u32 v{vDX0}, v{T+2}, v{T}")
    p(f"v_xor_b32 v{vDX1}, 64, v{T+2}"); p(f"v_add_u32 v{vDX1}, v{vDX1}, v{T}"); p(f"v_add_u32 v{vDX1}, {10240-1024}, v{vDX1}")
    p(f"v_lshrrev_b32 v{T+2}, 2, v{vL}"); p(f"v_and_b32 v{T+2}, 4, v{T+2}"); p(f"v_and_b32 v{T+1}, 7, v{vL}"); p(f"v_xor_b32 v{T+2}, v{T+2}, v{T+1}"); p(f"v_lshlrev_b32 v{T+2}, 4, v{T+2}")
    p(f"v_mul_u32_u24 v{T}, 3456, v{T+3}"); p(f"v_add_u32 v{vDW}, v{T+2}, v{T}")
    p(f"v_mul_u32_u24 v{T}, 3840, v{T+3}"); p(f"v_add_u32 v{vDQ}, v{T+2}, v{T}")
    p(f"s_lshl_b32 s{sT0}, s{sRb}, 7"); p(f"s_lshl_b32 s{sT1}, s{sw}, 4"); p(f"s_add_u32 s{sT0}, s{sT0}, s{sT1}"); p(f"s_mul_i32 s{sOX}, s{sT0}, 1280")
    p(f"s_cmp_eq_u32 s{sCh}, 0"); p(f"s_cselect_b32 s{sT0}, s{sLA}, s{sLB}"); p(f"s_lshl_b32 s{sT0}, s{sT0}, 7")
    p(f"s_mul_i32 s{sT1}, s{sRg}, {16*3456}"); p(f"s_add_u32 s{sOW0}, s{sT0}, s{sT1}"); p(f"s_add_u32 s{sOW1}, s{sOW0}, {8*3456 - 1024}")
    p(f"s_lshl_b32 s{sMb}, s{sw}, 11")
    p(f"v_mov_b32 v{pA}, 0")
    p("s_waitcnt lgkmcnt(0)")
    st('karg')
    fin(sX, 2048*1280); fin(sWi, 640*3456); fin(sWq, 640*3840); fin(sWS, WS_SIZE); fin(sD, 256)
    def nonce_store():
        p(f"s_or_b32 s{sN}, s{sN}, 1")
        p(f"v_mov_b32 v{pC}, s{sN}"); p(f"v_mov_b32 v{pC+1}, s{sN+1}")
        p(f"buffer_store_dwordx2 v[{pC}:{pC+1}], v{vNo}, s[{sD}:{sD+3}], 0 offen sc1")
        p(f"s_mov_b32 s{sE}, {WS_NON}")
        p(f"buffer_store_dwordx2 v[{pC}:{pC+1}], v{vNo}, s[{sWS}:{sWS+3}], s{sE} offen")
    def poll(r): return f"buffer_load_dwordx2 v[{r}:{r+1}], v{vPo}, s[{sD}:{sD+3}], 0 offen sc1"
    def xrow_loads():
        for j in range(5): p(f"buffer_load_dword v{xr+j}, v{vXo_}, s[{sX}:{sX+3}], s{sXr} offen offset:{256*j}")
    def dmaX(i):
        return [f"s_add_u32 m0, s{sMb}, {(i % 4)*16384}",
                f"buffer_load_dwordx4 v{vDX0}, s[{sX}:{sX+3}], s{sOX} offen lds",
                f"buffer_load_dwordx4 v{vDX1}, s[{sX}:{sX+3}], s{sOX} offen offset:1024 lds",
                f"s_add_u32 s{sOX}, s{sOX}, 128"]
    def dmaW(i):
        return [f"s_add_u32 m0, s{sMb}, {(4 + i % 4)*16384}",
                f"buffer_load_dwordx4 v{vDW}, s[{sWi}:{sWi+3}], s{sOW0} offen lds",
                f"buffer_load_dwordx4 v{vDW}, s[{sWi}:{sWi+3}], s{sOW1} offen offset:1024 lds",
                f"s_add_u32 s{sOW0}, s{sOW0}, {64*3456}", f"s_add_u32 s{sOW1}, s{sOW1}, {64*3456}"]
    P2SLOT = [2, 6, 3, 7, 0, 4, 1, 5, 2, 6]
    sOQ0 = S('oQ0'); sOQ1 = S('oQ1')
    def dmaQ(t):
        L = [f"s_add_u32 m0, s{sMb}, {P2SLOT[t]*16384}",
             f"buffer_load_dwordx4 v{vDQ}, s[{sWq}:{sWq+3}], s{sOQ0} offen lds",
             f"buffer_load_dwordx4 v{vDQ}, s[{sWq}:{sWq+3}], s{sOQ1} offen offset:1024 lds"]
        d = 128*3840 if t != 4 else 128 - 4*128*3840
        L += [f"s_add_u32 s{sOQ0}, s{sOQ0}, {hx(d)}", f"s_add_u32 s{sOQ1}, s{sOQ1}, {hx(d)}"]
        return L
    def dma_stage(i):
        for l in dmaX(i) + dmaW(i): p(l)
        p(f"@mark st{i}")
    def stat_loads():
        p(f"s_lshr_b32 s{sT0}, s{sw}, 1")
        p(f"s_lshl_b32 s{sT1}, s{sCg}, 1"); p(f"s_add_u32 s{sT1}, s{sT1}, s{sT0}"); p(f"s_sub_u32 s{sT1}, s{sT1}, 2")
        p(f"s_cmp_eq_u32 s{sT0}, 0"); p(f"s_cselect_b32 s{sT1}, s{sLA}, s{sT1}")
        p(f"s_cmp_eq_u32 s{sT0}, 1"); p(f"s_cselect_b32 s{sT1}, s{sLB}, s{sT1}")
        p(f"s_lshl_b32 s{sT1}, s{sT1}, 7"); p(f"s_and_b32 s{sE}, s{sw}, 1"); p(f"s_lshl_b32 s{sE}, s{sE}, 6"); p(f"s_add_u32 s{sT1}, s{sT1}, s{sE}")
        p(f"s_mov_b32 s{sE}, 3840"); p(f"s_cmp_lt_u32 s{sT0}, 2"); p(f"s_cselect_b32 s{sSt}, 3456, s{sE}")
        p(f"s_mul_i32 s{sE}, s{sRb}, 40"); p(f"s_mul_i32 s{sE}, s{sE}, s{sSt}"); p(f"s_add_u32 s{sCG}, s{sT1}, s{sE}")
        p(f"v_lshrrev_b32 v{vPo_}, 3, v{vL}"); p(f"v_mul_lo_u32 v{vPo_}, v{vPo_}, s{sSt}"); p(f"v_and_b32 v{T}, 7, v{vL}"); p(f"v_lshlrev_b32 v{T}, 3, v{T}"); p(f"v_add_u32 v{vPo_}, v{vPo_}, v{T}")
        xrow_loads()
        p(f"s_cmp_lt_u32 s{sw}, 4")
        for k in range(3): p(f"s_cselect_b32 s{sP+k}, s{sWi+k}, s{sWq+k}")
        p(f"s_mov_b32 s{sP+3}, {SRD3}")
        p(f"s_lshl_b32 s{sSt}, s{sSt}, 3")
        for i in range(5):
            p(f"buffer_load_dwordx2 v[{wl+2*i}:{wl+2*i+1}], v{vPo_}, s[{sP}:{sP+3}], s{sCG} offen")
            if i < 4: p(f"s_add_u32 s{sCG}, s{sCG}, s{sSt}")
        p(f"s_lshl_b32 s{sCG}, s{sCg}, 3"); p(f"s_add_u32 s{sCG}, s{sCG}, s{sw}"); p(f"s_lshl_b32 s{sCG}, s{sCG}, 12"); p(f"s_add_u32 s{sCG}, s{sCG}, {WS_CG}")
    sRow0 = S('row0'); sZso = S('zso')
    def setupA():
        p(f"v_and_b32 v{vA}, 31, v{vL}"); p(f"v_lshrrev_b32 v{vB}, 1, v{vA}"); p(f"v_and_b32 v{vB}, 7, v{vB}"); p(f"v_lshrrev_b32 v{T}, 5, v{vL}")
        p(f"v_xor_b32 v{vB}, v{vB}, v{T}"); p(f"v_lshlrev_b32 v{vB}, 4, v{vB}"); p(f"v_lshlrev_b32 v{vA}, 7, v{vA}"); p(f"v_add_u32 v{vA}, v{vA}, v{vB}")
        p(f"s_lshl_b32 s{sT0}, s{sRg}, 12"); p(f"v_add_u32 v{vXa[0]}, s{sT0}, v{vA}")
        for j in range(1, 4): p(f"v_xor_b32 v{vXa[j]}, {j << 5}, v{vXa[0]}")
        p(f"v_lshrrev_b32 v{vA}, 5, v{vL}"); p(f"v_lshlrev_b32 v{vA}, 3, v{vA}"); p(f"v_bfe_u32 v{vB}, v{vL}, 2, 2"); p(f"v_add_u32 v{vA}, v{vA}, v{vB}"); p(f"v_lshlrev_b32 v{vA}, 7, v{vA}")
        p(f"v_lshrrev_b32 v{vB}, 1, v{vB}"); p(f"v_lshlrev_b32 v{vB}, 6, v{vB}")
        p(f"v_bfe_u32 v{T}, v{vL}, 4, 1"); p(f"v_lshlrev_b32 v{T}, 5, v{T}"); p(f"v_and_b32 v{T+1}, 3, v{vL}"); p(f"v_lshlrev_b32 v{T+1}, 3, v{T+1}"); p(f"v_add_u32 v{T}, v{T}, v{T+1}")
        p(f"s_lshl_b32 s{sT0}, s{sCh}, 6"); p(f"v_add_u32 v{T}, s{sT0}, v{T}"); p(f"v_xor_b32 v{T}, v{T}, v{vB}"); p(f"v_add_u32 v{vW}, v{vA}, v{T}")
        p(f"v_add_u32 v{vW2}, 0x10000, v{vW}")
    def setupB():
        p(f"s_lshl_b32 s{sT0}, s{sRb}, 7"); p(f"s_lshl_b32 s{sT1}, s{sRg}, 5"); p(f"s_add_u32 s{sRow0}, s{sT0}, s{sT1}")
        p(f"s_mul_i32 s{sOQ0}, s{sw}, {16*3840}"); p(f"s_lshl_b32 s{sT0}, s{sCg}, 8"); p(f"s_add_u32 s{sOQ0}, s{sOQ0}, s{sT0}"); p(f"s_add_u32 s{sOQ1}, s{sOQ0}, {8*3840 - 1024}")
        p(f"v_lshrrev_b32 v{vA}, 5, v{vL}"); p(f"v_lshlrev_b32 v{vA}, 4, v{vA}"); p(f"s_lshl_b32 s{sT0}, s{sCh}, 7"); p(f"s_add_u32 s{sT0}, s{sT0}, {TBL}"); p(f"v_add_u32 v{vCs}, s{sT0}, v{vA}")
        p(f"s_mov_b32 s{sC1}, {hx(f2u(C1))}"); p(f"v_mov_b32 v{vC2}, {hx(f2u(C2))}")
        p(f"s_lshl_b32 s{sT0}, s{sCg}, 1"); p(f"s_add_u32 s{sT0}, s{sT0}, s{sCh}")
        p(f"s_cmp_le_u32 s{sT0}, 26"); p(f"s_cselect_b32 s{sV1}, 0, {hx(OOB)}")
        p(f"s_cmp_le_u32 s{sT0}, 25"); p(f"s_cselect_b32 s{sV2}, 0, {hx(OOB)}"); p(f"s_cmp_eq_u32 s{sT0}, 27"); p(f"s_cselect_b32 s{sV2}, 0, s{sV2}")
        p(f"s_lshl_b32 s{sT0}, s{sLA}, 1"); p(f"s_add_u32 s{sT0}, s{sT0}, s{sCh}"); p(f"s_lshl_b32 s{sT0}, s{sT0}, 10")
        p(f"s_lshr_b32 s{sT1}, s{sRow0}, 4"); p(f"s_mul_i32 s{sT1}, s{sT1}, {54*512}"); p(f"s_add_u32 s{sT0}, s{sT0}, s{sT1}"); p(f"s_or_b32 s{sT0}, s{sT0}, s{sV1}")
        p(f"v_bfe_u32 v{vA}, v{vL}, 4, 1"); p(f"v_mul_u32_u24 v{vA}, {54*512}, v{vA}"); p(f"v_lshrrev_b32 v{vB}, 5, v{vL}"); p(f"v_lshlrev_b32 v{vB}, 8, v{vB}"); p(f"v_add_u32 v{vA}, v{vA}, v{vB}")
        p(f"v_and_b32 v{vB}, 15, v{vL}"); p(f"v_lshlrev_b32 v{vB}, 4, v{vB}"); p(f"v_add_u32 v{vA}, v{vA}, v{vB}"); p(f"v_add_u32 v{vZ1}, s{sT0}, v{vA}")
    def setupC():
        p(f"s_lshl_b32 s{sJ}, s{sLB}, 1"); p(f"s_add_u32 s{sJ}, s{sJ}, s{sCh}"); p(f"s_sub_u32 s{sJ}, s{sJ}, 27"); p(f"s_max_i32 s{sJ}, s{sJ}, 0")
        p(f"s_lshr_b32 s{sT1}, s{sRow0}, 5"); p(f"s_mul_i32 s{sZ2o}, s{sT1}, {54*1024}"); p(f"s_lshl_b32 s{sT0}, s{sJ}, 11"); p(f"s_add_u32 s{sZ2o}, s{sZ2o}, s{sT0}")
        p(f"s_add_u32 s{sZ2o}, s{sZ2o}, {WS_Z2R}")
        p(f"s_mul_i32 s{sT1}, s{sT1}, 27"); p(f"s_add_u32 s{sT1}, s{sT1}, s{sJ}"); p(f"s_lshl_b32 s{sT1}, s{sT1}, 8"); p(f"s_or_b32 s{sT1}, s{sT1}, s{sV2}")
        p(f"v_lshlrev_b32 v{vA}, 3, v{vL}"); p(f"v_lshrrev_b32 v{vB}, 5, v{vL}"); p(f"v_lshlrev_b32 v{vB}, 31, v{vB}"); p(f"v_or_b32 v{vA}, v{vA}, v{vB}"); p(f"v_or_b32 v{vA}, s{sV2}, v{vA}")
        p(f"s_and_b32 s{sT1}, s{sT1}, 0x7fffffff"); p(f"v_add_u32 v{vZs}, s{sT1}, v{vA}")
        p(f"v_and_b32 v{vA}, 31, v{vL}"); p(f"v_bfe_u32 v{vB}, v{vL}, 1, 2"); p(f"v_lshlrev_b32 v{vB}, 4, v{vB}"); p(f"v_lshlrev_b32 v{vA}, 6, v{vA}"); p(f"v_add_u32 v{vA}, v{vA}, v{vB}")
        p(f"v_lshrrev_b32 v{vB}, 5, v{vL}"); p(f"v_lshlrev_b32 v{vB}, 3, v{vB}"); p(f"v_add_u32 v{vA}, v{vA}, v{vB}")
        p(f"s_lshl_b32 s{sT0}, s{sw}, 11"); p(f"s_add_u32 s{sT0}, s{sT0}, {STG}"); p(f"v_add_u32 v{vSw}, s{sT0}, v{vA}")
        p(f"v_lshrrev_b32 v{vA}, 4, v{vL}"); p(f"v_lshlrev_b32 v{vA}, 3, v{vA}"); p(f"v_bfe_u32 v{vB}, v{vL}, 2, 2"); p(f"v_add_u32 v{vA}, v{vA}, v{vB}"); p(f"v_lshlrev_b32 v{vA}, 6, v{vA}")
        p(f"v_lshrrev_b32 v{vB}, 1, v{vB}"); p(f"v_bfe_u32 v{T}, v{vL}, 1, 1"); p(f"v_xor_b32 v{vB}, v{vB}, v{T}"); p(f"v_lshlrev_b32 v{vB}, 4, v{vB}"); p(f"v_add_u32 v{vA}, v{vA}, v{vB}")
        p(f"v_and_b32 v{vB}, 1, v{vL}"); p(f"v_lshlrev_b32 v{vB}, 3, v{vB}"); p(f"v_add_u32 v{vA}, v{vA}, v{vB}"); p(f"v_add_u32 v{vSr}, s{sT0}, v{vA}")
        p(f"v_lshrrev_b32 v{vA}, 5, v{vL}"); p(f"s_lshl_b32 s{sT0}, s{sCh}, 3"); p(f"v_add_u32 v{vA}, s{sT0}, v{vA}"); p(f"v_lshlrev_b32 v{vA}, 14, v{vA}")
        p(f"v_and_b32 v{vB}, 31, v{vL}"); p(f"v_add_u32 v{vB}, s{sRow0}, v{vB}"); p(f"v_lshlrev_b32 v{vB}, 3, v{vB}"); p(f"v_add_u32 v{vQo}, v{vA}, v{vB}")
        p(f"s_lshl_b32 s{sQo}, s{sCg}, 19"); p(f"s_add_u32 s{sQo}, s{sQo}, {WS_QKV}")
        p(f"s_mov_b32 s{sWSo}, {WS_Z1P}")
        p(f"s_mov_b32 s{sZso}, {WS_ZST}")
    p("@auto on")
    nonce_store()
    p(poll(pA))
    dma_stage(0)
    setupA()
    dma_stage(1)
    if statpos == 2: stat_loads()
    setupB()
    if npro >= 3: dma_stage(2)
    if statpos == 3: stat_loads()
    setupC()
    if npro >= 4: dma_stage(3)
    if statpos == 4: stat_loads()
    p(poll(pB))
    st('dma')
    def nonce_bcast():
        p(f"v_or_b32 v{pA}, v{pA}, v{pB}"); p(f"v_or_b32 v{pA+1}, v{pA+1}, v{pB+1}")
        if nonb > 0:
            p(f"v_or_b32 v{pA}, v{pA}, v{pC}"); p(f"v_or_b32 v{pA+1}, v{pA+1}, v{pC+1}")
        p(f"v_readfirstlane_b32 s{sN}, v{pA}"); p(f"v_readfirstlane_b32 s{sN+1}, v{pA+1}")
        p(f"s_cmp_lg_u32 s{sw}, 0"); p(f"s_cbranch_scc1 {tag}_nonw")
        p(f"s_cmp_eq_u32 s{sN}, 0"); p(f"s_cbranch_scc1 {tag}_nspin")
        p(f"{tag}_nok:")
        p(f"v_mov_b32 v{pA}, s{sN}"); p(f"v_mov_b32 v{pA+1}, s{sN+1}"); p(f"v_mov_b32 v{pB}, {NONL}")
        p(f"@raw ds_write_b64 v{pB}, v[{pA}:{pA+1}]")
        p(f"{tag}_nonw:")

    def wbase(slot): return (vW2 if slot >= 4 else vW), (slot % 4)*16384
    def rd1(n):
        i, j = divmod(n, 4)
        L = [f"ds_read_b128 v[{X+4*n}:{X+4*n+3}], v{vXa[j]} offset:{(i % 4)*16384}"]
        vb, o = wbase(4 + i % 4)
        for blk in range(2):
            f = WF + (n & 1)*8 + blk*4
            for rd in range(2):
                L.append(f"ds_read_b64_tr_b16 v[{f+2*rd}:{f+2*rd+1}], v{vb} offset:{o + blk*8192 + j*2048 + rd*512}")
        return L
    def mf1(n):
        L = []
        for blk, acc in enumerate((AZ1, AZ2)):
            f = WF + (n & 1)*8 + blk*4
            c = "0" if n == 0 else f"v[{acc}:{acc+15}]"
            L.append(f"v_mfma_f32_32x32x16_bf16 v[{acc}:{acc+15}], v[{f}:{f+3}], v[{X+4*n}:{X+4*n+3}], {c}")
        return L
    def rd2(m):
        t, j = divmod(m, 8)
        vb, o = wbase(P2SLOT[t])
        f = WF + (m % 3)*4
        return [f"ds_read_b64_tr_b16 v[{f+2*rd}:{f+2*rd+1}], v{vb} offset:{o + j*2048 + rd*512}" for rd in range(2)]
    def mf2(m):
        acc = AQ if m < 40 else AZ1
        n = m % 40
        f = WF + (m % 3)*4
        c = "0" if n == 0 else f"v[{acc}:{acc+15}]"
        return f"v_mfma_f32_32x32x16_bf16 v[{acc}:{acc+15}], v[{f}:{f+3}], v[{X+4*n}:{X+4*n+3}], {c}"
    def boundary(n_stage):
        if n_stage == nonb: nonce_bcast()
        p(f"@waitvm st{n_stage}")
        p("s_waitcnt lgkmcnt(0)")
        p("s_barrier")
        D = []
        n = n_stage
        if n == 0:
            D = [(dmaX(i) + dmaW(i), f"st{i}") for i in range(npro, 4)]
            if nonb > 0: D.append(([poll(pC)], "pc"))
        elif 1 <= n <= 6: D = [(dmaX(n+3) + dmaW(n+3), f"st{n+3}")]
        elif n == 7: D = [(dmaQ(0), "st10"), (dmaQ(1), "st11")]
        elif n == 8: D = [(dmaQ(2), "st12"), (dmaQ(3), "st13")]
        elif n == 9: D = [(dmaQ(4), "st14"), (dmaQ(5), "st15")]
        elif n == 10: D = [(dmaQ(6), "st16"), (dmaQ(7), "st17")]
        elif n == 11: D = [(dmaQ(8), "st18")]
        elif n == 12: D = [(dmaQ(9), "st19")]
        out = []
        for L, mk in D: out += L + [f"@mark {mk}"]
        return out
    def g_pub():
        L1 = xstats_ops(xr, vD_, vE_, vQ_, XP)
        L = []
        tt = [T, T+1, T+2, T+3]; o1 = T + 4; o2 = T + 5
        for i in range(5):
            for c in range(4):
                src = wl + 2*i + c//2
                dst = ca + c if i == 0 else tt[c]
                L.append(f"v_lshlrev_b32 v{dst}, 16, v{src}" if c % 2 == 0 else f"v_and_b32 v{dst}, 0xffff0000, v{src}")
            if i:
                for c in range(4): L.append(f"v_add_f32 v{ca+c}, v{ca+c}, v{tt[c]}")
        L += [f"v_permlane32_swap_b32 v{ca}, v{ca+2}", f"v_and_b32 v{o1}, 7, v{vL}", f"v_permlane32_swap_b32 v{ca+1}, v{ca+3}", f"v_lshlrev_b32 v{o1}, 5, v{o1}",
              f"v_add_f32 v{CP}, v{ca}, v{ca+2}", f"v_add_f32 v{CP+1}, v{ca+1}, v{ca+3}",
              f"v_lshrrev_b32 v{o2}, 5, v{vL}",
              f"v_mov_b32 v{ca}, v{CP}", f"v_mov_b32 v{ca+1}, v{CP+1}",
              f"v_lshlrev_b32 v{o2}, 4, v{o2}", f"v_add_u32 v{o1}, v{o1}, v{o2}",
              f"v_permlane16_swap_b32 v{CP}, v{ca}", f"v_permlane16_swap_b32 v{CP+1}, v{ca+1}",
              f"v_and_b32 v{o2}, 0x18, v{vL}",
              f"v_add_f32 v{CP}, v{CP}, v{ca}", f"v_add_f32 v{CP+1}, v{CP+1}, v{ca+1}",
              f"v_min_u32 v{o2}, 1, v{o2}", f"v_lshlrev_b32 v{o2}, 31, v{o2}",
              f"v_add_f32_dpp v{CP}, v{CP}, v{CP} row_ror:8 row_mask:0xf bank_mask:0xf", f"v_add_f32_dpp v{CP+1}, v{CP+1}, v{CP+1} row_ror:8 row_mask:0xf bank_mask:0xf",
              f"v_or_b32 v{o1}, v{o1}, v{o2}"]
        M = []
        while L1 or L:
            if L1: M.append(L1.pop(0))
            if L: M.append(L.pop(0))
        M += ["#NON",
              f"v_mov_b32 v{T+6}, {NONL}", f"ds_read_b64 v[{XP+2}:{XP+3}], v{T+6}",
              f"s_lshl_b32 s{sT0}, s{sRb}, 8", f"s_add_u32 s{sT0}, s{sT0}, s{sCG}",
              f"v_mov_b32 v{CP+2}, v{XP+2}", f"v_mov_b32 v{CP+3}, v{XP+3}",
              f"buffer_store_dwordx4 v[{XP}:{XP+3}], v{vL0}, s[{sWS}:{sWS+3}], s{sXG} offen sc1",
              f"buffer_store_dwordx4 v[{CP}:{CP+3}], v{o1}, s[{sWS}:{sWS+3}], s{sT0} offen sc1",
              f"v_readfirstlane_b32 s{sN}, v{XP+2}", f"v_readfirstlane_b32 s{sN+1}, v{XP+3}"]
        return M
    def gather_loads():
        L = [f"buffer_load_dwordx4 v[{GX}:{GX+3}], v{vA}, s[{sWS}:{sWS+3}], s{sXG} offen sc1"]
        for i in range(4): L.append(f"buffer_load_dwordx4 v[{GC[i]}:{GC[i]+3}], v{vB}, s[{sWS}:{sWS+3}], s{sCG} offen offset:{1024*i} sc1")
        return L
    def g_gat():
        return [f"v_and_b32 v{vA}, 31, v{vL}", f"v_lshlrev_b32 v{vA}, 4, v{vA}", f"v_lshlrev_b32 v{vB}, 4, v{vL}",
                f"s_lshl_b32 s{sXG}, s{sRow0}, 4", f"s_add_u32 s{sXG}, s{sXG}, {WS_XG}"] + gather_loads()
    def chk_ops(regs, first=True):
        L = []
        for k, r in enumerate(regs):
            L.append(f"v_cmp_ne_u64 vcc, s[{sN}:{sN+1}], v[{r+2}:{r+3}]")
            L.append(f"s_mov_b64 s[{sE}:{sE+1}], vcc" if k == 0 else f"s_or_b64 s[{sE}:{sE+1}], s[{sE}:{sE+1}], vcc")
        L.append(f"s_cmp_lg_u64 s[{sE}:{sE+1}], 0")
        return L
    def g_con():
        L = chk_ops([GX] + GC) + [f"s_cbranch_scc1 {tag}_gspin", f"{tag}_gok:",
             f"v_mov_b32 v{vSt}, v{GX}", f"v_mov_b32 v{vSt+1}, v{GX+1}",
             f"v_add_f32 v{T}, v{T}, v{T+4}", f"v_add_f32 v{T+1}, v{T+1}, v{T+5}",
             f"v_add_f32 v{AQ+8}, v{AQ+8}, v{AQ+12}", f"v_add_f32 v{AQ+9}, v{AQ+9}, v{AQ+13}",
             f"v_add_f32 v{T}, v{T}, v{AQ+8}", f"v_add_f32 v{T+1}, v{T+1}, v{AQ+9}",
             f"v_and_b32 v{vA}, 15, v{vL}", f"v_lshlrev_b32 v{vA}, 3, v{vA}", f"v_bfe_u32 v{vB}, v{vL}, 4, 1",
             f"v_permlane16_swap_b32 v{T}, v{T+1}",
             f"v_lshl_add_u32 v{vA}, v{vB}, 2, v{vA}", f"s_lshl_b32 s{sT0}, s{sw}, 7", f"s_add_u32 s{sT0}, s{sT0}, {TBL}",
             f"v_add_f32 v{T}, v{T}, v{T+1}", f"v_add_u32 v{vA}, s{sT0}, v{vA}",
             f"v_mov_b32 v{T+1}, v{T}", f"v_permlane32_swap_b32 v{T}, v{T+1}", f"v_add_f32 v{T}, v{T}, v{T+1}",
             f"ds_write_b32 v{vA}, v{T}"]
        return L
    rstd, nm = vSt, vSt + 1
    def norm_ops(acc, seg, rp, t):
        L = []
        for c in range(4): L.append(f"v_mul_f32 v{t+c}, v{t+c}, v{nm}")
        for c in range(4): L.append(f"v_fma_f32 v{acc+4*rp+c}, v{acc+4*rp+c}, v{rstd}, v{t+c}")
        return L
    def csread(seg, rp, t): return f"ds_read_b128 v[{t}:{t+3}], v{vCs} offset:{seg*256 + rp*32}"
    def e_z1():
        L = [csread(0, 0, T), csread(0, 1, T+4)]
        for rp in range(4):
            t = T + 4*(rp & 1)
            L += norm_ops(AZ1, 0, rp, t)
            if rp < 2: L.append(csread(0, rp+2, t))
            d = AZ1 + (0 if rp < 2 else 8) + 2*(rp & 1)
            L.append(f"v_cvt_pk_bf16_f32 v{d}, v{AZ1+4*rp}, v{AZ1+4*rp+1}"); L.append(f"v_cvt_pk_bf16_f32 v{d+1}, v{AZ1+4*rp+2}, v{AZ1+4*rp+3}")
            if rp & 1:
                b = AZ1 + (0 if rp < 2 else 8)
                L.append(f"buffer_store_dwordx4 v[{b}:{b+3}], v{vZ1}, s[{sWS}:{sWS+3}], s{sWSo} offen offset:{512*(rp >> 1)} {sc}")
        return L
    vSum = vA; vSq = vB
    def e_z2():
        L = [csread(1, 0, T)]
        g = T + 4
        for rp in range(4):
            L += norm_ops(AZ2, 1, rp, T)
            if rp < 3: L.append(csread(1, rp+1, T))
            a = AZ2 + 4*rp
            steps = [gelu_ops(a+c, g+c, sC1, vC2) for c in range(4)]
            for k in range(7):
                for c in range(4): L.append(steps[c][k])
            for c in range(4):
                if rp == 0 and c == 0:
                    L.append(f"v_mov_b32 v{vSum}, v{a}"); L.append(f"v_mul_f32 v{vSq}, v{a}, v{a}")
                else:
                    L.append(f"v_add_f32 v{vSum}, v{vSum}, v{a+c}"); L.append(f"v_fmac_f32 v{vSq}, v{a+c}, v{a+c}")
            d = AZ2 + 2*rp
            L.append(f"v_cvt_pk_bf16_f32 v{d}, v{a}, v{a+1}"); L.append(f"v_cvt_pk_bf16_f32 v{d+1}, v{a+2}, v{a+3}")
            if rp == 0: L.append(f"ds_write_b64 v{vSw}, v[{d}:{d+1}]")
            else:
                L.append(f"v_xor_b32 v{g}, {rp << 4}, v{vSw}"); L.append(f"ds_write_b64 v{g}, v[{d}:{d+1}]")
        L += [f"v_mov_b32 v{T}, v{vSum}", f"v_mov_b32 v{T+1}, v{vSq}", f"v_permlane32_swap_b32 v{vSum}, v{T}", f"v_permlane32_swap_b32 v{vSq}, v{T+1}",
              f"v_add_f32 v{T+2}, v{vSum}, v{T}", f"v_add_f32 v{T+3}, v{vSq}, v{T+1}",
              f"buffer_store_dwordx2 v[{T+2}:{T+3}], v{vZs}, s[{sWS}:{sWS+3}], s{sZso} offen {sc}"]
        for u in range(2):
            d = AZ2 + 8 + 4*u
            for rd in range(2):
                L.append(f"ds_read_b64_tr_b16 v[{d+2*rd}:{d+2*rd+1}], v{vSr} offset:{rd*256 + (u ^ rd)*32}")
        L.append(f"v_lshlrev_b32 v{T+4}, 4, v{vL}"); L.append(f"v_or_b32 v{T+4}, s{sV2}, v{T+4}")
        for u in range(2):
            d = AZ2 + 8 + 4*u
            L.append(f"buffer_store_dwordx4 v[{d}:{d+3}], v{T+4}, s[{sWS}:{sWS+3}], s{sZ2o} offen offset:{1024*u} {sc}")
        return L
    def e_q(acc, seg):
        L = [csread(seg, 0, T), csread(seg, 1, T+4)]
        for rp in range(4):
            t = T + 4*(rp & 1)
            L += norm_ops(acc, seg, rp, t)
            if rp < 2: L.append(csread(seg, rp+2, t))
            d = acc + 4*rp
            L.append(f"v_cvt_pk_bf16_f32 v{d}, v{d}, v{d+1}"); L.append(f"v_cvt_pk_bf16_f32 v{d+1}, v{d+2}, v{d+3}")
            L.append(f"buffer_store_dwordx2 v[{d}:{d+1}], v{vQo}, s[{sWS}:{sWS+3}], s{sQo} offen {sc}")
            L.append(f"s_add_u32 s{sQo}, s{sQo}, {32768 if rp < 3 else 16*16384 - 3*32768}")
        return L
    st('pre0')
    dq = boundary(0)
    for l in rd1(0): p(l)
    st('bar0')
    G = g_pub(); G2 = g_gat(); G3 = g_con()
    cur = [0]
    def fill(src, lim):
        k = 0
        while src and k < lim:
            if src[0] == "#NON":
                if cur[0] < 4*nonb: return
                src.pop(0); continue
            l = src.pop(0); p(l)
            if not l.endswith(':'): k += 1
            if not src: st('pub') if src is G else None
    for n in range(40):
        cur[0] = n
        if n in (8, 20, 28): st(f'n{n}')
        if n + 1 < 40:
            if (n + 1) % 4 == 0: dq += boundary((n + 1)//4)
            for l in rd1(n + 1): p(l)
        else:
            assert not G and not G2 and not G3
            dq += boundary(10)
            for l in rd2(0) : p(l)
        if n == 26: assert not G
        M = mf1(n)
        for h in range(2):
            p(M[h])
            k = 0
            while dq and k < 5:
                l = dq.pop(0); p(l)
                if not l.startswith('@'): k += 1
            lim = nfill1 if k == 0 else max(0, nfill1 - 3)
            if G:
                if n >= g0: fill(G, lim)
            elif n >= ng and G2: fill(G2, 6)
            elif n >= nc and not G2: fill(G3, 10)
    st('pass1')
    F = e_z1() + e_z2()
    F2 = e_q(AQ, 2)
    for l in rd2(1): p(l)
    for m in range(80):
        if m + 2 < 80:
            if (m + 2) % 8 == 0: dq += boundary(10 + (m + 2)//8)
            for l in rd2(m + 2): p(l)
        if m in (20, 40, 60): st(f'm{m}')
        p(mf2(m))
        k = 0
        while dq and k < 5:
            l = dq.pop(0); p(l)
            if not l.startswith('@'): k += 1
        src = F if (F or m < 42) else F2
        lim = nfill2 - (2 if k else 0)
        if m >= 1:
            for _ in range(lim):
                if src: p(src.pop(0))
    assert not dq
    st('pass2')
    for l in F + F2: p(l)
    for l in e_q(AZ1, 3): p(l)
    if prof:
        st('end')
        S.names['w'] = sw
        emit_prof_store(p, sWS, st.L, vA, T, S, region=3, wave=pw, tid=True)
    p("@auto off")
    p(f"s_branch {tag}_done")
    p(f"{tag}_nspin:")
    p(f"s_mov_b32 s{sSp}, {SPIN}")
    p(f"{tag}_nspin_l:")
    p("s_waitcnt vmcnt(0)")
    p(f"v_readfirstlane_b32 s{sN}, v{pC}"); p(f"v_readfirstlane_b32 s{sN+1}, v{pC+1}")
    p(f"s_cmp_lg_u32 s{sN}, 0"); p(f"s_cbranch_scc1 {tag}_nok")
    p(poll(pC))
    p(f"s_sub_u32 s{sSp}, s{sSp}, 1"); p(f"s_cmp_lg_u32 s{sSp}, 0"); p(f"s_cbranch_scc1 {tag}_nspin_l")
    p("s_waitcnt vmcnt(0)")
    p(f"s_branch {tag}_nok")
    p(f"{tag}_gspin:")
    p(f"s_mov_b32 s{sSp}, {SPIN}")
    p(f"{tag}_gspin_l:")
    for l in gather_loads(): p(l)
    p("s_waitcnt vmcnt(0)")
    for l in chk_ops([GX] + GC): p(l)
    p(f"s_cbranch_scc0 {tag}_gok")
    p(f"s_sub_u32 s{sSp}, s{sSp}, 1"); p(f"s_cmp_lg_u32 s{sSp}, 0"); p(f"s_cbranch_scc1 {tag}_gspin_l")
    p(f"s_branch {tag}_gok")
    p(f"{tag}_aux:")
    p("s_waitcnt lgkmcnt(0)")
    fin(sX, 2048*1280); fin(sWS, WS_SIZE); fin(sD, 256)
    p(f"s_load_dwordx2 s[{sWi}:{sWi+1}], s[0:1], 56"); p(f"s_load_dwordx2 s[{sWq}:{sWq+1}], s[0:1], 16"); p(f"s_load_dwordx2 s[{sP}:{sP+1}], s[0:1], 40")
    p(poll(pA))
    xrow_loads()
    p("s_waitcnt vmcnt(0)")
    for l in xstats_ops(xr, vD_, vE_, vQ_, XP): p(l)
    p(f"s_cmp_lg_u32 s{sw}, 0"); p(f"s_cbranch_scc1 {tag}_aux_w")
    p(f"s_mov_b32 s{sSp}, {SPIN}")
    p(f"{tag}_aux_l:")
    p(f"v_readfirstlane_b32 s{sN}, v{pA}"); p(f"v_readfirstlane_b32 s{sN+1}, v{pA+1}")
    p(f"s_cmp_lg_u32 s{sN}, 0"); p(f"s_cbranch_scc1 {tag}_aux_ok")
    p(poll(pA)); p("s_waitcnt vmcnt(0)")
    p(f"s_sub_u32 s{sSp}, s{sSp}, 1"); p(f"s_cmp_lg_u32 s{sSp}, 0"); p(f"s_cbranch_scc1 {tag}_aux_l")
    p(f"{tag}_aux_ok:")
    p(f"v_mov_b32 v{pA}, s{sN}"); p(f"v_mov_b32 v{pA+1}, s{sN+1}"); p(f"v_mov_b32 v{vA}, {NONL}")
    p(f"ds_write_b64 v{vA}, v[{pA}:{pA+1}]")
    p(f"{tag}_aux_w:")
    p("s_waitcnt lgkmcnt(0)"); p("s_barrier")
    p(f"v_mov_b32 v{vA}, {NONL}"); p(f"ds_read_b64 v[{XP+2}:{XP+3}], v{vA}"); p("s_waitcnt lgkmcnt(0)")
    p(f"buffer_store_dwordx4 v[{XP}:{XP+3}], v{vL0}, s[{sWS}:{sWS+3}], s{sXG} offen sc1")
    fin(sWi, 864*1280); fin(sWq, 640*1280)
    if touch:
        fin(sP, 2048*4096)
        p(f"s_lshl_b32 s{sT0}, s{sRb}, 19"); p(f"v_lshlrev_b32 v{vA}, 7, v0")
        for k in range(8):
            p(f"buffer_load_dword v{T+k}, v{vA}, s[{sP}:{sP+3}], s{sT0} offen")
            p(f"s_add_u32 s{sT0}, s{sT0}, 0x10000")
    sM1 = sLA; sM2 = sLB; sIt = sJ; sC0 = sOX
    p(f"s_mov_b32 s{sM1}, {magic(15040, 131072)}"); p(f"s_mov_b32 s{sM2}, {magic(10, 15040)}")
    p(f"s_mul_i32 s{sC0}, s{sRb}, {15*512}"); p(f"s_mov_b32 s{sIt}, 0"); p(f"s_mov_b32 s{sWSo}, {WS_WR}")
    NU = 5
    rr = X; cc = X + 4*NU; a_, b_, d_, e_ = cc + NU, cc + NU + 1, cc + NU + 2, cc + NU + 3
    p(f"{tag}_rp:")
    for u in range(NU):
        c_ = cc + u
        p(f"v_add_u32 v{c_}, s{sC0}, v0"); p(f"s_add_u32 s{sC0}, s{sC0}, 512")
        p(f"v_mul_hi_u32 v{a_}, v{c_}, s{sM1}")
        p(f"v_mul_u32_u24 v{b_}, 15040, v{a_}"); p(f"v_sub_u32 v{b_}, v{c_}, v{b_}")
        p(f"v_mul_hi_u32 v{d_}, v{b_}, s{sM2}")
        p(f"v_mul_u32_u24 v{e_}, 10, v{d_}"); p(f"v_sub_u32 v{b_}, v{b_}, v{e_}")
        p(f"v_lshlrev_b32 v{b_}, 4, v{b_}"); p(f"v_mul_u32_u24 v{a_}, 160, v{a_}"); p(f"v_add_u32 v{b_}, v{a_}, v{b_}")
        p(f"v_and_b32 v{a_}, 0xfffffff3, v{d_}")
        p(f"v_lshrrev_b32 v{e_}, 1, v{d_}"); p(f"v_and_b32 v{e_}, 4, v{e_}"); p(f"v_or_b32 v{a_}, v{a_}, v{e_}")
        p(f"v_lshlrev_b32 v{e_}, 1, v{d_}"); p(f"v_and_b32 v{e_}, 8, v{e_}"); p(f"v_or_b32 v{a_}, v{a_}, v{e_}")
        p(f"v_mul_u32_u24 v{d_}, 1280, v{a_}"); p(f"v_add_u32 v{b_}, v{b_}, v{d_}")
        p(f"v_cmp_gt_u32 vcc, 864, v{a_}"); p(f"s_and_saveexec_b64 s[{sE}:{sE+1}], vcc")
        p(f"buffer_load_dwordx4 v[{rr+4*u}:{rr+4*u+3}], v{b_}, s[{sWi}:{sWi+3}], 0 offen")
        p(f"s_andn2_b64 exec, s[{sE}:{sE+1}], exec")
        p(f"v_subrev_u32 v{b_}, {864*1280}, v{b_}")
        p(f"buffer_load_dwordx4 v[{rr+4*u}:{rr+4*u+3}], v{b_}, s[{sWq}:{sWq+3}], 0 offen")
        p(f"s_mov_b64 exec, s[{sE}:{sE+1}]")
        p(f"v_cmp_gt_u32 vcc, 120320, v{c_}"); p(f"v_lshlrev_b32 v{c_}, 4, v{c_}"); p(f"v_mov_b32 v{a_}, {hx(OOB)}"); p(f"v_cndmask_b32 v{c_}, v{a_}, v{c_}, vcc")
    p("s_waitcnt vmcnt(0)")
    for u in range(NU):
        p(f"buffer_store_dwordx4 v[{rr+4*u}:{rr+4*u+3}], v{cc+u}, s[{sWS}:{sWS+3}], s{sWSo} offen {sc}")
    p(f"s_add_u32 s{sIt}, s{sIt}, 1"); p(f"s_cmp_lt_u32 s{sIt}, 3")
    p("s_waitcnt vmcnt(0)")
    p(f"s_cbranch_scc1 {tag}_rp")
    p(f"{tag}_done:")
    return dict(vgpr=V.n, sgpr=S.n, lds=LDS, stamps=st.names)
```

```python
import sys
sys.path.insert(0, 'dev')
from build import *
from build_exp1 import build2
from gen4 import *
from gen5 import *
from gen6 import *
ssc = "sc1"
def mk(path, p1={}, k2={}, km={}):
    kw = dict(sc=ssc); kw.update(p1)
    K = [("p1x_kernel", emit_p1x, kw),
      ("km_kernel", emit_km, dict(ssc=ssc, **km)),
      ("k2_kernel", emit_k2, dict(ssc=ssc, **k2))]
    build2(K, [k[0] for k in K], path)
if __name__ == "__main__":
    import shutil
    shutil.copy('v55.s', 'a.s')
    shutil.copy('v55.s', 'b.s')
    mk('c.s')
    mk('d.s', p1=dict(codepf=0x8800))
    mk('e.s', p1=dict(nfill1=12, g0=7))
    mk('f.s', p1=dict(npro=4, statpos=4))
```

```python
from asmlib import Prog
from gen import *
from gen2 import *

WS_NON = 0xD90000
WS_CG  = 0xE00000
WS_XG  = 0xE80000
WS_ZG  = 0xE90000
SPIN = 200000

def dpp_sum64_ops(v, t):
    L = []
    for d in ("quad_perm:[1,0,3,2]", "quad_perm:[2,3,0,1]", "row_half_mirror", "row_mirror"):
        L.append(f"v_add_f32_dpp v{v}, v{v}, v{v} {d} row_mask:0xf bank_mask:0xf")
    L += [f"v_mov_b32 v{t}, v{v}", f"v_permlane16_swap_b32 v{v}, v{t}", f"v_add_f32 v{v}, v{v}, v{t}",
          f"v_mov_b32 v{t}, v{v}", f"v_permlane32_swap_b32 v{v}, v{t}", f"v_add_f32 v{v}, v{v}, v{t}"]
    return L

def xstats_ops(vx, vD, vE, vQ, dst):
    L = []
    for j in range(5):
        L.append(f"v_and_b32 v{vx+5+j}, 0xffff0000, v{vx+j}"); L.append(f"v_lshlrev_b32 v{vx+j}, 16, v{vx+j}")
    L.append(f"v_add_f32 v{vD}, v{vx}, v{vx+1}"); L.append(f"v_add_f32 v{vE}, v{vx+2}, v{vx+3}")
    for j in range(4, 10, 2):
        L.append(f"v_add_f32 v{vD}, v{vD}, v{vx+j}"); L.append(f"v_add_f32 v{vE}, v{vE}, v{vx+j+1}")
    L.append(f"v_add_f32 v{vD}, v{vD}, v{vE}")
    L += dpp_sum64_ops(vD, vE)
    L.append(f"v_mul_f32 v{vD}, {hx(f2u(1/640))}, v{vD}")
    for j in range(10): L.append(f"v_sub_f32 v{vx+j}, v{vx+j}, v{vD}")
    L.append(f"v_mul_f32 v{vQ}, v{vx}, v{vx}"); L.append(f"v_mul_f32 v{vE}, v{vx+1}, v{vx+1}")
    for j in range(2, 10, 2):
        L.append(f"v_fmac_f32 v{vQ}, v{vx+j}, v{vx+j}"); L.append(f"v_fmac_f32 v{vE}, v{vx+j+1}, v{vx+j+1}")
    L.append(f"v_add_f32 v{vQ}, v{vQ}, v{vE}")
    L += dpp_sum64_ops(vQ, vE)
    L.append(f"v_mov_b32 v{vE}, {hx(f2u(1e-5))}"); L.append(f"v_fmac_f32 v{vE}, {hx(f2u(1/640))}, v{vQ}")
    L.append(f"v_rsq_f32 v{dst}, v{vE}")
    L.append(f"v_mul_f32 v{dst+1}, v{vD}, v{dst}"); L.append(f"v_sub_f32 v{dst+1}, 0, v{dst+1}")
    return L

def emit_p1x(p, tag="P1", prof=False, nfill1=8, nfill2=4, sc="", pw=0, ng=26, nc=37, codepf=0, touch=False, z2n=False, pfid=8, g0=6, nonb=2, npro=3, statpos=3, la2=2, lessbar=False, fpre=False, nf2a=None):
    S = Alloc(4, 100, 's'); V = Alloc(1, 256, 'v')
    sX = S('srdX', 4); sWi = S('srdWi', 4); sWq = S('srdWq', 4); sWS = S('srdWS', 4); sD = S('srdD', 4); sP = S('srdP', 4)
    for r_, off in ((sWS, 80), (sX, 0), (sWi, 32), (sWq, 8), (sD, 72)):
        p(f"s_load_dwordx2 s[{r_}:{r_+1}], s[0:1], {off}")
    def fin(s_, size):
        p(f"s_mov_b32 s{s_+2}, {hx(size)}"); p(f"s_mov_b32 s{s_+3}, {SRD3}")
    sw = S('w'); sRb = S('rb'); sCg = S('cg'); sRg = S('rg'); sCh = S('ch'); sT0 = S('t0'); sT1 = S('t1'); sT2 = S('t2')
    sLA = S('LA'); sLB = S('LB'); sOX = S('oX'); sOW0 = S('oW0'); sOW1 = S('oW1'); sMb = S('mb'); sE = S('ex', 2)
    sC1 = S('c1'); sQo = S('qo'); sZ2o = S('z2o'); sJ = S('j'); sV1 = S('v1'); sV2 = S('v2'); sWSo = S('wso')
    sN = S('nonce', 2); sSp = S('spin'); sXG = S('xg'); sCG = S('cgo'); sSt = S('stride'); sXr = S('xrow')
    st = Stamps(p, S, prof)
    vL = V('lane'); vW = V('wrd'); vW2 = V('wrd2'); vDW = V('dmaW'); vDQ = V('dmaQ'); vSt = V('xst', 2); vCs = V('cs'); vC2 = V('c2')
    vZ1 = V('z1o'); vQo = V('qoff'); vSw = V('stw'); vSr = V('str'); vZs = V('zso'); vA = V('a'); vB = V('b'); vL0 = V('l0')
    T = V('T', 8, 4)
    WF = V('wf', 16, 4)
    AZ1 = V('az1', 16, 4); AZ2 = V('az2', 16, 4); AQ = V('aq', 16, 4)
    X = V('x', 160, 4)
    vXa = [AQ + j for j in range(4)]; vDX0 = AQ + 4; vDX1 = AQ + 5
    xr = X + 120; wl = X + 132; ca = X + 144; vPo = X + 148; XP = X + 152; CP = X + 156
    pA = X + 112; pB = X + 114; pC = X + 116; vNo = X + 118; vPf = X + 119; vD_ = X + 130; vE_ = X + 131; vQ_ = X + 149
    GX = AQ + 4; GC = [T, T + 4, AQ + 8, AQ + 12]
    TBL = 131072; STG = TBL + 1024
    LDS = STG + 8*2048
    NONL = STG
    st('start')
    p(f"s_memrealtime s[{sN}:{sN+1}]")
    p(f"v_lshrrev_b32 v{vA}, 6, v0"); p(f"v_and_b32 v{vL}, 63, v0"); p(f"v_readfirstlane_b32 s{sw}, v{vA}")
    if codepf:
        p(f"s_getpc_b64 s[{sE}:{sE+1}]")
        p(f"s_and_b32 s{sE}, s{sE}, 0xffffff00")
        p(f"v_lshlrev_b32 v{vA}, 7, v0")
        p(f"s_cmp_lt_u32 s2, {pfid}"); p(f"s_cselect_b64 exec, -1, 1")
        for k in range((codepf + 65535)//65536):
            if k: p(f"v_add_u32 v{vA}, 0x10000, v{vA}")
            p(f"v_min_u32 v{vB}, {codepf - 4}, v{vA}")
            p(f"global_load_dword v{vPf}, v{vB}, s[{sE}:{sE+1}]")
        p("s_mov_b64 exec, -1")
    p(f"s_and_b32 s{sT0}, s2, 7"); p(f"s_lshr_b32 s{sT1}, s2, 3")
    p(f"s_and_b32 s{sRb}, s{sT0}, 1"); p(f"s_lshl_b32 s{sRb}, s{sRb}, 3"); p(f"s_and_b32 s{sT2}, s{sT1}, 7"); p(f"s_add_u32 s{sRb}, s{sRb}, s{sT2}")
    p(f"s_lshr_b32 s{sCg}, s{sT0}, 1"); p(f"s_lshl_b32 s{sCg}, s{sCg}, 2"); p(f"s_lshr_b32 s{sT2}, s{sT1}, 3"); p(f"s_add_u32 s{sCg}, s{sCg}, s{sT2}")
    p(f"s_lshl_b32 s{sXG}, s{sRb}, 7"); p(f"s_lshl_b32 s{sT0}, s{sCg}, 3"); p(f"s_add_u32 s{sXG}, s{sXG}, s{sT0}"); p(f"s_add_u32 s{sXG}, s{sXG}, s{sw}")
    p(f"s_mul_i32 s{sXr}, s{sXG}, 1280")
    p(f"s_lshl_b32 s{sXG}, s{sXG}, 4"); p(f"s_add_u32 s{sXG}, s{sXG}, {WS_XG}")
    p(f"v_min_u32 v{vL0}, 1, v{vL}"); p(f"v_lshlrev_b32 v{vL0}, 31, v{vL0}")
    p(f"s_cmp_eq_u32 s{sw}, 0"); p(f"s_cselect_b32 s{sT0}, 0, {hx(OOB)}"); p(f"v_or_b32 v{vPo}, s{sT0}, v{vL0}")
    p(f"s_cmp_eq_u32 s2, 0"); p(f"s_cselect_b32 s{sT0}, 0, {hx(OOB)}"); p(f"v_or_b32 v{vNo}, s{sT0}, v{vPo}")
    vXo_ = X + 142; vPo_ = X + 143
    p(f"v_lshlrev_b32 v{vXo_}, 2, v{vL}")
    p(f"s_cmp_eq_u32 s{sCg}, 15"); p(f"s_cbranch_scc1 {tag}_aux")
    p(f"s_and_b32 s{sRg}, s{sw}, 3"); p(f"s_lshr_b32 s{sCh}, s{sw}, 2")
    p(f"s_min_u32 s{sLA}, s{sCg}, 13"); p(f"s_add_u32 s{sLB}, s{sCg}, 14"); p(f"s_cmp_lt_u32 s{sCg}, 13"); p(f"s_cselect_b32 s{sLB}, s{sLB}, 13")
    p(f"v_lshrrev_b32 v{T+2}, 4, v{vL}"); p(f"v_and_b32 v{T+3}, 7, v{vL}"); p(f"v_xor_b32 v{T+2}, v{T+2}, v{T+3}"); p(f"v_lshlrev_b32 v{T+2}, 4, v{T+2}")
    p(f"v_lshrrev_b32 v{T+3}, 3, v{vL}"); p(f"v_mul_u32_u24 v{T}, 1280, v{T+3}"); p(f"v_add_u32 v{vDX0}, v{T+2}, v{T}")
    p(f"v_xor_b32 v{vDX1}, 64, v{T+2}"); p(f"v_add_u32 v{vDX1}, v{vDX1}, v{T}"); p(f"v_add_u32 v{vDX1}, {10240-1024}, v{vDX1}")
    p(f"v_lshrrev_b32 v{T+2}, 2, v{vL}"); p(f"v_and_b32 v{T+2}, 4, v{T+2}"); p(f"v_and_b32 v{T+1}, 7, v{vL}"); p(f"v_xor_b32 v{T+2}, v{T+2}, v{T+1}"); p(f"v_lshlrev_b32 v{T+2}, 4, v{T+2}")
    p(f"v_mul_u32_u24 v{T}, 3456, v{T+3}"); p(f"v_add_u32 v{vDW}, v{T+2}, v{T}")
    p(f"v_mul_u32_u24 v{T}, 3840, v{T+3}"); p(f"v_add_u32 v{vDQ}, v{T+2}, v{T}")
    p(f"s_lshl_b32 s{sT0}, s{sRb}, 7"); p(f"s_lshl_b32 s{sT1}, s{sw}, 4"); p(f"s_add_u32 s{sT0}, s{sT0}, s{sT1}"); p(f"s_mul_i32 s{sOX}, s{sT0}, 1280")
    p(f"s_cmp_eq_u32 s{sCh}, 0"); p(f"s_cselect_b32 s{sT0}, s{sLA}, s{sLB}"); p(f"s_lshl_b32 s{sT0}, s{sT0}, 7")
    p(f"s_mul_i32 s{sT1}, s{sRg}, {16*3456}"); p(f"s_add_u32 s{sOW0}, s{sT0}, s{sT1}"); p(f"s_add_u32 s{sOW1}, s{sOW0}, {8*3456 - 1024}")
    p(f"s_lshl_b32 s{sMb}, s{sw}, 11")
    p(f"v_mov_b32 v{pA}, 0")
    p("s_waitcnt lgkmcnt(0)")
    st('karg')
    fin(sX, 2048*1280); fin(sWi, 640*3456); fin(sWq, 640*3840); fin(sWS, WS_SIZE); fin(sD, 256)
    def nonce_store():
        p(f"s_or_b32 s{sN}, s{sN}, 1")
        p(f"v_mov_b32 v{pC}, s{sN}"); p(f"v_mov_b32 v{pC+1}, s{sN+1}")
        p(f"buffer_store_dwordx2 v[{pC}:{pC+1}], v{vNo}, s[{sD}:{sD+3}], 0 offen sc1")
        p(f"s_mov_b32 s{sE}, {WS_NON}")
        p(f"buffer_store_dwordx2 v[{pC}:{pC+1}], v{vNo}, s[{sWS}:{sWS+3}], s{sE} offen")
    def poll(r): return f"buffer_load_dwordx2 v[{r}:{r+1}], v{vPo}, s[{sD}:{sD+3}], 0 offen sc1"
    def xrow_loads():
        for j in range(5): p(f"buffer_load_dword v{xr+j}, v{vXo_}, s[{sX}:{sX+3}], s{sXr} offen offset:{256*j}")
    def dmaX(i):
        return [f"s_add_u32 m0, s{sMb}, {(i % 4)*16384}",
                f"buffer_load_dwordx4 v{vDX0}, s[{sX}:{sX+3}], s{sOX} offen lds",
                f"buffer_load_dwordx4 v{vDX1}, s[{sX}:{sX+3}], s{sOX} offen offset:1024 lds",
                f"s_add_u32 s{sOX}, s{sOX}, 128"]
    def dmaW(i):
        return [f"s_add_u32 m0, s{sMb}, {(4 + i % 4)*16384}",
                f"buffer_load_dwordx4 v{vDW}, s[{sWi}:{sWi+3}], s{sOW0} offen lds",
                f"buffer_load_dwordx4 v{vDW}, s[{sWi}:{sWi+3}], s{sOW1} offen offset:1024 lds",
                f"s_add_u32 s{sOW0}, s{sOW0}, {64*3456}", f"s_add_u32 s{sOW1}, s{sOW1}, {64*3456}"]
    P2SLOT = [2, 6, 3, 7, 0, 4, 1, 5, 2, 6]
    sOQ0 = S('oQ0'); sOQ1 = S('oQ1')
    def dmaQ(t):
        L = [f"s_add_u32 m0, s{sMb}, {P2SLOT[t]*16384}",
             f"buffer_load_dwordx4 v{vDQ}, s[{sWq}:{sWq+3}], s{sOQ0} offen lds",
             f"buffer_load_dwordx4 v{vDQ}, s[{sWq}:{sWq+3}], s{sOQ1} offen offset:1024 lds"]
        d = 128*3840 if t != 4 else 128 - 4*128*3840
        L += [f"s_add_u32 s{sOQ0}, s{sOQ0}, {hx(d)}", f"s_add_u32 s{sOQ1}, s{sOQ1}, {hx(d)}"]
        return L
    def dma_stage(i):
        for l in dmaX(i) + dmaW(i): p(l)
        p(f"@mark st{i}")
    def stat_loads():
        p(f"s_lshr_b32 s{sT0}, s{sw}, 1")
        p(f"s_lshl_b32 s{sT1}, s{sCg}, 1"); p(f"s_add_u32 s{sT1}, s{sT1}, s{sT0}"); p(f"s_sub_u32 s{sT1}, s{sT1}, 2")
        p(f"s_cmp_eq_u32 s{sT0}, 0"); p(f"s_cselect_b32 s{sT1}, s{sLA}, s{sT1}")
        p(f"s_cmp_eq_u32 s{sT0}, 1"); p(f"s_cselect_b32 s{sT1}, s{sLB}, s{sT1}")
        p(f"s_lshl_b32 s{sT1}, s{sT1}, 7"); p(f"s_and_b32 s{sE}, s{sw}, 1"); p(f"s_lshl_b32 s{sE}, s{sE}, 6"); p(f"s_add_u32 s{sT1}, s{sT1}, s{sE}")
        p(f"s_mov_b32 s{sE}, 3840"); p(f"s_cmp_lt_u32 s{sT0}, 2"); p(f"s_cselect_b32 s{sSt}, 3456, s{sE}")
        p(f"s_mul_i32 s{sE}, s{sRb}, 40"); p(f"s_mul_i32 s{sE}, s{sE}, s{sSt}"); p(f"s_add_u32 s{sCG}, s{sT1}, s{sE}")
        p(f"v_lshrrev_b32 v{vPo_}, 3, v{vL}"); p(f"v_mul_lo_u32 v{vPo_}, v{vPo_}, s{sSt}"); p(f"v_and_b32 v{T}, 7, v{vL}"); p(f"v_lshlrev_b32 v{T}, 3, v{T}"); p(f"v_add_u32 v{vPo_}, v{vPo_}, v{T}")
        xrow_loads()
        p(f"s_cmp_lt_u32 s{sw}, 4")
        for k in range(3): p(f"s_cselect_b32 s{sP+k}, s{sWi+k}, s{sWq+k}")
        p(f"s_mov_b32 s{sP+3}, {SRD3}")
        p(f"s_lshl_b32 s{sSt}, s{sSt}, 3")
        for i in range(5):
            p(f"buffer_load_dwordx2 v[{wl+2*i}:{wl+2*i+1}], v{vPo_}, s[{sP}:{sP+3}], s{sCG} offen")
            if i < 4: p(f"s_add_u32 s{sCG}, s{sCG}, s{sSt}")
        p(f"s_lshl_b32 s{sCG}, s{sCg}, 3"); p(f"s_add_u32 s{sCG}, s{sCG}, s{sw}"); p(f"s_lshl_b32 s{sCG}, s{sCG}, 12"); p(f"s_add_u32 s{sCG}, s{sCG}, {WS_CG}")
    sRow0 = S('row0'); sZso = S('zso')
    def setupA():
        p(f"v_and_b32 v{vA}, 31, v{vL}"); p(f"v_lshrrev_b32 v{vB}, 1, v{vA}"); p(f"v_and_b32 v{vB}, 7, v{vB}"); p(f"v_lshrrev_b32 v{T}, 5, v{vL}")
        p(f"v_xor_b32 v{vB}, v{vB}, v{T}"); p(f"v_lshlrev_b32 v{vB}, 4, v{vB}"); p(f"v_lshlrev_b32 v{vA}, 7, v{vA}"); p(f"v_add_u32 v{vA}, v{vA}, v{vB}")
        p(f"s_lshl_b32 s{sT0}, s{sRg}, 12"); p(f"v_add_u32 v{vXa[0]}, s{sT0}, v{vA}")
        for j in range(1, 4): p(f"v_xor_b32 v{vXa[j]}, {j << 5}, v{vXa[0]}")
        p(f"v_lshrrev_b32 v{vA}, 5, v{vL}"); p(f"v_lshlrev_b32 v{vA}, 3, v{vA}"); p(f"v_bfe_u32 v{vB}, v{vL}, 2, 2"); p(f"v_add_u32 v{vA}, v{vA}, v{vB}"); p(f"v_lshlrev_b32 v{vA}, 7, v{vA}")
        p(f"v_lshrrev_b32 v{vB}, 1, v{vB}"); p(f"v_lshlrev_b32 v{vB}, 6, v{vB}")
        p(f"v_bfe_u32 v{T}, v{vL}, 4, 1"); p(f"v_lshlrev_b32 v{T}, 5, v{T}"); p(f"v_and_b32 v{T+1}, 3, v{vL}"); p(f"v_lshlrev_b32 v{T+1}, 3, v{T+1}"); p(f"v_add_u32 v{T}, v{T}, v{T+1}")
        p(f"s_lshl_b32 s{sT0}, s{sCh}, 6"); p(f"v_add_u32 v{T}, s{sT0}, v{T}"); p(f"v_xor_b32 v{T}, v{T}, v{vB}"); p(f"v_add_u32 v{vW}, v{vA}, v{T}")
        p(f"v_add_u32 v{vW2}, 0x10000, v{vW}")
    def setupB():
        p(f"s_lshl_b32 s{sT0}, s{sRb}, 7"); p(f"s_lshl_b32 s{sT1}, s{sRg}, 5"); p(f"s_add_u32 s{sRow0}, s{sT0}, s{sT1}")
        p(f"s_mul_i32 s{sOQ0}, s{sw}, {16*3840}"); p(f"s_lshl_b32 s{sT0}, s{sCg}, 8"); p(f"s_add_u32 s{sOQ0}, s{sOQ0}, s{sT0}"); p(f"s_add_u32 s{sOQ1}, s{sOQ0}, {8*3840 - 1024}")
        p(f"v_lshrrev_b32 v{vA}, 5, v{vL}"); p(f"v_lshlrev_b32 v{vA}, 4, v{vA}"); p(f"s_lshl_b32 s{sT0}, s{sCh}, 7"); p(f"s_add_u32 s{sT0}, s{sT0}, {TBL}"); p(f"v_add_u32 v{vCs}, s{sT0}, v{vA}")
        p(f"s_mov_b32 s{sC1}, {hx(f2u(C1))}"); p(f"v_mov_b32 v{vC2}, {hx(f2u(C2))}")
        p(f"s_lshl_b32 s{sT0}, s{sCg}, 1"); p(f"s_add_u32 s{sT0}, s{sT0}, s{sCh}")
        p(f"s_cmp_le_u32 s{sT0}, 26"); p(f"s_cselect_b32 s{sV1}, 0, {hx(OOB)}")
        p(f"s_cmp_le_u32 s{sT0}, 25"); p(f"s_cselect_b32 s{sV2}, 0, {hx(OOB)}"); p(f"s_cmp_eq_u32 s{sT0}, 27"); p(f"s_cselect_b32 s{sV2}, 0, s{sV2}")
        p(f"s_lshl_b32 s{sT0}, s{sLA}, 1"); p(f"s_add_u32 s{sT0}, s{sT0}, s{sCh}"); p(f"s_lshl_b32 s{sT0}, s{sT0}, 10")
        p(f"s_lshr_b32 s{sT1}, s{sRow0}, 4"); p(f"s_mul_i32 s{sT1}, s{sT1}, {54*512}"); p(f"s_add_u32 s{sT0}, s{sT0}, s{sT1}"); p(f"s_or_b32 s{sT0}, s{sT0}, s{sV1}")
        p(f"v_bfe_u32 v{vA}, v{vL}, 4, 1"); p(f"v_mul_u32_u24 v{vA}, {54*512}, v{vA}"); p(f"v_lshrrev_b32 v{vB}, 5, v{vL}"); p(f"v_lshlrev_b32 v{vB}, 8, v{vB}"); p(f"v_add_u32 v{vA}, v{vA}, v{vB}")
        p(f"v_and_b32 v{vB}, 15, v{vL}"); p(f"v_lshlrev_b32 v{vB}, 4, v{vB}"); p(f"v_add_u32 v{vA}, v{vA}, v{vB}"); p(f"v_add_u32 v{vZ1}, s{sT0}, v{vA}")
    def setupC():
        p(f"s_lshl_b32 s{sJ}, s{sLB}, 1"); p(f"s_add_u32 s{sJ}, s{sJ}, s{sCh}"); p(f"s_sub_u32 s{sJ}, s{sJ}, 27"); p(f"s_max_i32 s{sJ}, s{sJ}, 0")
        p(f"s_lshr_b32 s{sT1}, s{sRow0}, 5"); p(f"s_mul_i32 s{sZ2o}, s{sT1}, {54*1024}"); p(f"s_lshl_b32 s{sT0}, s{sJ}, 11"); p(f"s_add_u32 s{sZ2o}, s{sZ2o}, s{sT0}")
        p(f"s_add_u32 s{sZ2o}, s{sZ2o}, {WS_Z2R}")
        p(f"s_mul_i32 s{sT1}, s{sT1}, 27"); p(f"s_add_u32 s{sT1}, s{sT1}, s{sJ}"); p(f"s_lshl_b32 s{sT1}, s{sT1}, 8"); p(f"s_or_b32 s{sT1}, s{sT1}, s{sV2}")
        p(f"v_lshlrev_b32 v{vA}, 3, v{vL}"); p(f"v_lshrrev_b32 v{vB}, 5, v{vL}"); p(f"v_lshlrev_b32 v{vB}, 31, v{vB}"); p(f"v_or_b32 v{vA}, v{vA}, v{vB}"); p(f"v_or_b32 v{vA}, s{sV2}, v{vA}")
        p(f"s_and_b32 s{sT1}, s{sT1}, 0x7fffffff"); p(f"v_add_u32 v{vZs}, s{sT1}, v{vA}")
        p(f"v_and_b32 v{vA}, 31, v{vL}"); p(f"v_bfe_u32 v{vB}, v{vL}, 1, 2"); p(f"v_lshlrev_b32 v{vB}, 4, v{vB}"); p(f"v_lshlrev_b32 v{vA}, 6, v{vA}"); p(f"v_add_u32 v{vA}, v{vA}, v{vB}")
        p(f"v_lshrrev_b32 v{vB}, 5, v{vL}"); p(f"v_lshlrev_b32 v{vB}, 3, v{vB}"); p(f"v_add_u32 v{vA}, v{vA}, v{vB}")
        p(f"s_lshl_b32 s{sT0}, s{sw}, 11"); p(f"s_add_u32 s{sT0}, s{sT0}, {STG}"); p(f"v_add_u32 v{vSw}, s{sT0}, v{vA}")
        p(f"v_lshrrev_b32 v{vA}, 4, v{vL}"); p(f"v_lshlrev_b32 v{vA}, 3, v{vA}"); p(f"v_bfe_u32 v{vB}, v{vL}, 2, 2"); p(f"v_add_u32 v{vA}, v{vA}, v{vB}"); p(f"v_lshlrev_b32 v{vA}, 6, v{vA}")
        p(f"v_lshrrev_b32 v{vB}, 1, v{vB}"); p(f"v_bfe_u32 v{T}, v{vL}, 1, 1"); p(f"v_xor_b32 v{vB}, v{vB}, v{T}"); p(f"v_lshlrev_b32 v{vB}, 4, v{vB}"); p(f"v_add_u32 v{vA}, v{vA}, v{vB}")
        p(f"v_and_b32 v{vB}, 1, v{vL}"); p(f"v_lshlrev_b32 v{vB}, 3, v{vB}"); p(f"v_add_u32 v{vA}, v{vA}, v{vB}"); p(f"v_add_u32 v{vSr}, s{sT0}, v{vA}")
        p(f"v_lshrrev_b32 v{vA}, 5, v{vL}"); p(f"s_lshl_b32 s{sT0}, s{sCh}, 3"); p(f"v_add_u32 v{vA}, s{sT0}, v{vA}"); p(f"v_lshlrev_b32 v{vA}, 14, v{vA}")
        p(f"v_and_b32 v{vB}, 31, v{vL}"); p(f"v_add_u32 v{vB}, s{sRow0}, v{vB}"); p(f"v_lshlrev_b32 v{vB}, 3, v{vB}"); p(f"v_add_u32 v{vQo}, v{vA}, v{vB}")
        p(f"s_lshl_b32 s{sQo}, s{sCg}, 19"); p(f"s_add_u32 s{sQo}, s{sQo}, {WS_QKV}")
        p(f"s_mov_b32 s{sWSo}, {WS_Z1P}")
        p(f"s_mov_b32 s{sZso}, {WS_ZST}")
    p("@auto on")
    nonce_store()
    p(poll(pA))
    dma_stage(0)
    setupA()
    dma_stage(1)
    if statpos == 2: stat_loads()
    setupB()
    if npro >= 3: dma_stage(2)
    if statpos == 3: stat_loads()
    setupC()
    if npro >= 4: dma_stage(3)
    if statpos == 4: stat_loads()
    p(poll(pB))
    st('dma')
    def nonce_bcast():
        p(f"v_or_b32 v{pA}, v{pA}, v{pB}"); p(f"v_or_b32 v{pA+1}, v{pA+1}, v{pB+1}")
        if nonb > 0:
            p(f"v_or_b32 v{pA}, v{pA}, v{pC}"); p(f"v_or_b32 v{pA+1}, v{pA+1}, v{pC+1}")
        p(f"v_readfirstlane_b32 s{sN}, v{pA}"); p(f"v_readfirstlane_b32 s{sN+1}, v{pA+1}")
        p(f"s_cmp_lg_u32 s{sw}, 0"); p(f"s_cbranch_scc1 {tag}_nonw")
        p(f"s_cmp_eq_u32 s{sN}, 0"); p(f"s_cbranch_scc1 {tag}_nspin")
        p(f"{tag}_nok:")
        p(f"v_mov_b32 v{pA}, s{sN}"); p(f"v_mov_b32 v{pA+1}, s{sN+1}"); p(f"v_mov_b32 v{pB}, {NONL}")
        p(f"@raw ds_write_b64 v{pB}, v[{pA}:{pA+1}]")
        p(f"{tag}_nonw:")

    def wbase(slot): return (vW2 if slot >= 4 else vW), (slot % 4)*16384
    def rd1(n):
        i, j = divmod(n, 4)
        L = [f"ds_read_b128 v[{X+4*n}:{X+4*n+3}], v{vXa[j]} offset:{(i % 4)*16384}"]
        vb, o = wbase(4 + i % 4)
        for blk in range(2):
            f = WF + (n & 1)*8 + blk*4
            for rd in range(2):
                L.append(f"ds_read_b64_tr_b16 v[{f+2*rd}:{f+2*rd+1}], v{vb} offset:{o + blk*8192 + j*2048 + rd*512}")
        return L
    def mf1(n):
        L = []
        for blk, acc in enumerate((AZ1, AZ2)):
            f = WF + (n & 1)*8 + blk*4
            c = "0" if n == 0 else f"v[{acc}:{acc+15}]"
            L.append(f"v_mfma_f32_32x32x16_bf16 v[{acc}:{acc+15}], v[{f}:{f+3}], v[{X+4*n}:{X+4*n+3}], {c}")
        return L
    def rd2(m):
        t, j = divmod(m, 8)
        vb, o = wbase(P2SLOT[t])
        f = WF + (m % (la2 + 1))*4
        return [f"ds_read_b64_tr_b16 v[{f+2*rd}:{f+2*rd+1}], v{vb} offset:{o + j*2048 + rd*512}" for rd in range(2)]
    def mf2(m):
        acc = AQ if m < 40 else AZ1
        n = m % 40
        f = WF + (m % (la2 + 1))*4
        c = "0" if n == 0 else f"v[{acc}:{acc+15}]"
        return f"v_mfma_f32_32x32x16_bf16 v[{acc}:{acc+15}], v[{f}:{f+3}], v[{X+4*n}:{X+4*n+3}], {c}"
    def boundary(n_stage):
        if n_stage == nonb: nonce_bcast()
        if lessbar and n_stage >= 10:
            tab = {10: (11, True), 11: (13, True), 12: (17, True), 15: (19, False)}
            if n_stage not in tab: return []
            p(f"@waitvm st{tab[n_stage][0]}")
            if tab[n_stage][1]: p("s_waitcnt lgkmcnt(0)")
        else:
            p(f"@waitvm st{n_stage}")
            p("s_waitcnt lgkmcnt(0)")
        p("s_barrier")
        D = []
        n = n_stage
        if n == 0:
            D = [(dmaX(i) + dmaW(i), f"st{i}") for i in range(npro, 4)]
            if nonb > 0: D.append(([poll(pC)], "pc"))
        elif 1 <= n <= 6: D = [(dmaX(n+3) + dmaW(n+3), f"st{n+3}")]
        elif n == 7: D = [(dmaQ(0), "st10"), (dmaQ(1), "st11")]
        elif n == 8: D = [(dmaQ(2), "st12"), (dmaQ(3), "st13")]
        elif n == 9: D = [(dmaQ(4), "st14"), (dmaQ(5), "st15")]
        elif n == 10: D = [(dmaQ(6), "st16"), (dmaQ(7), "st17")]
        elif n == 11: D = [(dmaQ(8), "st18")]
        elif n == 12: D = [(dmaQ(9), "st19")]
        out = []
        for L, mk in D: out += L + [f"@mark {mk}"]
        return out
    def g_pub():
        L1 = xstats_ops(xr, vD_, vE_, vQ_, XP)
        L = []
        tt = [T, T+1, T+2, T+3]; o1 = T + 4; o2 = T + 5
        for i in range(5):
            for c in range(4):
                src = wl + 2*i + c//2
                dst = ca + c if i == 0 else tt[c]
                L.append(f"v_lshlrev_b32 v{dst}, 16, v{src}" if c % 2 == 0 else f"v_and_b32 v{dst}, 0xffff0000, v{src}")
            if i:
                for c in range(4): L.append(f"v_add_f32 v{ca+c}, v{ca+c}, v{tt[c]}")
        L += [f"v_permlane32_swap_b32 v{ca}, v{ca+2}", f"v_and_b32 v{o1}, 7, v{vL}", f"v_permlane32_swap_b32 v{ca+1}, v{ca+3}", f"v_lshlrev_b32 v{o1}, 5, v{o1}",
              f"v_add_f32 v{CP}, v{ca}, v{ca+2}", f"v_add_f32 v{CP+1}, v{ca+1}, v{ca+3}",
              f"v_lshrrev_b32 v{o2}, 5, v{vL}",
              f"v_mov_b32 v{ca}, v{CP}", f"v_mov_b32 v{ca+1}, v{CP+1}",
              f"v_lshlrev_b32 v{o2}, 4, v{o2}", f"v_add_u32 v{o1}, v{o1}, v{o2}",
              f"v_permlane16_swap_b32 v{CP}, v{ca}", f"v_permlane16_swap_b32 v{CP+1}, v{ca+1}",
              f"v_and_b32 v{o2}, 0x18, v{vL}",
              f"v_add_f32 v{CP}, v{CP}, v{ca}", f"v_add_f32 v{CP+1}, v{CP+1}, v{ca+1}",
              f"v_min_u32 v{o2}, 1, v{o2}", f"v_lshlrev_b32 v{o2}, 31, v{o2}",
              f"v_add_f32_dpp v{CP}, v{CP}, v{CP} row_ror:8 row_mask:0xf bank_mask:0xf", f"v_add_f32_dpp v{CP+1}, v{CP+1}, v{CP+1} row_ror:8 row_mask:0xf bank_mask:0xf",
              f"v_or_b32 v{o1}, v{o1}, v{o2}"]
        M = []
        while L1 or L:
            if L1: M.append(L1.pop(0))
            if L: M.append(L.pop(0))
        M += ["#NON",
              f"v_mov_b32 v{T+6}, {NONL}", f"ds_read_b64 v[{XP+2}:{XP+3}], v{T+6}",
              f"s_lshl_b32 s{sT0}, s{sRb}, 8", f"s_add_u32 s{sT0}, s{sT0}, s{sCG}",
              f"v_mov_b32 v{CP+2}, v{XP+2}", f"v_mov_b32 v{CP+3}, v{XP+3}",
              f"buffer_store_dwordx4 v[{XP}:{XP+3}], v{vL0}, s[{sWS}:{sWS+3}], s{sXG} offen sc1",
              f"buffer_store_dwordx4 v[{CP}:{CP+3}], v{o1}, s[{sWS}:{sWS+3}], s{sT0} offen sc1",
              f"v_readfirstlane_b32 s{sN}, v{XP+2}", f"v_readfirstlane_b32 s{sN+1}, v{XP+3}"]
        return M
    def gather_loads():
        L = [f"buffer_load_dwordx4 v[{GX}:{GX+3}], v{vA}, s[{sWS}:{sWS+3}], s{sXG} offen sc1"]
        for i in range(4): L.append(f"buffer_load_dwordx4 v[{GC[i]}:{GC[i]+3}], v{vB}, s[{sWS}:{sWS+3}], s{sCG} offen offset:{1024*i} sc1")
        return L
    def g_gat():
        return [f"v_and_b32 v{vA}, 31, v{vL}", f"v_lshlrev_b32 v{vA}, 4, v{vA}", f"v_lshlrev_b32 v{vB}, 4, v{vL}",
                f"s_lshl_b32 s{sXG}, s{sRow0}, 4", f"s_add_u32 s{sXG}, s{sXG}, {WS_XG}"] + gather_loads()
    def chk_ops(regs, first=True):
        L = []
        for k, r in enumerate(regs):
            L.append(f"v_cmp_ne_u64 vcc, s[{sN}:{sN+1}], v[{r+2}:{r+3}]")
            L.append(f"s_mov_b64 s[{sE}:{sE+1}], vcc" if k == 0 else f"s_or_b64 s[{sE}:{sE+1}], s[{sE}:{sE+1}], vcc")
        L.append(f"s_cmp_lg_u64 s[{sE}:{sE+1}], 0")
        return L
    def g_con():
        L = chk_ops([GX] + GC) + [f"s_cbranch_scc1 {tag}_gspin", f"{tag}_gok:",
             f"v_mov_b32 v{vSt}, v{GX}", f"v_mov_b32 v{vSt+1}, v{GX+1}",
             f"v_add_f32 v{T}, v{T}, v{T+4}", f"v_add_f32 v{T+1}, v{T+1}, v{T+5}",
             f"v_add_f32 v{AQ+8}, v{AQ+8}, v{AQ+12}", f"v_add_f32 v{AQ+9}, v{AQ+9}, v{AQ+13}",
             f"v_add_f32 v{T}, v{T}, v{AQ+8}", f"v_add_f32 v{T+1}, v{T+1}, v{AQ+9}",
             f"v_and_b32 v{vA}, 15, v{vL}", f"v_lshlrev_b32 v{vA}, 3, v{vA}", f"v_bfe_u32 v{vB}, v{vL}, 4, 1",
             f"v_permlane16_swap_b32 v{T}, v{T+1}",
             f"v_lshl_add_u32 v{vA}, v{vB}, 2, v{vA}", f"s_lshl_b32 s{sT0}, s{sw}, 7", f"s_add_u32 s{sT0}, s{sT0}, {TBL}",
             f"v_add_f32 v{T}, v{T}, v{T+1}", f"v_add_u32 v{vA}, s{sT0}, v{vA}",
             f"v_mov_b32 v{T+1}, v{T}", f"v_permlane32_swap_b32 v{T}, v{T+1}", f"v_add_f32 v{T}, v{T}, v{T+1}",
             f"ds_write_b32 v{vA}, v{T}"]
        return L
    rstd, nm = vSt, vSt + 1
    def norm_ops(acc, seg, rp, t):
        L = []
        for c in range(4): L.append(f"v_mul_f32 v{t+c}, v{t+c}, v{nm}")
        for c in range(4): L.append(f"v_fma_f32 v{acc+4*rp+c}, v{acc+4*rp+c}, v{rstd}, v{t+c}")
        return L
    def csread(seg, rp, t): return f"ds_read_b128 v[{t}:{t+3}], v{vCs} offset:{seg*256 + rp*32}"
    def e_z1():
        L = [csread(0, 0, T), csread(0, 1, T+4)]
        for rp in range(4):
            t = T + 4*(rp & 1)
            L += norm_ops(AZ1, 0, rp, t)
            if rp < 2: L.append(csread(0, rp+2, t))
            d = AZ1 + (0 if rp < 2 else 8) + 2*(rp & 1)
            L.append(f"v_cvt_pk_bf16_f32 v{d}, v{AZ1+4*rp}, v{AZ1+4*rp+1}"); L.append(f"v_cvt_pk_bf16_f32 v{d+1}, v{AZ1+4*rp+2}, v{AZ1+4*rp+3}")
            if rp & 1:
                b = AZ1 + (0 if rp < 2 else 8)
                L.append(f"buffer_store_dwordx4 v[{b}:{b+3}], v{vZ1}, s[{sWS}:{sWS+3}], s{sWSo} offen offset:{512*(rp >> 1)} {sc}")
        return L
    vSum = vA; vSq = vB
    def e_z2():
        L = [csread(1, 0, T)]
        g = T + 4
        for rp in range(4):
            L += norm_ops(AZ2, 1, rp, T)
            if rp < 3: L.append(csread(1, rp+1, T))
            a = AZ2 + 4*rp
            steps = [gelu_ops(a+c, g+c, sC1, vC2) for c in range(4)]
            for k in range(7):
                for c in range(4): L.append(steps[c][k])
            for c in range(4):
                if rp == 0 and c == 0:
                    L.append(f"v_mov_b32 v{vSum}, v{a}"); L.append(f"v_mul_f32 v{vSq}, v{a}, v{a}")
                else:
                    L.append(f"v_add_f32 v{vSum}, v{vSum}, v{a+c}"); L.append(f"v_fmac_f32 v{vSq}, v{a+c}, v{a+c}")
            d = AZ2 + 2*rp
            L.append(f"v_cvt_pk_bf16_f32 v{d}, v{a}, v{a+1}"); L.append(f"v_cvt_pk_bf16_f32 v{d+1}, v{a+2}, v{a+3}")
            if rp == 0: L.append(f"ds_write_b64 v{vSw}, v[{d}:{d+1}]")
            else:
                L.append(f"v_xor_b32 v{g}, {rp << 4}, v{vSw}"); L.append(f"ds_write_b64 v{g}, v[{d}:{d+1}]")
        L += [f"v_mov_b32 v{T}, v{vSum}", f"v_mov_b32 v{T+1}, v{vSq}", f"v_permlane32_swap_b32 v{vSum}, v{T}", f"v_permlane32_swap_b32 v{vSq}, v{T+1}",
              f"v_add_f32 v{T+2}, v{vSum}, v{T}", f"v_add_f32 v{T+3}, v{vSq}, v{T+1}",
              f"buffer_store_dwordx2 v[{T+2}:{T+3}], v{vZs}, s[{sWS}:{sWS+3}], s{sZso} offen {sc}"]
        for u in range(2):
            d = AZ2 + 8 + 4*u
            for rd in range(2):
                L.append(f"ds_read_b64_tr_b16 v[{d+2*rd}:{d+2*rd+1}], v{vSr} offset:{rd*256 + (u ^ rd)*32}")
        L.append(f"v_lshlrev_b32 v{T+4}, 4, v{vL}"); L.append(f"v_or_b32 v{T+4}, s{sV2}, v{T+4}")
        for u in range(2):
            d = AZ2 + 8 + 4*u
            L.append(f"buffer_store_dwordx4 v[{d}:{d+3}], v{T+4}, s[{sWS}:{sWS+3}], s{sZ2o} offen offset:{1024*u} {sc}")
        return L
    def e_q(acc, seg):
        L = [csread(seg, 0, T), csread(seg, 1, T+4)]
        for rp in range(4):
            t = T + 4*(rp & 1)
            L += norm_ops(acc, seg, rp, t)
            if rp < 2: L.append(csread(seg, rp+2, t))
            d = acc + 4*rp
            L.append(f"v_cvt_pk_bf16_f32 v{d}, v{d}, v{d+1}"); L.append(f"v_cvt_pk_bf16_f32 v{d+1}, v{d+2}, v{d+3}")
            L.append(f"buffer_store_dwordx2 v[{d}:{d+1}], v{vQo}, s[{sWS}:{sWS+3}], s{sQo} offen {sc}")
            L.append(f"s_add_u32 s{sQo}, s{sQo}, {32768 if rp < 3 else 16*16384 - 3*32768}")
        return L
    st('pre0')
    dq = boundary(0)
    for l in rd1(0): p(l)
    st('bar0')
    G = g_pub(); G2 = g_gat(); G3 = g_con()
    cur = [0]
    def fill(src, lim):
        k = 0
        while src and k < lim:
            if src[0] == "#NON":
                if cur[0] < 4*nonb: return
                src.pop(0); continue
            l = src.pop(0); p(l)
            if not l.endswith(':'): k += 1
            if not src: st('pub') if src is G else None
    for n in range(40):
        cur[0] = n
        st(f'n{n}')
        if n + 1 < 40:
            if (n + 1) % 4 == 0: dq += boundary((n + 1)//4)
            for l in rd1(n + 1): p(l)
        else:
            assert not G and not G2 and not G3
            dq += boundary(10)
            for l in rd2(0) : p(l)
        if n == 26: assert not G
        if n == 39 and la2 == 3:
            for l in rd2(1): p(l)
        M = mf1(n)
        def fl(lim):
            if G:
                if n >= g0: fill(G, lim)
            elif n >= ng and G2: fill(G2, min(lim, 6) if not fpre else lim)
            elif n >= nc and not G2: fill(G3, 10 if not fpre else 20)
        if fpre: fl(nfill1)
        for h in range(2):
            p(M[h])
            k = 0
            while dq and k < 5:
                l = dq.pop(0); p(l)
                if not l.startswith('@'): k += 1
            if not fpre: fl(nfill1 if k == 0 else max(0, nfill1 - 3))
    st('pass1')
    F = e_z1() + e_z2()
    F2 = e_q(AQ, 2)
    for l in rd2(la2 - 1): p(l)
    for m in range(80):
        if m + la2 < 80:
            if (m + la2) % 8 == 0: dq += boundary(10 + (m + la2)//8)
            for l in rd2(m + la2): p(l)
        st(f'm{m}')
        p(mf2(m))
        k = 0
        while dq and k < 5:
            l = dq.pop(0); p(l)
            if not l.startswith('@'): k += 1
        src = F if (F or m < 42) else F2
        lim = (nf2a if (nf2a and m < 40) else nfill2) - (2 if k else 0)
        if m >= 1:
            for _ in range(lim):
                if src: p(src.pop(0))
    assert not dq
    st('pass2')
    for l in F + F2: p(l)
    for l in e_q(AZ1, 3): p(l)
    if prof:
        st('end')
        S.names['w'] = sw
        emit_prof_store(p, sWS, st.L, vA, T, S, region=3, wave=pw, tid=True)
    p("@auto off")
    p(f"s_branch {tag}_done")
    p(f"{tag}_nspin:")
    p(f"s_mov_b32 s{sSp}, {SPIN}")
    p(f"{tag}_nspin_l:")
    p("s_waitcnt vmcnt(0)")
    p(f"v_readfirstlane_b32 s{sN}, v{pC}"); p(f"v_readfirstlane_b32 s{sN+1}, v{pC+1}")
    p(f"s_cmp_lg_u32 s{sN}, 0"); p(f"s_cbranch_scc1 {tag}_nok")
    p(poll(pC))
    p(f"s_sub_u32 s{sSp}, s{sSp}, 1"); p(f"s_cmp_lg_u32 s{sSp}, 0"); p(f"s_cbranch_scc1 {tag}_nspin_l")
    p("s_waitcnt vmcnt(0)")
    p(f"s_branch {tag}_nok")
    p(f"{tag}_gspin:")
    p(f"s_mov_b32 s{sSp}, {SPIN}")
    p(f"{tag}_gspin_l:")
    for l in gather_loads(): p(l)
    p("s_waitcnt vmcnt(0)")
    for l in chk_ops([GX] + GC): p(l)
    p(f"s_cbranch_scc0 {tag}_gok")
    p(f"s_sub_u32 s{sSp}, s{sSp}, 1"); p(f"s_cmp_lg_u32 s{sSp}, 0"); p(f"s_cbranch_scc1 {tag}_gspin_l")
    p(f"s_branch {tag}_gok")
    p(f"{tag}_aux:")
    p("s_waitcnt lgkmcnt(0)")
    fin(sX, 2048*1280); fin(sWS, WS_SIZE); fin(sD, 256)
    p(f"s_load_dwordx2 s[{sWi}:{sWi+1}], s[0:1], 56"); p(f"s_load_dwordx2 s[{sWq}:{sWq+1}], s[0:1], 16"); p(f"s_load_dwordx2 s[{sP}:{sP+1}], s[0:1], 40")
    p(poll(pA))
    xrow_loads()
    p("s_waitcnt vmcnt(0)")
    for l in xstats_ops(xr, vD_, vE_, vQ_, XP): p(l)
    p(f"s_cmp_lg_u32 s{sw}, 0"); p(f"s_cbranch_scc1 {tag}_aux_w")
    p(f"s_mov_b32 s{sSp}, {SPIN}")
    p(f"{tag}_aux_l:")
    p(f"v_readfirstlane_b32 s{sN}, v{pA}"); p(f"v_readfirstlane_b32 s{sN+1}, v{pA+1}")
    p(f"s_cmp_lg_u32 s{sN}, 0"); p(f"s_cbranch_scc1 {tag}_aux_ok")
    p(poll(pA)); p("s_waitcnt vmcnt(0)")
    p(f"s_sub_u32 s{sSp}, s{sSp}, 1"); p(f"s_cmp_lg_u32 s{sSp}, 0"); p(f"s_cbranch_scc1 {tag}_aux_l")
    p(f"{tag}_aux_ok:")
    p(f"v_mov_b32 v{pA}, s{sN}"); p(f"v_mov_b32 v{pA+1}, s{sN+1}"); p(f"v_mov_b32 v{vA}, {NONL}")
    p(f"ds_write_b64 v{vA}, v[{pA}:{pA+1}]")
    p(f"{tag}_aux_w:")
    p("s_waitcnt lgkmcnt(0)"); p("s_barrier")
    p(f"v_mov_b32 v{vA}, {NONL}"); p(f"ds_read_b64 v[{XP+2}:{XP+3}], v{vA}"); p("s_waitcnt lgkmcnt(0)")
    p(f"buffer_store_dwordx4 v[{XP}:{XP+3}], v{vL0}, s[{sWS}:{sWS+3}], s{sXG} offen sc1")
    fin(sWi, 864*1280); fin(sWq, 640*1280)
    if touch:
        fin(sP, 2048*4096)
        p(f"s_lshl_b32 s{sT0}, s{sRb}, 19"); p(f"v_lshlrev_b32 v{vA}, 7, v0")
        for k in range(8):
            p(f"buffer_load_dword v{T+k}, v{vA}, s[{sP}:{sP+3}], s{sT0} offen")
            p(f"s_add_u32 s{sT0}, s{sT0}, 0x10000")
    sM1 = sLA; sM2 = sLB; sIt = sJ; sC0 = sOX
    p(f"s_mov_b32 s{sM1}, {magic(15040, 131072)}"); p(f"s_mov_b32 s{sM2}, {magic(10, 15040)}")
    p(f"s_mul_i32 s{sC0}, s{sRb}, {15*512}"); p(f"s_mov_b32 s{sIt}, 0"); p(f"s_mov_b32 s{sWSo}, {WS_WR}")
    NU = 5
    rr = X; cc = X + 4*NU; a_, b_, d_, e_ = cc + NU, cc + NU + 1, cc + NU + 2, cc + NU + 3
    p(f"{tag}_rp:")
    for u in range(NU):
        c_ = cc + u
        p(f"v_add_u32 v{c_}, s{sC0}, v0"); p(f"s_add_u32 s{sC0}, s{sC0}, 512")
        p(f"v_mul_hi_u32 v{a_}, v{c_}, s{sM1}")
        p(f"v_mul_u32_u24 v{b_}, 15040, v{a_}"); p(f"v_sub_u32 v{b_}, v{c_}, v{b_}")
        p(f"v_mul_hi_u32 v{d_}, v{b_}, s{sM2}")
        p(f"v_mul_u32_u24 v{e_}, 10, v{d_}"); p(f"v_sub_u32 v{b_}, v{b_}, v{e_}")
        p(f"v_lshlrev_b32 v{b_}, 4, v{b_}"); p(f"v_mul_u32_u24 v{a_}, 160, v{a_}"); p(f"v_add_u32 v{b_}, v{a_}, v{b_}")
        p(f"v_and_b32 v{a_}, 0xfffffff3, v{d_}")
        p(f"v_lshrrev_b32 v{e_}, 1, v{d_}"); p(f"v_and_b32 v{e_}, 4, v{e_}"); p(f"v_or_b32 v{a_}, v{a_}, v{e_}")
        p(f"v_lshlrev_b32 v{e_}, 1, v{d_}"); p(f"v_and_b32 v{e_}, 8, v{e_}"); p(f"v_or_b32 v{a_}, v{a_}, v{e_}")
        p(f"v_mul_u32_u24 v{d_}, 1280, v{a_}"); p(f"v_add_u32 v{b_}, v{b_}, v{d_}")
        p(f"v_cmp_gt_u32 vcc, 864, v{a_}"); p(f"s_and_saveexec_b64 s[{sE}:{sE+1}], vcc")
        p(f"buffer_load_dwordx4 v[{rr+4*u}:{rr+4*u+3}], v{b_}, s[{sWi}:{sWi+3}], 0 offen")
        p(f"s_andn2_b64 exec, s[{sE}:{sE+1}], exec")
        p(f"v_subrev_u32 v{b_}, {864*1280}, v{b_}")
        p(f"buffer_load_dwordx4 v[{rr+4*u}:{rr+4*u+3}], v{b_}, s[{sWq}:{sWq+3}], 0 offen")
        p(f"s_mov_b64 exec, s[{sE}:{sE+1}]")
        p(f"v_cmp_gt_u32 vcc, 120320, v{c_}"); p(f"v_lshlrev_b32 v{c_}, 4, v{c_}"); p(f"v_mov_b32 v{a_}, {hx(OOB)}"); p(f"v_cndmask_b32 v{c_}, v{a_}, v{c_}, vcc")
    p("s_waitcnt vmcnt(0)")
    for u in range(NU):
        p(f"buffer_store_dwordx4 v[{rr+4*u}:{rr+4*u+3}], v{cc+u}, s[{sWS}:{sWS+3}], s{sWSo} offen {sc}")
    p(f"s_add_u32 s{sIt}, s{sIt}, 1"); p(f"s_cmp_lt_u32 s{sIt}, 3")
    p("s_waitcnt vmcnt(0)")
    p(f"s_cbranch_scc1 {tag}_rp")
    p(f"{tag}_done:")
    return dict(vgpr=V.n, sgpr=S.n, lds=LDS, stamps=st.names)
```

```python
import sys
sys.path.insert(0, 'dev')
from build7 import *
import shutil
shutil.copy('v50.s', 'a.s')
shutil.copy('v50.s', 'b.s')
base = dict(codepf=0x8800)
mk('c.s', p1=dict(base, la2=3))
mk('d.s', p1=dict(base, lessbar=True))
mk('e.s', p1=dict(base, fpre=True, nfill1=10, g0=5))
mk('f.s', p1=dict(base, la2=3, lessbar=True, fpre=True, nfill1=10, g0=5))
```

```python
from asmlib import Prog
from gen import *
from gen2 import *
import gen2

def emit_km(p, tag="KM", lds0=0, ssc="", kfirst=True, k1b=True):
    S = Alloc(4, 100, 's'); V = Alloc(1, 256, 'v')
    R = prologue(p, S, V, ['ws'])
    sWS = S('srdWS', 4)
    sw = S('w'); sRb = S('rb'); sHp = S('hp'); sT0 = S('t0'); sT1 = S('t1'); sM = S('m'); sE = S('ex', 2); sC = S('c')
    vL = V('lane'); vA = V('a'); vB = V('b'); vC = V('c'); vQ = V('q'); vG = V('g')
    vQa = V('qa'); vKa = V('ka'); vKb = V('kb'); vVa = V('va'); vOa = V('oa'); vOb = V('ob')
    bias = V('bias', 8, 4)
    T = []
    for par in range(2):
        T.append(dict(q=V(f'q{par}', 4, 4), kp=V(f'kp{par}', 4, 4), kc=V(f'kc{par}', 4, 4), v0=V(f'v0{par}', 4, 4), v1=V(f'v1{par}', 4, 4),
                      s=V(f's{par}', 8, 4), pb=V(f'pb{par}', 4, 4), o0=V(f'o0{par}', 4, 4), o1=V(f'o1{par}', 4, 4), m=V(f'm{par}'), t=V(f't{par}'), r=V(f'r{par}')))
    kS = V('kst', 2, 2); kP = V('kpart', 28, 4); kM = V('km', 16, 4); kD = V('kd', 8, 4); kO = V('ko', 2); kT = V('kt', 8, 4); kA = V('ka_'); kB = V('kb_')
    LQ = lds0; LK = LQ + 10240; LV = LK + 11520; LO = LV + 11520; LN = LO + 10240
    MAT = 160*2048*8
    p(f"v_lshrrev_b32 v{vA}, 6, v0"); p(f"v_and_b32 v{vL}, 63, v0"); p(f"v_readfirstlane_b32 s{sw}, v{vA}")
    p(f"s_and_b32 s{sT0}, s2, 7"); p(f"s_lshr_b32 s{sT1}, s2, 3")
    p(f"s_lshl_b32 s{sRb}, s{sT0}, 1"); p(f"s_and_b32 s{sT0}, s{sT1}, 1"); p(f"s_add_u32 s{sRb}, s{sRb}, s{sT0}"); p(f"s_lshr_b32 s{sHp}, s{sT1}, 1")
    p(f"s_mov_b32 s{sM}, {magic(72, 1536)}")
    sKs = S('ks'); sPt = S('pt'); sU0 = S('u0'); sU1 = S('u1'); sF = S('f', 2); sZr = S('zr'); sZn = S('zn')
    def k1b_loads():
        p(f"s_lshr_b32 s{sKs}, s2, 2"); p(f"s_and_b32 s{sPt}, s2, 3")
        p(f"s_mul_i32 s{sU0}, s{sPt}, 14"); p(f"s_add_u32 s{sU0}, s{sU0}, s{sw}")
        for k in range(2):
            p(f"s_add_u32 s{sU1}, s{sU0}, {8*k}"); p(f"s_cmp_lt_u32 s{sU1}, 54"); p(f"s_cselect_b32 s{sF}, 0, {hx(OOB)}")
            if k == 1:
                p(f"s_cmp_lt_u32 s{sw}, 6"); p(f"s_cselect_b32 s{sF}, s{sF}, {hx(OOB)}")
            p(f"s_mul_i32 s{sF+1}, s{sKs}, 54"); p(f"s_add_u32 s{sF+1}, s{sF+1}, s{sU1}"); p(f"s_lshl_b32 s{sF+1}, s{sF+1}, 10"); p(f"s_or_b32 s{sF+1}, s{sF+1}, s{sF}")
            p(f"v_lshlrev_b32 v{kA}, 4, v{vL}"); p(f"v_add_u32 v{kO+k}, s{sF+1}, v{kA}")
        p(f"s_mov_b32 s{sZr}, {WS_Z2R}"); p(f"s_mov_b32 s{sZn}, {WS_Z2N}")
        p(f"s_mul_i32 s{sU0}, s{sKs}, {27*256}"); p(f"s_add_u32 s{sU0}, s{sU0}, {WS_ZST}")
        p(f"v_and_b32 v{kA}, 31, v{vL}"); p(f"v_lshlrev_b32 v{kA}, 3, v{kA}"); p(f"v_lshrrev_b32 v{kB}, 5, v{vL}"); p(f"v_lshlrev_b32 v{kT}, 8, v{kB}"); p(f"v_add_u32 v{kA}, v{kA}, v{kT}")
        p(f"v_lshlrev_b32 v{kB}, 31, v{kB}"); p(f"v_or_b32 v{kB}, v{kA}, v{kB}")
        for i in range(14):
            src = kB if i == 13 else kA
            p(f"s_add_u32 s{sU1}, s{sU0}, {i*512}")
            p(f"buffer_load_dwordx2 v[{kP+2*i}:{kP+2*i+1}], v{src}, s[{sWS}:{sWS+3}], s{sU1} offen")
        for k in range(2): p(f"buffer_load_dwordx4 v[{kD+4*k}:{kD+4*k+3}], v{kO+k}, s[{sWS}:{sWS+3}], s{sZr} offen")
    def att_loads():
        p(f"s_mul_i32 s{sT0}, s{sHp}, {10*16384}"); p(f"s_lshl_b32 s{sT1}, s{sRb}, 10"); p(f"s_add_u32 s{sT0}, s{sT0}, s{sT1}")
        p(f"s_add_u32 s{sT1}, s{sT0}, {WS_QKV + MAT - 128}")
        p(f"s_add_u32 s{sT0}, s{sT0}, {WS_QKV}")
        sMb = S('mb'); p(f"s_lshl_b32 s{sMb}, s{sw}, 10")
        for k in range(3):
            p(f"v_add_u32 v{vC}, {512*k}, v0")
            p(f"v_mul_hi_u32 v{vA}, v{vC}, s{sM}"); p(f"v_mul_u32_u24 v{vB}, 72, v{vA}"); p(f"v_sub_u32 v{vB}, v{vC}, v{vB}")
            p(f"v_lshlrev_b32 v{vB}, 4, v{vB}")
            p(f"v_cmp_le_u32 vcc, 10, v{vA}"); p(f"v_lshlrev_b32 v{vA}, 14, v{vA}"); p(f"v_add_u32 v{vB}, v{vA}, v{vB}")
            p(f"v_add_u32 v{vA}, {MAT - 10*16384}, v{vB}"); p(f"v_cndmask_b32 v{vB}, v{vB}, v{vA}, vcc")
            p(f"s_add_u32 m0, s{sMb}, {LK + 8192*k}")
            if k == 2:
                p(f"v_cmp_gt_u32 vcc, 1440, v{vC}"); p(f"s_and_saveexec_b64 s[{sE}:{sE+1}], vcc")
                p(f"s_cbranch_execz {tag}_skipkv")
            p(f"buffer_load_dwordx4 v{vB}, s[{sWS}:{sWS+3}], s{sT1} offen lds")
            if k == 2:
                p(f"{tag}_skipkv:"); p(f"s_mov_b64 exec, s[{sE}:{sE+1}]")
        p(f"v_lshlrev_b32 v{vA}, 4, v{vL}")
        p(f"s_lshl_b32 s{sC}, s{sw}, 14"); p(f"s_add_u32 s{sC}, s{sC}, s{sT0}")
        p(f"s_add_u32 m0, s{sMb}, {LQ}")
        p(f"buffer_load_dwordx4 v{vA}, s[{sWS}:{sWS+3}], s{sC} offen lds")
        p(f"s_cmp_lt_u32 s{sw}, 2"); p(f"s_cbranch_scc0 {tag}_noq2")
        p(f"s_add_u32 s{sC}, s{sC}, {8*16384}"); p(f"s_add_u32 m0, s{sMb}, {LQ + 8192}")
        p(f"buffer_load_dwordx4 v{vA}, s[{sWS}:{sWS+3}], s{sC} offen lds")
        p(f"{tag}_noq2:")
    p("s_waitcnt lgkmcnt(0)")
    srd(p, sWS, R['ws'], size=WS_SIZE)
    if not k1b:
        att_loads(); NATT = 0
    elif kfirst:
        k1b_loads(); att_loads()
        NATT = 3
    else:
        att_loads(); k1b_loads()
        NATT = 0
    sHd = S('hd'); sB = S('b')
    p(f"s_lshr_b32 s{sHd}, s{sw}, 2"); p(f"s_and_b32 s{sB}, s{sw}, 3")
    p(f"v_and_b32 v{vQ}, 15, v{vL}"); p(f"v_lshrrev_b32 v{vG}, 4, v{vL}")
    p(f"s_mul_i32 s{sT0}, s{sHd}, {5*1024}"); p(f"s_lshl_b32 s{sT1}, s{sB}, 8"); p(f"s_add_u32 s{sT0}, s{sT0}, s{sT1}"); p(f"s_add_u32 s{sT0}, s{sT0}, {LQ}")
    p(f"v_lshlrev_b32 v{vA}, 10, v{vG}"); p(f"v_lshlrev_b32 v{vB}, 4, v{vQ}"); p(f"v_add_u32 v{vA}, v{vA}, v{vB}"); p(f"v_add_u32 v{vQa}, s{sT0}, v{vA}")
    p(f"s_mul_i32 s{sT0}, s{sHd}, {5*1152}"); p(f"s_lshl_b32 s{sT1}, s{sB}, 8"); p(f"s_add_u32 s{sT0}, s{sT0}, s{sT1}"); p(f"s_add_u32 s{sC}, s{sT0}, {LK - 128}")
    p(f"v_mul_u32_u24 v{vA}, 1152, v{vG}"); p(f"v_add_u32 v{vA}, v{vA}, v{vB}"); p(f"v_add_u32 v{vKa}, s{sC}, v{vA}")
    p(f"s_add_u32 s{sC}, s{sC}, {4*1152}"); p(f"v_add_u32 v{vKb}, s{sC}, v{vB}")
    p(f"s_add_u32 s{sC}, s{sT0}, {LV - 128}")
    p(f"v_and_b32 v{vA}, 3, v{vL}"); p(f"v_mul_u32_u24 v{vA}, 1152, v{vA}")
    p(f"v_lshrrev_b32 v{vB}, 2, v{vL}"); p(f"v_lshlrev_b32 v{vB}, 4, v{vB}")
    p(f"v_add_u32 v{vA}, v{vA}, v{vB}"); p(f"v_add_u32 v{vVa}, s{sC}, v{vA}")
    p(f"s_mul_i32 s{sT0}, s{sHd}, 5"); p(f"v_add_u32 v{vA}, s{sT0}, v{vG}")
    p(f"v_lshrrev_b32 v{vB}, 1, v{vA}"); p(f"v_lshlrev_b32 v{vB}, 11, v{vB}"); p(f"v_and_b32 v{vA}, 1, v{vA}"); p(f"v_lshlrev_b32 v{vA}, 3, v{vA}"); p(f"v_add_u32 v{vA}, v{vA}, v{vB}")
    p(f"v_lshlrev_b32 v{vB}, 5, v{vQ}"); p(f"v_add_u32 v{vA}, v{vA}, v{vB}")
    p(f"s_lshl_b32 s{sT1}, s{sB}, 9"); p(f"s_add_u32 s{sT1}, s{sT1}, {LO}"); p(f"v_add_u32 v{vOa}, s{sT1}, v{vA}")
    p(f"s_mul_i32 s{sT0}, s{sHd}, {2*2048+8}"); p(f"s_add_u32 s{sT0}, s{sT0}, {2*2048}"); p(f"s_add_u32 s{sT0}, s{sT0}, s{sT1}")
    p(f"v_add_u32 v{vOb}, s{sT0}, v{vB}")
    p(f"v_lshlrev_b32 v{vA}, 2, v{vG}"); p(f"v_sub_u32 v{vA}, v{vA}, v{vQ}")
    p(f"s_or_b32 s{sT0}, s{sRb}, s{sB}"); p(f"s_cmp_eq_u32 s{sT0}, 0"); p(f"s_cselect_b32 s{sT0}, 100, 9")
    p(f"v_mov_b32 v{vC}, {hx(f2u(NEGBIG))}")
    for e in range(4):
        p(f"v_add_u32 v{vB}, {e}, v{vA}")
        p(f"v_cmp_gt_i32 vcc, s{sT0}, v{vB}"); p(f"v_cndmask_b32 v{bias+e}, 0, v{vC}, vcc")
        p(f"v_add_u32 v{vB}, 7, v{vB}")
        p(f"v_cmp_lt_u32 vcc, 7, v{vB}"); p(f"v_cndmask_b32 v{bias+4+e}, 0, v{vC}, vcc")
    for t in T:
        p(f"v_mov_b32 v{t['q']+2}, 0"); p(f"v_mov_b32 v{t['q']+3}, 0")
    vOo = V('oo', 2); sOo = S('oo')
    p(f"s_mul_i32 s{sT0}, s{sHp}, 5"); p(f"s_lshl_b32 s{sOo}, s{sRb}, 3"); p(f"s_mul_i32 s{sOo}, s{sOo}, {20*1024}"); p(f"s_add_u32 s{sOo}, s{sOo}, {WS_O}")
    for k in range(2):
        a = vOo + k
        p(f"v_add_u32 v{vC}, {512*k}, v0"); p(f"v_lshrrev_b32 v{vA}, 7, v{vC}"); p(f"v_add_u32 v{vA}, s{sT0}, v{vA}")
        p(f"v_lshrrev_b32 v{vB}, 2, v{vA}"); p(f"v_lshlrev_b32 v{a}, 10, v{vB}"); p(f"v_and_b32 v{vA}, 3, v{vA}"); p(f"v_lshlrev_b32 v{vA}, 8, v{vA}"); p(f"v_add_u32 v{a}, v{a}, v{vA}")
        p(f"v_and_b32 v{vA}, 15, v{vC}"); p(f"v_lshlrev_b32 v{vA}, 4, v{vA}"); p(f"v_add_u32 v{a}, v{a}, v{vA}")
        p(f"v_bfe_u32 v{vA}, v{vC}, 4, 3"); p(f"v_mul_u32_u24 v{vA}, {20*1024}, v{vA}"); p(f"v_add_u32 v{a}, v{a}, v{vA}")
    p(f"s_mov_b32 s{sC}, {hx(f2u(20**-0.5*LOG2E))}")
    def k1b_compute():
        base = NATT + 2 if kfirst else 2
        p(f"s_waitcnt vmcnt({base})")
        p(f"v_add_f32 v{kS}, v{kP}, v{kP+2}"); p(f"v_add_f32 v{kS+1}, v{kP+1}, v{kP+3}")
        for i in range(2, 14):
            p(f"v_add_f32 v{kS}, v{kS}, v{kP+2*i}"); p(f"v_add_f32 v{kS+1}, v{kS+1}, v{kP+2*i+1}")
        for r in range(2):
            p(f"v_mov_b32 v{kA}, v{kS+r}"); p(f"v_permlane32_swap_b32 v{kS+r}, v{kA}"); p(f"v_add_f32 v{kS+r}, v{kS+r}, v{kA}")
        p(f"v_mul_f32 v{kS}, {hx(f2u(1/864))}, v{kS}")
        p(f"v_mul_f32 v{kS+1}, {hx(f2u(1/864))}, v{kS+1}")
        p(f"v_fma_f32 v{kS+1}, -v{kS}, v{kS}, v{kS+1}")
        p(f"v_max_f32 v{kS+1}, 0, v{kS+1}")
        p(f"v_add_f32 v{kS+1}, {hx(f2u(1e-5))}, v{kS+1}"); p(f"v_rsq_f32 v{kS+1}, v{kS+1}")
        p(f"v_mul_f32 v{kS}, v{kS}, v{kS+1}"); p(f"v_sub_f32 v{kS}, 0, v{kS}")
        p(f"s_lshl_b32 s{sT0}, s{sw}, 8"); p(f"s_add_u32 s{sT0}, s{sT0}, {LN}")
        p(f"v_and_b32 v{kA}, 31, v{vL}"); p(f"v_lshlrev_b32 v{kA}, 3, v{kA}"); p(f"v_add_u32 v{kA}, s{sT0}, v{kA}")
        p(f"ds_write_b64 v{kA}, v[{kS}:{kS+1}]")
        p(f"v_lshrrev_b32 v{kA}, 4, v{vL}"); p(f"v_lshlrev_b32 v{kA}, 6, v{kA}"); p(f"v_add_u32 v{kA}, s{sT0}, v{kA}")
        p("s_waitcnt lgkmcnt(0)")
        for q in range(4): p(f"ds_read_b128 v[{kM+4*q}:{kM+4*q+3}], v{kA} offset:{16*q}")
        p(f"s_waitcnt vmcnt({NATT}) lgkmcnt(0)")
        for k in range(2):
            for e in range(8):
                src = kD + 4*k + e//2
                p(f"v_lshlrev_b32 v{kT+e}, 16, v{src}" if e % 2 == 0 else f"v_and_b32 v{kT+e}, 0xffff0000, v{src}")
            for e in range(8): p(f"v_fma_f32 v{kT+e}, v{kT+e}, v{kM+2*e+1}, v{kM+2*e}")
            for e in range(0, 8, 2): p(f"v_cvt_pk_bf16_f32 v{kD+4*k+e//2}, v{kT+e}, v{kT+e+1}")
    if k1b: k1b_compute()
    p("s_waitcnt vmcnt(0)"); p("s_barrier")
    for k in range(2 if k1b else 0):
        p(f"buffer_store_dwordx4 v[{kD+4*k}:{kD+4*k+3}], v{kO+k}, s[{sWS}:{sWS+3}], s{sZn} offen {ssc}")
    for par, t in enumerate(T):
        o = 8*par
        p(f"ds_read_b64 v[{t['q']}:{t['q']+1}], v{vQa} offset:{o}")
        p(f"ds_read_b64 v[{t['kp']}:{t['kp']+1}], v{vKa} offset:{o}")
        p(f"ds_read_b64 v[{t['kp']+2}:{t['kp']+3}], v{vKb} offset:{o}")
        p(f"ds_read_b64 v[{t['kc']}:{t['kc']+1}], v{vKa} offset:{o+256}")
        p(f"ds_read_b64 v[{t['kc']+2}:{t['kc']+3}], v{vKb} offset:{o+256}")
        p("s_mov_b64 exec, 0xffff")
        p(f"ds_read_b64 v[{t['q']+2}:{t['q']+3}], v{vQa} offset:{o+4096}")
        p("s_mov_b64 exec, -1")
    for par, t in enumerate(T):
        o = 8*par
        p(f"ds_read_b64_tr_b16 v[{t['v0']}:{t['v0']+1}], v{vVa} offset:{o}")
        p(f"ds_read_b64_tr_b16 v[{t['v0']+2}:{t['v0']+3}], v{vVa} offset:{o+256}")
        p(f"ds_read_b64_tr_b16 v[{t['v1']}:{t['v1']+1}], v{vVa} offset:{o+4*1152}")
        p(f"ds_read_b64_tr_b16 v[{t['v1']+2}:{t['v1']+3}], v{vVa} offset:{o+4*1152+256}")
    for par, t in enumerate(T):
        p(f"s_waitcnt lgkmcnt({8 + (6 if par == 0 else 0)})")
        p(f"v_mfma_f32_16x16x32_bf16 v[{t['s']}:{t['s']+3}], v[{t['kp']}:{t['kp']+3}], v[{t['q']}:{t['q']+3}], v[{bias}:{bias+3}]")
        p(f"v_mfma_f32_16x16x32_bf16 v[{t['s']+4}:{t['s']+7}], v[{t['kc']}:{t['kc']+3}], v[{t['q']}:{t['q']+3}], v[{bias+4}:{bias+7}]")
    for t in T:
        s = t['s']
        p(f"v_max3_f32 v{t['m']}, v{s}, v{s+1}, v{s+2}"); p(f"v_max3_f32 v{t['m']}, v{t['m']}, v{s+3}, v{s+4}")
        p(f"v_max3_f32 v{t['m']}, v{t['m']}, v{s+5}, v{s+6}"); p(f"v_max_f32 v{t['m']}, v{t['m']}, v{s+7}")
    for sw_ in ("v_permlane16_swap_b32", "v_permlane32_swap_b32"):
        for t in T: p(f"v_mov_b32 v{t['t']}, v{t['m']}")
        for t in T: p(f"{sw_} v{t['m']}, v{t['t']}")
        for t in T: p(f"v_max_f32 v{t['m']}, v{t['m']}, v{t['t']}")
    for t in T: p(f"v_mul_f32 v{t['m']}, s{sC}, v{t['m']}")
    for e in range(8):
        for t in T: p(f"v_fma_f32 v{t['s']+e}, v{t['s']+e}, s{sC}, -v{t['m']}")
    for e in range(8):
        for t in T: p(f"v_exp_f32 v{t['s']+e}, v{t['s']+e}")
    for t in T:
        s = t['s']
        for e in range(0, 8, 2): p(f"v_cvt_pk_bf16_f32 v{t['pb']+e//2}, v{s+e}, v{s+e+1}")
    for t in T:
        s = t['s']
        p(f"v_add_f32 v{t['r']}, v{s}, v{s+1}")
        for e in range(2, 8): p(f"v_add_f32 v{t['r']}, v{t['r']}, v{s+e}")
    p("s_waitcnt lgkmcnt(0)")
    for t in T:
        p(f"v_mfma_f32_16x16x32_bf16 v[{t['o0']}:{t['o0']+3}], v[{t['v0']}:{t['v0']+3}], v[{t['pb']}:{t['pb']+3}], 0")
        p(f"v_mfma_f32_16x16x32_bf16 v[{t['o1']}:{t['o1']+3}], v[{t['v1']}:{t['v1']+3}], v[{t['pb']}:{t['pb']+3}], 0")
    for sw_ in ("v_permlane16_swap_b32", "v_permlane32_swap_b32"):
        for t in T: p(f"v_mov_b32 v{t['t']}, v{t['r']}")
        for t in T: p(f"{sw_} v{t['r']}, v{t['t']}")
        for t in T: p(f"v_add_f32 v{t['r']}, v{t['r']}, v{t['t']}")
    for t in T: p(f"v_rcp_f32 v{t['r']}, v{t['r']}")
    for t in T:
        for blk in ('o0', 'o1'):
            for e in range(4): p(f"v_mul_f32 v{t[blk]+e}, v{t[blk]+e}, v{t['r']}")
            p(f"v_cvt_pk_bf16_f32 v{t[blk]}, v{t[blk]}, v{t[blk]+1}"); p(f"v_cvt_pk_bf16_f32 v{t[blk]+1}, v{t[blk]+2}, v{t[blk]+3}")
    for par, t in enumerate(T):
        p(f"ds_write_b64 v{vOa}, v[{t['o0']}:{t['o0']+1}] offset:{16*par}")
    p("s_mov_b64 exec, 0xffff")
    for par, t in enumerate(T):
        p(f"ds_write_b64 v{vOb}, v[{t['o1']}:{t['o1']+1}] offset:{16*par}")
    p("s_mov_b64 exec, -1")
    t = T[0]
    p(f"v_lshlrev_b32 v{vA}, 4, v0")
    p("s_waitcnt lgkmcnt(0)"); p("s_barrier")
    p(f"ds_read_b128 v[{t['q']}:{t['q']+3}], v{vA} offset:{LO}")
    p(f"s_cmp_lt_u32 s{sw}, 2"); p(f"s_cbranch_scc0 {tag}_o1")
    p(f"ds_read_b128 v[{t['kc']}:{t['kc']+3}], v{vA} offset:{LO+8192}")
    p("s_waitcnt lgkmcnt(0)")
    p(f"buffer_store_dwordx4 v[{t['kc']}:{t['kc']+3}], v{vOo+1}, s[{sWS}:{sWS+3}], s{sOo} offen {ssc}")
    p(f"{tag}_o1:")
    p("s_waitcnt lgkmcnt(0)")
    p(f"buffer_store_dwordx4 v[{t['q']}:{t['q']+3}], v{vOo}, s[{sWS}:{sWS+3}], s{sOo} offen {ssc}")
    return dict(vgpr=V.n, sgpr=S.n, lds=LN + 2048)
```

```python
from asmlib import Prog
from gen import *
from gen2 import *

WS_NON = 0xD90000
WS_CG  = 0xE00000
WS_XG  = 0xE80000
WS_ZG  = 0xE90000
SPIN = 200000

def dpp_sum64_ops(v, t):
    L = []
    for d in ("quad_perm:[1,0,3,2]", "quad_perm:[2,3,0,1]", "row_half_mirror", "row_mirror"):
        L.append(f"v_add_f32_dpp v{v}, v{v}, v{v} {d} row_mask:0xf bank_mask:0xf")
    L += [f"v_mov_b32 v{t}, v{v}", f"v_permlane16_swap_b32 v{v}, v{t}", f"v_add_f32 v{v}, v{v}, v{t}",
          f"v_mov_b32 v{t}, v{v}", f"v_permlane32_swap_b32 v{v}, v{t}", f"v_add_f32 v{v}, v{v}, v{t}"]
    return L

def xstats_ops(vx, vD, vE, vQ, dst):
    L = []
    for j in range(5):
        L.append(f"v_and_b32 v{vx+5+j}, 0xffff0000, v{vx+j}"); L.append(f"v_lshlrev_b32 v{vx+j}, 16, v{vx+j}")
    L.append(f"v_add_f32 v{vD}, v{vx}, v{vx+1}"); L.append(f"v_add_f32 v{vE}, v{vx+2}, v{vx+3}")
    for j in range(4, 10, 2):
        L.append(f"v_add_f32 v{vD}, v{vD}, v{vx+j}"); L.append(f"v_add_f32 v{vE}, v{vE}, v{vx+j+1}")
    L.append(f"v_add_f32 v{vD}, v{vD}, v{vE}")
    L += dpp_sum64_ops(vD, vE)
    L.append(f"v_mul_f32 v{vD}, {hx(f2u(1/640))}, v{vD}")
    for j in range(10): L.append(f"v_sub_f32 v{vx+j}, v{vx+j}, v{vD}")
    L.append(f"v_mul_f32 v{vQ}, v{vx}, v{vx}"); L.append(f"v_mul_f32 v{vE}, v{vx+1}, v{vx+1}")
    for j in range(2, 10, 2):
        L.append(f"v_fmac_f32 v{vQ}, v{vx+j}, v{vx+j}"); L.append(f"v_fmac_f32 v{vE}, v{vx+j+1}, v{vx+j+1}")
    L.append(f"v_add_f32 v{vQ}, v{vQ}, v{vE}")
    L += dpp_sum64_ops(vQ, vE)
    L.append(f"v_mov_b32 v{vE}, {hx(f2u(1e-5))}"); L.append(f"v_fmac_f32 v{vE}, {hx(f2u(1/640))}, v{vQ}")
    L.append(f"v_rsq_f32 v{dst}, v{vE}")
    L.append(f"v_sub_f32 v{dst+1}, 0, v{vD}")
    return L

def emit_p1x(p, tag="P1", prof=False, nfill1=8, nfill2=4, sc="", pw=0, ng=26, nc=37, codepf=0, touch=False, z2n=False, pfid=8, g0=6, nonb=2, npro=3, statpos=3, la2=2, lessbar=False, fpre=False, nf2a=None, a2a=False, dbgz2=False, dmapen=2, zbar=14, mg=58, mc=67, nf3=6, nf2q=None):
    S = Alloc(4, 100, 's'); V = Alloc(1, 256, 'v')
    sX = S('srdX', 4); sWi = S('srdWi', 4); sWq = S('srdWq', 4); sWS = S('srdWS', 4); sD = S('srdD', 4); sP = S('srdP', 4)
    for r_, off in ((sWS, 80), (sX, 0), (sWi, 32), (sWq, 8), (sD, 72)):
        p(f"s_load_dwordx2 s[{r_}:{r_+1}], s[0:1], {off}")
    def fin(s_, size):
        p(f"s_mov_b32 s{s_+2}, {hx(size)}"); p(f"s_mov_b32 s{s_+3}, {SRD3}")
    sw = S('w'); sRb = S('rb'); sCg = S('cg'); sRg = S('rg'); sCh = S('ch'); sT0 = S('t0'); sT1 = S('t1'); sT2 = S('t2')
    sCk = S('blk', 14, 4)
    sLA, sLB, sOX, sOW0, sOW1, sXr, sSt, sCG, sXG, sJ, sZso, sRow0, sV1 = range(sCk, sCk + 13)
    sMb = S('mb'); sE = S('ex', 2)
    sC1 = S('c1'); sQo = S('qo'); sZ2o = S('z2o'); sV2 = S('v2'); sWSo = S('wso')
    sN = S('nonce', 2); sSp = S('spin')
    st = Stamps(p, S, prof)
    vL = V('lane'); vW = V('wrd'); vW2 = V('wrd2'); vDW = V('dmaW'); vDQ = V('dmaQ'); vSt = V('xst', 2); vCs = V('cs'); vC2 = V('c2')
    vZ1 = V('z1o'); vQo = V('qoff'); vSw = V('stw'); vSr = V('str'); vZs = V('zso'); vL0 = V('l0'); vA = V('ab', 2, 2); vB = vA + 1; vZt = V('zt'); vCA = V('ca_')
    T = V('T', 8, 4)
    WF = V('wf', 16, 4)
    AZ1 = V('az1', 16, 4); AZ2 = V('az2', 16, 4); AQ = V('aq', 16, 4)
    X = V('x', 160, 4)
    vXa = [AQ + j for j in range(4)]; vDX0 = AQ + 4; vDX1 = AQ + 5
    xr = X + 120; wl = X + 132; ca = X + 144; vPo = X + 148; XP = X + 152; CP = X + 156
    pA = X + 112; pB = X + 114; pC = X + 116; vNo = X + 118; vPf = X + 119; vD_ = X + 130; vE_ = X + 131; vQ_ = X + 149
    GX = AQ + 4; GC = [T, T + 4, AQ + 8, AQ + 12]
    TBL = 131072; STG = TBL + 1024
    LDS = STG + 8*2048
    ZT = 149504
    if a2a: LDS = ZT + 2048; assert la2 == 2
    NONL = STG
    st('start')
    p(f"s_memrealtime s[{sN}:{sN+1}]")
    p(f"v_lshrrev_b32 v{vA}, 6, v0"); p(f"v_and_b32 v{vL}, 63, v0"); p(f"v_readfirstlane_b32 s{sw}, v{vA}")
    if codepf:
        p(f"s_getpc_b64 s[{sE}:{sE+1}]")
        p(f"s_and_b32 s{sE}, s{sE}, 0xffffff00")
        p(f"v_lshlrev_b32 v{vA}, 7, v0")
        p(f"s_cmp_lt_u32 s2, {pfid}"); p(f"s_cselect_b64 exec, -1, 1")
        for k in range((codepf + 65535)//65536):
            if k: p(f"v_add_u32 v{vA}, 0x10000, v{vA}")
            p(f"v_min_u32 v{vB}, {codepf - 4}, v{vA}")
            p(f"global_load_dword v{vPf}, v{vB}, s[{sE}:{sE+1}]")
        p("s_mov_b64 exec, -1")
    p(f"s_and_b32 s{sT0}, s2, 7"); p(f"s_lshr_b32 s{sT1}, s2, 3")
    p(f"s_and_b32 s{sRb}, s{sT0}, 1"); p(f"s_lshl_b32 s{sRb}, s{sRb}, 3"); p(f"s_and_b32 s{sT2}, s{sT1}, 7"); p(f"s_add_u32 s{sRb}, s{sRb}, s{sT2}")
    p(f"s_lshr_b32 s{sCg}, s{sT0}, 1"); p(f"s_lshl_b32 s{sCg}, s{sCg}, 2"); p(f"s_lshr_b32 s{sT2}, s{sT1}, 3"); p(f"s_add_u32 s{sCg}, s{sCg}, s{sT2}")
    p(f"s_lshl_b32 s{sXG}, s{sRb}, 7"); p(f"s_lshl_b32 s{sT0}, s{sCg}, 3"); p(f"s_add_u32 s{sXG}, s{sXG}, s{sT0}"); p(f"s_add_u32 s{sXG}, s{sXG}, s{sw}")
    p(f"s_mul_i32 s{sXr}, s{sXG}, 1280")
    p(f"s_lshl_b32 s{sXG}, s{sXG}, 4"); p(f"s_add_u32 s{sXG}, s{sXG}, {WS_XG}")
    p(f"v_min_u32 v{vL0}, 1, v{vL}"); p(f"v_lshlrev_b32 v{vL0}, 31, v{vL0}")
    p(f"s_cmp_eq_u32 s{sw}, 0"); p(f"s_cselect_b32 s{sT0}, 0, {hx(OOB)}"); p(f"v_or_b32 v{vPo}, s{sT0}, v{vL0}")
    p(f"s_cmp_eq_u32 s2, 0"); p(f"s_cselect_b32 s{sT0}, 0, {hx(OOB)}"); p(f"v_or_b32 v{vNo}, s{sT0}, v{vPo}")
    vXo_ = X + 142; vPo_ = X + 143
    p(f"v_lshlrev_b32 v{vXo_}, 2, v{vL}")
    p(f"s_cmp_eq_u32 s{sCg}, 15"); p(f"s_cbranch_scc1 {tag}_aux")
    p(f"s_and_b32 s{sRg}, s{sw}, 3"); p(f"s_lshr_b32 s{sCh}, s{sw}, 2")
    p(f"s_min_u32 s{sLA}, s{sCg}, 13"); p(f"s_add_u32 s{sLB}, s{sCg}, 14"); p(f"s_cmp_lt_u32 s{sCg}, 13"); p(f"s_cselect_b32 s{sLB}, s{sLB}, 13")
    p(f"v_lshrrev_b32 v{T+2}, 4, v{vL}"); p(f"v_and_b32 v{T+3}, 7, v{vL}"); p(f"v_xor_b32 v{T+2}, v{T+2}, v{T+3}"); p(f"v_lshlrev_b32 v{T+2}, 4, v{T+2}")
    p(f"v_lshrrev_b32 v{T+3}, 3, v{vL}"); p(f"v_mul_u32_u24 v{T}, 1280, v{T+3}"); p(f"v_add_u32 v{vDX0}, v{T+2}, v{T}")
    p(f"v_xor_b32 v{vDX1}, 64, v{T+2}"); p(f"v_add_u32 v{vDX1}, v{vDX1}, v{T}"); p(f"v_add_u32 v{vDX1}, {10240-1024}, v{vDX1}")
    p(f"v_lshrrev_b32 v{T+2}, 2, v{vL}"); p(f"v_and_b32 v{T+2}, 4, v{T+2}"); p(f"v_and_b32 v{T+1}, 7, v{vL}"); p(f"v_xor_b32 v{T+2}, v{T+2}, v{T+1}"); p(f"v_lshlrev_b32 v{T+2}, 4, v{T+2}")
    p(f"v_mul_u32_u24 v{T}, 3456, v{T+3}"); p(f"v_add_u32 v{vDW}, v{T+2}, v{T}")
    p(f"v_mul_u32_u24 v{T}, 3840, v{T+3}"); p(f"v_add_u32 v{vDQ}, v{T+2}, v{T}")
    p(f"s_lshl_b32 s{sT0}, s{sRb}, 7"); p(f"s_lshl_b32 s{sT1}, s{sw}, 4"); p(f"s_add_u32 s{sT0}, s{sT0}, s{sT1}"); p(f"s_mul_i32 s{sOX}, s{sT0}, 1280")
    p(f"s_cmp_eq_u32 s{sCh}, 0"); p(f"s_cselect_b32 s{sT0}, s{sLA}, s{sLB}"); p(f"s_lshl_b32 s{sT0}, s{sT0}, 7")
    p(f"s_mul_i32 s{sT1}, s{sRg}, {16*3456}"); p(f"s_add_u32 s{sOW0}, s{sT0}, s{sT1}"); p(f"s_add_u32 s{sOW1}, s{sOW0}, {8*3456 - 1024}")
    p(f"s_lshl_b32 s{sMb}, s{sw}, 11")
    p(f"v_mov_b32 v{pA}, 0")
    p("s_waitcnt lgkmcnt(0)")
    st('karg')
    fin(sX, 2048*1280); fin(sWi, 640*3456); fin(sWq, 640*3840); fin(sWS, WS_SIZE); fin(sD, 256)
    def nonce_store():
        p(f"s_or_b32 s{sN}, s{sN}, 1")
        p(f"v_mov_b32 v{pC}, s{sN}"); p(f"v_mov_b32 v{pC+1}, s{sN+1}")
        p(f"buffer_store_dwordx2 v[{pC}:{pC+1}], v{vNo}, s[{sD}:{sD+3}], 0 offen sc1")
        p(f"s_mov_b32 s{sE}, {WS_NON}")
        p(f"buffer_store_dwordx2 v[{pC}:{pC+1}], v{vNo}, s[{sWS}:{sWS+3}], s{sE} offen")
    def poll(r): return f"buffer_load_dwordx2 v[{r}:{r+1}], v{vPo}, s[{sD}:{sD+3}], 0 offen sc1"
    def xrow_loads():
        for j in range(5): p(f"buffer_load_dword v{xr+j}, v{vXo_}, s[{sX}:{sX+3}], s{sXr} offen offset:{256*j}")
    def dmaX(i):
        return [f"s_add_u32 m0, s{sMb}, {(i % 4)*16384}",
                f"buffer_load_dwordx4 v{vDX0}, s[{sX}:{sX+3}], s{sOX} offen lds",
                f"buffer_load_dwordx4 v{vDX1}, s[{sX}:{sX+3}], s{sOX} offen offset:1024 lds",
                f"s_add_u32 s{sOX}, s{sOX}, 128"]
    def dmaW(i):
        return [f"s_add_u32 m0, s{sMb}, {(4 + i % 4)*16384}",
                f"buffer_load_dwordx4 v{vDW}, s[{sWi}:{sWi+3}], s{sOW0} offen lds",
                f"buffer_load_dwordx4 v{vDW}, s[{sWi}:{sWi+3}], s{sOW1} offen offset:1024 lds",
                f"s_add_u32 s{sOW0}, s{sOW0}, {64*3456}", f"s_add_u32 s{sOW1}, s{sOW1}, {64*3456}"]
    P2SLOT = [2, 6, 3, 7, 0, 4, 1, 5, 2, 6]
    sOQ0 = S('oQ0'); sOQ1 = S('oQ1')
    def dmaQ(t):
        L = [f"s_add_u32 m0, s{sMb}, {P2SLOT[t]*16384}",
             f"buffer_load_dwordx4 v{vDQ}, s[{sWq}:{sWq+3}], s{sOQ0} offen lds",
             f"buffer_load_dwordx4 v{vDQ}, s[{sWq}:{sWq+3}], s{sOQ1} offen offset:1024 lds"]
        d = 128*3840 if t != 4 else 128 - 4*128*3840
        L += [f"s_add_u32 s{sOQ0}, s{sOQ0}, {hx(d)}", f"s_add_u32 s{sOQ1}, s{sOQ1}, {hx(d)}"]
        return L
    def dma_stage(i):
        for l in dmaX(i) + dmaW(i): p(l)
        p(f"@mark st{i}")
    def stat_loads():
        p(f"s_lshr_b32 s{sT0}, s{sw}, 1")
        p(f"s_lshl_b32 s{sT1}, s{sCg}, 1"); p(f"s_add_u32 s{sT1}, s{sT1}, s{sT0}"); p(f"s_sub_u32 s{sT1}, s{sT1}, 2")
        p(f"s_cmp_eq_u32 s{sT0}, 0"); p(f"s_cselect_b32 s{sT1}, s{sLA}, s{sT1}")
        p(f"s_cmp_eq_u32 s{sT0}, 1"); p(f"s_cselect_b32 s{sT1}, s{sLB}, s{sT1}")
        p(f"s_lshl_b32 s{sT1}, s{sT1}, 7"); p(f"s_and_b32 s{sE}, s{sw}, 1"); p(f"s_lshl_b32 s{sE}, s{sE}, 6"); p(f"s_add_u32 s{sT1}, s{sT1}, s{sE}")
        p(f"s_mov_b32 s{sE}, 3840"); p(f"s_cmp_lt_u32 s{sT0}, 2"); p(f"s_cselect_b32 s{sSt}, 3456, s{sE}")
        p(f"s_mul_i32 s{sE}, s{sRb}, 40"); p(f"s_mul_i32 s{sE}, s{sE}, s{sSt}"); p(f"s_add_u32 s{sCG}, s{sT1}, s{sE}")
        p(f"v_lshrrev_b32 v{vPo_}, 3, v{vL}"); p(f"v_mul_lo_u32 v{vPo_}, v{vPo_}, s{sSt}"); p(f"v_and_b32 v{T}, 7, v{vL}"); p(f"v_lshlrev_b32 v{T}, 3, v{T}"); p(f"v_add_u32 v{vPo_}, v{vPo_}, v{T}")
        xrow_loads()
        p(f"s_cmp_lt_u32 s{sw}, 4")
        for k in range(3): p(f"s_cselect_b32 s{sP+k}, s{sWi+k}, s{sWq+k}")
        p(f"s_mov_b32 s{sP+3}, {SRD3}")
        p(f"s_lshl_b32 s{sSt}, s{sSt}, 3")
        for i in range(5):
            p(f"buffer_load_dwordx2 v[{wl+2*i}:{wl+2*i+1}], v{vPo_}, s[{sP}:{sP+3}], s{sCG} offen")
            if i < 4: p(f"s_add_u32 s{sCG}, s{sCG}, s{sSt}")
        p(f"s_lshl_b32 s{sCG}, s{sCg}, 3"); p(f"s_add_u32 s{sCG}, s{sCG}, s{sw}"); p(f"s_lshl_b32 s{sCG}, s{sCG}, 12"); p(f"s_add_u32 s{sCG}, s{sCG}, {WS_CG}")
    sZG = S('zg'); sZG2 = S('zg2'); sZm = S('zm')
    def setupA():
        p(f"v_and_b32 v{vA}, 31, v{vL}"); p(f"v_lshrrev_b32 v{vB}, 1, v{vA}"); p(f"v_and_b32 v{vB}, 7, v{vB}"); p(f"v_lshrrev_b32 v{T}, 5, v{vL}")
        p(f"v_xor_b32 v{vB}, v{vB}, v{T}"); p(f"v_lshlrev_b32 v{vB}, 4, v{vB}"); p(f"v_lshlrev_b32 v{vA}, 7, v{vA}"); p(f"v_add_u32 v{vA}, v{vA}, v{vB}")
        p(f"s_lshl_b32 s{sT0}, s{sRg}, 12"); p(f"v_add_u32 v{vXa[0]}, s{sT0}, v{vA}")
        for j in range(1, 4): p(f"v_xor_b32 v{vXa[j]}, {j << 5}, v{vXa[0]}")
        p(f"v_lshrrev_b32 v{vA}, 5, v{vL}"); p(f"v_lshlrev_b32 v{vA}, 3, v{vA}"); p(f"v_bfe_u32 v{vB}, v{vL}, 2, 2"); p(f"v_add_u32 v{vA}, v{vA}, v{vB}"); p(f"v_lshlrev_b32 v{vA}, 7, v{vA}")
        p(f"v_lshrrev_b32 v{vB}, 1, v{vB}"); p(f"v_lshlrev_b32 v{vB}, 6, v{vB}")
        p(f"v_bfe_u32 v{T}, v{vL}, 4, 1"); p(f"v_lshlrev_b32 v{T}, 5, v{T}"); p(f"v_and_b32 v{T+1}, 3, v{vL}"); p(f"v_lshlrev_b32 v{T+1}, 3, v{T+1}"); p(f"v_add_u32 v{T}, v{T}, v{T+1}")
        p(f"s_lshl_b32 s{sT0}, s{sCh}, 6"); p(f"v_add_u32 v{T}, s{sT0}, v{T}"); p(f"v_xor_b32 v{T}, v{T}, v{vB}"); p(f"v_add_u32 v{vW}, v{vA}, v{T}")
        p(f"v_add_u32 v{vW2}, 0x10000, v{vW}")
    def setupB():
        p(f"s_lshl_b32 s{sT0}, s{sRb}, 7"); p(f"s_lshl_b32 s{sT1}, s{sRg}, 5"); p(f"s_add_u32 s{sRow0}, s{sT0}, s{sT1}")
        p(f"s_mul_i32 s{sOQ0}, s{sw}, {16*3840}"); p(f"s_lshl_b32 s{sT0}, s{sCg}, 8"); p(f"s_add_u32 s{sOQ0}, s{sOQ0}, s{sT0}"); p(f"s_add_u32 s{sOQ1}, s{sOQ0}, {8*3840 - 1024}")
        p(f"v_lshrrev_b32 v{vA}, 5, v{vL}"); p(f"v_lshlrev_b32 v{vA}, 4, v{vA}"); p(f"s_lshl_b32 s{sT0}, s{sCh}, 7"); p(f"s_add_u32 s{sT0}, s{sT0}, {TBL}"); p(f"v_add_u32 v{vCs}, s{sT0}, v{vA}")
        p(f"s_mov_b32 s{sC1}, {hx(f2u(C1))}"); p(f"v_mov_b32 v{vC2}, {hx(f2u(C2))}")
        p(f"s_lshl_b32 s{sT0}, s{sCg}, 1"); p(f"s_add_u32 s{sT0}, s{sT0}, s{sCh}")
        p(f"s_cmp_le_u32 s{sT0}, 26"); p(f"s_cselect_b32 s{sV1}, 0, {hx(OOB)}")
        p(f"s_cmp_le_u32 s{sT0}, 25"); p(f"s_cselect_b32 s{sV2}, 0, {hx(OOB)}"); p(f"s_cmp_eq_u32 s{sT0}, 27"); p(f"s_cselect_b32 s{sV2}, 0, s{sV2}")
        p(f"s_lshl_b32 s{sT0}, s{sLA}, 1"); p(f"s_add_u32 s{sT0}, s{sT0}, s{sCh}"); p(f"s_lshl_b32 s{sT0}, s{sT0}, 10")
        p(f"s_lshr_b32 s{sT1}, s{sRow0}, 4"); p(f"s_mul_i32 s{sT1}, s{sT1}, {54*512}"); p(f"s_add_u32 s{sT0}, s{sT0}, s{sT1}"); p(f"s_or_b32 s{sT0}, s{sT0}, s{sV1}")
        p(f"v_bfe_u32 v{vA}, v{vL}, 4, 1"); p(f"v_mul_u32_u24 v{vA}, {54*512}, v{vA}"); p(f"v_lshrrev_b32 v{vB}, 5, v{vL}"); p(f"v_lshlrev_b32 v{vB}, 8, v{vB}"); p(f"v_add_u32 v{vA}, v{vA}, v{vB}")
        p(f"v_and_b32 v{vB}, 15, v{vL}"); p(f"v_lshlrev_b32 v{vB}, 4, v{vB}"); p(f"v_add_u32 v{vA}, v{vA}, v{vB}"); p(f"v_add_u32 v{vZ1}, s{sT0}, v{vA}")
    def setupC():
        p(f"s_lshl_b32 s{sJ}, s{sLB}, 1"); p(f"s_add_u32 s{sJ}, s{sJ}, s{sCh}"); p(f"s_sub_u32 s{sJ}, s{sJ}, 27"); p(f"s_max_i32 s{sJ}, s{sJ}, 0")
        p(f"s_lshr_b32 s{sT1}, s{sRow0}, 5"); p(f"s_mul_i32 s{sZ2o}, s{sT1}, {54*1024}"); p(f"s_lshl_b32 s{sT0}, s{sJ}, 11"); p(f"s_add_u32 s{sZ2o}, s{sZ2o}, s{sT0}")
        p(f"s_add_u32 s{sZ2o}, s{sZ2o}, {WS_Z2N if a2a else WS_Z2R}")
        if a2a:
            p(f"s_lshl_b32 s{sT0}, s{sRb}, 2"); p(f"s_add_u32 s{sT0}, s{sT0}, s{sRg}"); p(f"s_mul_i32 s{sT0}, s{sT0}, 7168"); p(f"s_add_u32 s{sZG}, s{sT0}, {WS_ZG}")
            p(f"s_add_u32 s{sZG2}, s{sZG}, 4096")
            p(f"s_cmp_lt_u32 s{sCg}, 14"); p(f"s_cselect_b32 s{sT0}, 0, {hx(OOB)}"); p(f"s_cmp_eq_u32 s{sCh}, 0"); p(f"s_cselect_b32 s{sT0}, s{sT0}, {hx(OOB)}")
            p(f"s_min_u32 s{sT1}, s{sCg}, 13"); p(f"s_lshl_b32 s{sT1}, s{sT1}, 9"); p(f"s_or_b32 s{sT0}, s{sT0}, s{sT1}")
            p(f"v_lshlrev_b32 v{vA}, 4, v{vL}"); p(f"v_lshrrev_b32 v{vB}, 5, v{vL}"); p(f"v_lshlrev_b32 v{vB}, 31, v{vB}"); p(f"v_or_b32 v{vA}, v{vA}, v{vB}")
            p(f"v_or_b32 v{vZs}, s{sT0}, v{vA}")
            p(f"s_cmp_eq_u32 s{sV2}, 0"); p(f"s_cselect_b32 s{sZm}, -1, 0")
            p(f"s_lshl_b32 s{sT0}, s{sw}, 8"); p(f"s_add_u32 s{sT0}, s{sT0}, {ZT}")
            p(f"v_and_b32 v{vA}, 31, v{vL}"); p(f"v_lshlrev_b32 v{vA}, 3, v{vA}"); p(f"v_add_u32 v{vZt}, s{sT0}, v{vA}")
        if not a2a:
            p(f"s_mul_i32 s{sT1}, s{sT1}, 27"); p(f"s_add_u32 s{sT1}, s{sT1}, s{sJ}"); p(f"s_lshl_b32 s{sT1}, s{sT1}, 8"); p(f"s_or_b32 s{sT1}, s{sT1}, s{sV2}")
            p(f"v_lshlrev_b32 v{vA}, 3, v{vL}"); p(f"v_lshrrev_b32 v{vB}, 5, v{vL}"); p(f"v_lshlrev_b32 v{vB}, 31, v{vB}"); p(f"v_or_b32 v{vA}, v{vA}, v{vB}"); p(f"v_or_b32 v{vA}, s{sV2}, v{vA}")
            p(f"s_and_b32 s{sT1}, s{sT1}, 0x7fffffff"); p(f"v_add_u32 v{vZs}, s{sT1}, v{vA}")
        p(f"v_and_b32 v{vA}, 31, v{vL}"); p(f"v_bfe_u32 v{vB}, v{vL}, 1, 2"); p(f"v_lshlrev_b32 v{vB}, 4, v{vB}"); p(f"v_lshlrev_b32 v{vA}, 6, v{vA}"); p(f"v_add_u32 v{vA}, v{vA}, v{vB}")
        p(f"v_lshrrev_b32 v{vB}, 5, v{vL}"); p(f"v_lshlrev_b32 v{vB}, 3, v{vB}"); p(f"v_add_u32 v{vA}, v{vA}, v{vB}")
        p(f"s_lshl_b32 s{sT0}, s{sw}, 11"); p(f"s_add_u32 s{sT0}, s{sT0}, {STG}"); p(f"v_add_u32 v{vSw}, s{sT0}, v{vA}")
        p(f"v_lshrrev_b32 v{vA}, 4, v{vL}"); p(f"v_lshlrev_b32 v{vA}, 3, v{vA}"); p(f"v_bfe_u32 v{vB}, v{vL}, 2, 2"); p(f"v_add_u32 v{vA}, v{vA}, v{vB}"); p(f"v_lshlrev_b32 v{vA}, 6, v{vA}")
        p(f"v_lshrrev_b32 v{vB}, 1, v{vB}"); p(f"v_bfe_u32 v{T}, v{vL}, 1, 1"); p(f"v_xor_b32 v{vB}, v{vB}, v{T}"); p(f"v_lshlrev_b32 v{vB}, 4, v{vB}"); p(f"v_add_u32 v{vA}, v{vA}, v{vB}")
        p(f"v_and_b32 v{vB}, 1, v{vL}"); p(f"v_lshlrev_b32 v{vB}, 3, v{vB}"); p(f"v_add_u32 v{vA}, v{vA}, v{vB}"); p(f"v_add_u32 v{vSr}, s{sT0}, v{vA}")
        p(f"v_lshrrev_b32 v{vA}, 5, v{vL}"); p(f"s_lshl_b32 s{sT0}, s{sCh}, 3"); p(f"v_add_u32 v{vA}, s{sT0}, v{vA}"); p(f"v_lshlrev_b32 v{vA}, 14, v{vA}")
        p(f"v_and_b32 v{vB}, 31, v{vL}"); p(f"v_add_u32 v{vB}, s{sRow0}, v{vB}"); p(f"v_lshlrev_b32 v{vB}, 3, v{vB}"); p(f"v_add_u32 v{vQo}, v{vA}, v{vB}")
        p(f"s_lshl_b32 s{sQo}, s{sCg}, 19"); p(f"s_add_u32 s{sQo}, s{sQo}, {WS_QKV}")
        p(f"s_mov_b32 s{sWSo}, {WS_Z1P}")
        p(f"s_mov_b32 s{sZso}, {WS_ZST}")
    p("@auto on")
    nonce_store()
    p(poll(pA))
    dma_stage(0)
    setupA()
    dma_stage(1)
    if statpos == 2: stat_loads()
    setupB()
    if npro >= 3: dma_stage(2)
    if statpos == 3: stat_loads()
    setupC()
    if npro >= 4: dma_stage(3)
    if statpos == 4: stat_loads()
    p(poll(pB))
    st('dma')
    def nonce_bcast():
        p(f"v_or_b32 v{pA}, v{pA}, v{pB}"); p(f"v_or_b32 v{pA+1}, v{pA+1}, v{pB+1}")
        if nonb > 0:
            p(f"v_or_b32 v{pA}, v{pA}, v{pC}"); p(f"v_or_b32 v{pA+1}, v{pA+1}, v{pC+1}")
        p(f"v_readfirstlane_b32 s{sN}, v{pA}"); p(f"v_readfirstlane_b32 s{sN+1}, v{pA+1}")
        p(f"s_cmp_lg_u32 s{sw}, 0"); p(f"s_cbranch_scc1 {tag}_nonw")
        p(f"s_cmp_eq_u32 s{sN}, 0"); p(f"s_cbranch_scc1 {tag}_nspin")
        p(f"{tag}_nok:")
        p(f"v_mov_b32 v{pA}, s{sN}"); p(f"v_mov_b32 v{pA+1}, s{sN+1}"); p(f"v_mov_b32 v{pB}, {NONL}")
        p(f"@raw ds_write_b64 v{pB}, v[{pA}:{pA+1}]")
        p(f"{tag}_nonw:")

    def wbase(slot): return (vW2 if slot >= 4 else vW), (slot % 4)*16384
    def rd1(n):
        i, j = divmod(n, 4)
        L = [f"ds_read_b128 v[{X+4*n}:{X+4*n+3}], v{vXa[j]} offset:{(i % 4)*16384}"]
        vb, o = wbase(4 + i % 4)
        for blk in range(2):
            f = WF + (n & 1)*8 + blk*4
            for rd in range(2):
                L.append(f"ds_read_b64_tr_b16 v[{f+2*rd}:{f+2*rd+1}], v{vb} offset:{o + blk*8192 + j*2048 + rd*512}")
        return L
    def mf1(n):
        L = []
        for blk, acc in enumerate((AZ1, AZ2)):
            f = WF + (n & 1)*8 + blk*4
            c = "0" if n == 0 else f"v[{acc}:{acc+15}]"
            L.append(f"v_mfma_f32_32x32x16_bf16 v[{acc}:{acc+15}], v[{f}:{f+3}], v[{X+4*n}:{X+4*n+3}], {c}")
        return L
    def rd2(m):
        t, j = divmod(m, 8)
        vb, o = wbase(P2SLOT[t])
        f = WF + (m % (la2 + 1))*4
        return [f"ds_read_b64_tr_b16 v[{f+2*rd}:{f+2*rd+1}], v{vb} offset:{o + j*2048 + rd*512}" for rd in range(2)]
    def mf2(m):
        acc = AQ if m < 40 else AZ1
        n = m % 40
        f = WF + (m % (la2 + 1))*4
        c = "0" if n == 0 else f"v[{acc}:{acc+15}]"
        return f"v_mfma_f32_32x32x16_bf16 v[{acc}:{acc+15}], v[{f}:{f+3}], v[{X+4*n}:{X+4*n+3}], {c}"
    def boundary(n_stage):
        if n_stage == nonb: nonce_bcast()
        if lessbar and n_stage >= 10:
            tab = {10: (10, True), 11: (11, True), 12: (14, True), 15: (19, False)}
            if n_stage not in tab: return []
            p(f"@waitvm st{tab[n_stage][0]}")
            if tab[n_stage][1]: p("s_waitcnt lgkmcnt(0)")
        else:
            p(f"@waitvm st{n_stage}")
            p("s_waitcnt lgkmcnt(0)")
        p("s_barrier")
        D = []
        n = n_stage
        if n == 0:
            D = [(dmaX(i) + dmaW(i), f"st{i}") for i in range(npro, 4)]
            if nonb > 0: D.append(([poll(pC)], "pc"))
        elif 1 <= n <= 6: D = [(dmaX(n+3) + dmaW(n+3), f"st{n+3}")]
        elif n == 7: D = [(dmaQ(0), "st10"), (dmaQ(1), "st11")]
        elif n == 8: D = [(dmaQ(2), "st12"), (dmaQ(3), "st13")]
        elif n == 9: D = [(dmaQ(4), "st14"), (dmaQ(5), "st15")]
        elif n == 10: D = [(dmaQ(6), "st16"), (dmaQ(7), "st17")]
        elif n == 11: D = [(dmaQ(8), "st18")]
        elif n == 12: D = [(dmaQ(9), "st19")]
        out = []
        for L, mk in D: out += L + [f"@mark {mk}"]
        return out
    def g_pub():
        L1 = xstats_ops(xr, vD_, vE_, vQ_, XP)
        L = []
        tt = [T, T+1, T+2, T+3]; o1 = T + 4; o2 = T + 5
        for i in range(5):
            for c in range(4):
                src = wl + 2*i + c//2
                dst = ca + c if i == 0 else tt[c]
                L.append(f"v_lshlrev_b32 v{dst}, 16, v{src}" if c % 2 == 0 else f"v_and_b32 v{dst}, 0xffff0000, v{src}")
            if i:
                for c in range(4): L.append(f"v_add_f32 v{ca+c}, v{ca+c}, v{tt[c]}")
        L += [f"v_permlane32_swap_b32 v{ca}, v{ca+2}", f"v_and_b32 v{o1}, 7, v{vL}", f"v_permlane32_swap_b32 v{ca+1}, v{ca+3}", f"v_lshlrev_b32 v{o1}, 5, v{o1}",
              f"v_add_f32 v{CP}, v{ca}, v{ca+2}", f"v_add_f32 v{CP+1}, v{ca+1}, v{ca+3}",
              f"v_lshrrev_b32 v{o2}, 5, v{vL}",
              f"v_mov_b32 v{ca}, v{CP}", f"v_mov_b32 v{ca+1}, v{CP+1}",
              f"v_lshlrev_b32 v{o2}, 4, v{o2}", f"v_add_u32 v{o1}, v{o1}, v{o2}",
              f"v_permlane16_swap_b32 v{CP}, v{ca}", f"v_permlane16_swap_b32 v{CP+1}, v{ca+1}",
              f"v_and_b32 v{o2}, 0x18, v{vL}",
              f"v_add_f32 v{CP}, v{CP}, v{ca}", f"v_add_f32 v{CP+1}, v{CP+1}, v{ca+1}",
              f"v_min_u32 v{o2}, 1, v{o2}", f"v_lshlrev_b32 v{o2}, 31, v{o2}",
              f"v_add_f32_dpp v{CP}, v{CP}, v{CP} row_ror:8 row_mask:0xf bank_mask:0xf", f"v_add_f32_dpp v{CP+1}, v{CP+1}, v{CP+1} row_ror:8 row_mask:0xf bank_mask:0xf",
              f"v_or_b32 v{o1}, v{o1}, v{o2}"]
        M = []
        while L1 or L:
            if L1: M.append(L1.pop(0))
            if L: M.append(L.pop(0))
        M += ["#NON",
              f"v_mov_b32 v{T+6}, {NONL}", f"ds_read_b64 v[{XP+2}:{XP+3}], v{T+6}",
              f"s_lshl_b32 s{sT0}, s{sRb}, 8", f"s_add_u32 s{sT0}, s{sT0}, s{sCG}",
              f"v_mov_b32 v{CP+2}, v{XP+2}", f"v_mov_b32 v{CP+3}, v{XP+3}",
              f"buffer_store_dwordx4 v[{XP}:{XP+3}], v{vL0}, s[{sWS}:{sWS+3}], s{sXG} offen sc1",
              f"buffer_store_dwordx4 v[{CP}:{CP+3}], v{o1}, s[{sWS}:{sWS+3}], s{sT0} offen sc1",
              f"v_readfirstlane_b32 s{sN}, v{XP+2}", f"v_readfirstlane_b32 s{sN+1}, v{XP+3}"]
        return M
    def gather_loads():
        L = [f"buffer_load_dwordx4 v[{GX}:{GX+3}], v{vA}, s[{sWS}:{sWS+3}], s{sXG} offen sc1"]
        for i in range(4): L.append(f"buffer_load_dwordx4 v[{GC[i]}:{GC[i]+3}], v{vB}, s[{sWS}:{sWS+3}], s{sCG} offen offset:{1024*i} sc1")
        return L
    def g_gat():
        return [f"v_and_b32 v{vA}, 31, v{vL}", f"v_lshlrev_b32 v{vA}, 4, v{vA}", f"v_lshlrev_b32 v{vB}, 4, v{vL}",
                f"s_lshl_b32 s{sXG}, s{sRow0}, 4", f"s_add_u32 s{sXG}, s{sXG}, {WS_XG}"] + gather_loads()
    def chk_ops(regs, first=True):
        L = []
        for k, r in enumerate(regs):
            L.append(f"v_cmp_ne_u64 vcc, s[{sN}:{sN+1}], v[{r+2}:{r+3}]")
            L.append(f"s_mov_b64 s[{sE}:{sE+1}], vcc" if k == 0 else f"s_or_b64 s[{sE}:{sE+1}], s[{sE}:{sE+1}], vcc")
        L.append(f"s_cmp_lg_u64 s[{sE}:{sE+1}], 0")
        return L
    def g_con():
        L = chk_ops([GX] + GC) + [f"s_cbranch_scc1 {tag}_gspin", f"{tag}_gok:",
             f"v_mov_b32 v{vSt}, v{GX}", f"v_mov_b32 v{vSt+1}, v{GX+1}",
             f"v_add_f32 v{T}, v{T}, v{T+4}", f"v_add_f32 v{T+1}, v{T+1}, v{T+5}",
             f"v_add_f32 v{AQ+8}, v{AQ+8}, v{AQ+12}", f"v_add_f32 v{AQ+9}, v{AQ+9}, v{AQ+13}",
             f"v_add_f32 v{T}, v{T}, v{AQ+8}", f"v_add_f32 v{T+1}, v{T+1}, v{AQ+9}",
             f"v_and_b32 v{vA}, 15, v{vL}", f"v_lshlrev_b32 v{vA}, 3, v{vA}", f"v_bfe_u32 v{vB}, v{vL}, 4, 1",
             f"v_permlane16_swap_b32 v{T}, v{T+1}",
             f"v_lshl_add_u32 v{vA}, v{vB}, 2, v{vA}", f"s_lshl_b32 s{sT0}, s{sw}, 7", f"s_add_u32 s{sT0}, s{sT0}, {TBL}",
             f"v_add_f32 v{T}, v{T}, v{T+1}", f"v_add_u32 v{vA}, s{sT0}, v{vA}",
             f"v_mov_b32 v{T+1}, v{T}", f"v_permlane32_swap_b32 v{T}, v{T+1}", f"v_add_f32 v{T}, v{T}, v{T+1}",
             f"ds_write_b32 v{vA}, v{T}"]
        return L
    rstd, nm = vSt, vSt + 1
    def norm_ops(acc, seg, rp, t, scale=True):
        L = []
        for c in range(4): L.append(f"v_fma_f32 v{acc+4*rp+c}, v{t+c}, v{nm}, v{acc+4*rp+c}")
        if scale:
            for c in range(4): L.append(f"v_mul_f32 v{acc+4*rp+c}, v{acc+4*rp+c}, v{rstd}")
        return L
    def csread(seg, rp, t): return f"ds_read_b128 v[{t}:{t+3}], v{vCs} offset:{seg*256 + rp*32}"
    def e_z1():
        L = [csread(0, 0, T), csread(0, 1, T+4)]
        for rp in range(4):
            t = T + 4*(rp & 1)
            L += norm_ops(AZ1, 0, rp, t)
            if rp < 2: L.append(csread(0, rp+2, t))
            d = AZ1 + (0 if rp < 2 else 8) + 2*(rp & 1)
            L.append(f"v_cvt_pk_bf16_f32 v{d}, v{AZ1+4*rp}, v{AZ1+4*rp+1}"); L.append(f"v_cvt_pk_bf16_f32 v{d+1}, v{AZ1+4*rp+2}, v{AZ1+4*rp+3}")
            if rp & 1:
                b = AZ1 + (0 if rp < 2 else 8)
                L.append(f"buffer_store_dwordx4 v[{b}:{b+3}], v{vZ1}, s[{sWS}:{sWS+3}], s{sWSo} offen offset:{512*(rp >> 1)} {sc}")
        return L
    vSum = vA; vSq = vB
    def e_z2():
        L = [csread(1, 0, T)]
        g = T + 4
        for rp in range(4):
            L += norm_ops(AZ2, 1, rp, T)
            if rp < 3: L.append(csread(1, rp+1, T))
            a = AZ2 + 4*rp
            steps = [gelu_ops(a+c, g+c, sC1, vC2) for c in range(4)]
            for k in range(7):
                for c in range(4): L.append(steps[c][k])
            for c in range(4):
                if rp == 0 and c == 0:
                    L.append(f"v_mov_b32 v{vSum}, v{a}"); L.append(f"v_mul_f32 v{vSq}, v{a}, v{a}")
                else:
                    L.append(f"v_add_f32 v{vSum}, v{vSum}, v{a+c}"); L.append(f"v_fmac_f32 v{vSq}, v{a+c}, v{a+c}")
            d = AZ2 + 2*rp
            L.append(f"v_cvt_pk_bf16_f32 v{d}, v{a}, v{a+1}"); L.append(f"v_cvt_pk_bf16_f32 v{d+1}, v{a+2}, v{a+3}")
            if rp == 0: L.append(f"ds_write_b64 v{vSw}, v[{d}:{d+1}]")
            else:
                L.append(f"v_xor_b32 v{g}, {rp << 4}, v{vSw}"); L.append(f"ds_write_b64 v{g}, v[{d}:{d+1}]")
        L += [f"v_mov_b32 v{T}, v{vSum}", f"v_mov_b32 v{T+1}, v{vSq}", f"v_permlane32_swap_b32 v{vSum}, v{T}", f"v_permlane32_swap_b32 v{vSq}, v{T+1}",
              f"v_add_f32 v{T+2}, v{vSum}, v{T}", f"v_add_f32 v{T+3}, v{vSq}, v{T+1}",
              f"buffer_store_dwordx2 v[{T+2}:{T+3}], v{vZs}, s[{sWS}:{sWS+3}], s{sZso} offen {sc}"]
        for u in range(2):
            d = AZ2 + 8 + 4*u
            for rd in range(2):
                L.append(f"ds_read_b64_tr_b16 v[{d+2*rd}:{d+2*rd+1}], v{vSr} offset:{rd*256 + (u ^ rd)*32}")
        L.append(f"v_lshlrev_b32 v{T+4}, 4, v{vL}"); L.append(f"v_or_b32 v{T+4}, s{sV2}, v{T+4}")
        for u in range(2):
            d = AZ2 + 8 + 4*u
            L.append(f"buffer_store_dwordx4 v[{d}:{d+3}], v{T+4}, s[{sWS}:{sWS+3}], s{sZ2o} offen offset:{1024*u} {sc}")
        return L
    GP = WF + 12
    def gelu_r(x, t):
        return [f"v_mul_f32 v{t}, v{x}, v{x}", f"v_fma_f32 v{t}, v{t}, v{vC2}, v{vCA}", f"v_mul_f32 v{t}, v{x}, v{t}", f"v_exp_f32 v{t}, v{t}",
                f"v_add_f32 v{t}, 1.0, v{t}", f"v_rcp_f32 v{t}, v{t}", f"v_mul_f32 v{x}, v{x}, v{t}"]
    def e_z2a(z1pre):
        g = T + 4
        L = [csread(1, 0, T), f"v_mul_f32 v{g}, v{rstd}, v{rstd}", f"v_mul_f32 v{vCA}, s{sC1}, v{rstd}", f"v_mul_f32 v{g}, v{g}, v{rstd}", f"v_mul_f32 v{vC2}, v{vC2}, v{g}", "#NEXT"]
        for rp in range(4):
            L += norm_ops(AZ2, 1, rp, T, scale=False)
            if rp < 3: L.append(csread(1, rp+1, T))
            a = AZ2 + 4*rp
            steps = [gelu_r(a+c, g+c) for c in range(4)]
            for k in range(7):
                for c in range(4): L.append(steps[c][k])
            if rp == 3: L += z1pre
            for c in range(4):
                if rp == 0 and c == 0:
                    L.append(f"v_mov_b32 v{vSum}, v{a}"); L.append(f"v_mul_f32 v{vSq}, v{a}, v{a}")
                else:
                    L.append(f"v_add_f32 v{vSum}, v{vSum}, v{a+c}"); L.append(f"v_fmac_f32 v{vSq}, v{a+c}, v{a+c}")
        L += [f"v_mul_f32 v{vSq}, v{vSq}, v{rstd}", f"v_mul_f32 v{vSum}, v{vSum}, v{rstd}", f"v_mul_f32 v{vSq}, v{vSq}, v{rstd}",
              f"v_mov_b32 v{GP}, v{vSum}", f"v_mov_b32 v{GP+1}, v{vSq}", f"v_mov_b32 v{GP+2}, s{sN}", f"v_permlane32_swap_b32 v{vSum}, v{GP}", f"v_permlane32_swap_b32 v{vSq}, v{GP+1}",
              f"v_mov_b32 v{GP+3}, s{sN+1}", f"v_add_f32 v{vSum}, v{vSum}, v{GP}", f"v_add_f32 v{vSq}, v{vSq}, v{GP+1}",
              f"v_and_b32 v{vSum}, s{sZm}, v{vSum}", f"v_and_b32 v{vSq}, s{sZm}, v{vSq}",
              f"ds_write_b64 v{vZt}, v[{vSum}:{vSum+1}]", "@mark zw", f"v_xor_b32 v{vZt}, 1024, v{vZt}"]
        return L
    def e_pub2a(): return ["#BAR", f"ds_read_b64 v[{GP}:{GP+1}], v{vZt}"]
    def e_pub2b():
        return [f"v_add_f32 v{GP}, v{GP}, v{vSum}", f"v_add_f32 v{GP+1}, v{GP+1}, v{vSq}",
                f"buffer_store_dwordx4 v[{GP}:{GP+3}], v{vZs}, s[{sWS}:{sWS+3}], s{sZG} offen sc1", "#ST zpub"]
    ZGR = [X + 4*i for i in range(7)]; vGo = X + 28
    def zg_loads():
        return [f"buffer_load_dwordx4 v[{ZGR[i]}:{ZGR[i]+3}], v{vGo}, s[{sWS}:{sWS+3}], s{sZG if i < 4 else sZG2} offen offset:{(i % 4)*1024} sc1" for i in range(7)]
    def zg_chk():
        L = [f"v_cmp_ne_u64 s[{sCk+2*i}:{sCk+2*i+1}], s[{sN}:{sN+1}], v[{ZGR[i]+2}:{ZGR[i]+3}]" for i in range(7)]
        return L
    def zg_chk2():
        L = [f"s_or_b64 s[{sCk}:{sCk+1}], s[{sCk}:{sCk+1}], s[{sCk+2*i}:{sCk+2*i+1}]" for i in range(1, 7)]
        L.append(f"s_cmp_lg_u64 s[{sCk}:{sCk+1}], 0")
        return L
    def e_z2n():
        x = X
        L = ["#ST zc0"] + zg_chk() + ["#ST zc1", "#GRP"] + zg_chk2() + [f"s_cbranch_scc1 {tag}_zspin", f"{tag}_zok:", "#END", "#ST zok"]
        L += [f"v_add_f32 v{x}, v{x}, v{x+4}", f"v_add_f32 v{x+1}, v{x+1}, v{x+5}", f"v_add_f32 v{x+8}, v{x+8}, v{x+12}", f"v_add_f32 v{x+9}, v{x+9}, v{x+13}",
              f"v_add_f32 v{x+16}, v{x+16}, v{x+20}", f"v_add_f32 v{x+17}, v{x+17}, v{x+21}", f"v_add_f32 v{x}, v{x}, v{x+8}", f"v_add_f32 v{x+1}, v{x+1}, v{x+9}",
              f"v_add_f32 v{x+16}, v{x+16}, v{x+24}", f"v_add_f32 v{x+17}, v{x+17}, v{x+25}", f"v_add_f32 v{x}, v{x}, v{x+16}", f"v_add_f32 v{x+1}, v{x+1}, v{x+17}",
              f"v_mov_b32 v{x+2}, v{x}", f"v_mov_b32 v{x+3}, v{x+1}", f"v_mov_b32 v{x+4}, {hx(f2u(1e-5))}",
              f"v_permlane32_swap_b32 v{x}, v{x+2}", f"v_permlane32_swap_b32 v{x+1}, v{x+3}",
              f"v_add_f32 v{x}, v{x}, v{x+2}", f"v_add_f32 v{x+1}, v{x+1}, v{x+3}",
              f"v_mul_f32 v{x}, {hx(f2u(1/864))}, v{x}", f"v_mul_f32 v{x+1}, {hx(f2u(1/864))}, v{x+1}",
              f"v_fma_f32 v{x+1}, -v{x}, v{x}, v{x+1}", f"v_max_f32 v{x+1}, 0, v{x+1}", f"v_add_f32 v{x+1}, v{x+4}, v{x+1}", f"v_rsq_f32 v{x+1}, v{x+1}",
              f"v_lshlrev_b32 v{x+5}, 4, v{vL}", f"v_or_b32 v{x+5}, s{sV2}, v{x+5}",
              f"v_mul_f32 v{x}, v{x}, v{x+1}", f"v_mul_f32 v{x+1}, v{x+1}, v{rstd}"]
        for rp in range(4):
            a = AZ2 + 4*rp; d = AZ2 + 2*rp
            for c in range(4): L.append(f"v_fma_f32 v{a+c}, v{a+c}, v{x+1}, -v{x}")
            L.append(f"v_cvt_pk_bf16_f32 v{d}, v{a}, v{a+1}"); L.append(f"v_cvt_pk_bf16_f32 v{d+1}, v{a+2}, v{a+3}")
            if rp == 0: L.append(f"ds_write_b64 v{vSw}, v[{d}:{d+1}]")
            else:
                L.append(f"v_xor_b32 v{x+6}, {rp << 4}, v{vSw}"); L.append(f"ds_write_b64 v{x+6}, v[{d}:{d+1}]")
        for u in range(2):
            d = AZ2 + 8 + 4*u
            for rd in range(2):
                L.append(f"ds_read_b64_tr_b16 v[{d+2*rd}:{d+2*rd+1}], v{vSr} offset:{rd*256 + (u ^ rd)*32}")
        L += ["#NEXT", "#NEXT"]
        for u in range(2):
            d = AZ2 + 8 + 4*u
            L.append(f"buffer_store_dwordx4 v[{d}:{d+3}], v{x+5}, s[{sWS}:{sWS+3}], s{sZ2o} offen offset:{1024*u} {sc}")
        return L
    def e_q(acc, seg, defer=False):
        L = [csread(seg, 0, T), csread(seg, 1, T+4)]; St = []
        if defer: L.append("#NEXT")
        for rp in range(4):
            t = T + 4*(rp & 1)
            L += norm_ops(acc, seg, rp, t)
            if rp < 2: L.append(csread(seg, rp+2, t))
            d = acc + 4*rp
            L.append(f"v_cvt_pk_bf16_f32 v{d}, v{d}, v{d+1}"); L.append(f"v_cvt_pk_bf16_f32 v{d+1}, v{d+2}, v{d+3}")
            for l in (f"buffer_store_dwordx2 v[{d}:{d+1}], v{vQo}, s[{sWS}:{sWS+3}], s{sQo} offen {sc}",
                      f"s_add_u32 s{sQo}, s{sQo}, {32768 if rp < 3 else 16*16384 - 3*32768}"): (St if defer else L).append(l)
        return (L, St) if defer else L
    st('pre0')
    dq = boundary(0)
    for l in rd1(0): p(l)
    st('bar0')
    G = g_pub(); G2 = g_gat(); G3 = g_con()
    cur = [0]
    def fill(src, lim):
        k = 0
        while src and k < lim:
            if src[0] == "#NON":
                if cur[0] < 4*nonb: return
                src.pop(0); continue
            l = src.pop(0); p(l)
            if not l.endswith(':'): k += 1
            if not src: st('pub') if src is G else None
    for n in range(40):
        cur[0] = n
        st(f'n{n}')
        if n + 1 < 40:
            if (n + 1) % 4 == 0: dq += boundary((n + 1)//4)
            for l in rd1(n + 1): p(l)
        else:
            assert not G and not G2 and not G3
            dq += boundary(10)
            for l in rd2(0) : p(l)
        if n == 26: assert not G
        if n == 39 and la2 == 3:
            for l in rd2(1): p(l)
        M = mf1(n)
        def fl(lim):
            if G:
                if n >= g0: fill(G, lim)
            elif n >= ng and G2: fill(G2, min(lim, 6) if not fpre else lim)
            elif n >= nc and not G2: fill(G3, 10 if not fpre else 20)
        if fpre: fl(nfill1)
        for h in range(2):
            p(M[h])
            k = 0
            while dq and k < 5:
                l = dq.pop(0); p(l)
                if not l.startswith('@'): k += 1
            if not fpre: fl(nfill1 if k == 0 else max(0, nfill1 - 3))
    st('pass1')
    if a2a:
        z1 = e_z1()
        F = e_z2a(z1[:2]) + z1[2:zbar] + e_pub2a() + z1[zbar:zbar+8] + e_pub2b() + z1[zbar+8:]
        F3 = [f"v_lshlrev_b32 v{vGo}, 4, v{vL}"] + zg_loads(); F4 = e_z2n()
        F2, F2s = e_q(AQ, 2, defer=True)
    else:
        F = (e_z2()*3 if dbgz2 else e_z1() + e_z2()); F3 = []; F4 = []
        F2 = e_q(AQ, 2)
    def emit_fill(src, lim):
        k = 0
        while src and k < lim:
            l = src.pop(0)
            if l == "#BAR":
                p("@waitlds zw"); p("s_barrier"); st('zbar'); continue
            if l == "#NEXT": return
            if l.startswith("#ST "):
                st(l[4:]); continue
            if l == "#GRP":
                while src[0] != "#END": p(src.pop(0))
                src.pop(0); k += 2; continue
            p(l)
            if not l.startswith('@'): k += 1
    for l in rd2(la2 - 1): p(l)
    for m in range(80):
        if m + la2 < 80:
            if (m + la2) % 8 == 0: dq += boundary(10 + (m + la2)//8)
            for l in rd2(m + la2): p(l)
        st(f'm{m}')
        p(mf2(m))
        k = 0
        while dq and k < 5:
            l = dq.pop(0); p(l)
            if not l.startswith('@'): k += 1
        if a2a:
            if m == 40: assert not F, f"z1 epilogue left: {len(F)}"
            if m >= 1 and m < 40: emit_fill(F, int(nf2a*m + 1e-9) - int(nf2a*(m-1) + 1e-9) - (dmapen if k else 0))
            else:
                kk = 0
                if m >= mg and F3: emit_fill(F3, 3 if len(F3) == 8 else 2); kk = 1
                elif m >= mg and not F3 and not F2 and F2s: emit_fill(F2s, 2); kk = 1
                if F2 and m >= 41: emit_fill(F2, (nf2q or nfill2) - kk)
                elif m >= mc and not F3: emit_fill(F4, nf3 - kk)
            continue
        src = F if (F or m < 42) else F2
        lim = (nf2a if (nf2a and m < 40) else nfill2) - (2 if k else 0)
        if m >= 1:
            for _ in range(lim):
                if src: p(src.pop(0))
    assert not dq
    st('pass2')
    if a2a:
        assert not F3
        while F2: emit_fill(F2, 1000)
        emit_fill(F2s, 1000)
        while F4: emit_fill(F4, 1000)
    for l in F + F2: p(l)
    for l in e_q(AZ1, 3): p(l)
    if prof:
        st('end')
        S.names['w'] = sw
        emit_prof_store(p, sWS, st.L, vA, T, S, region=3, wave=pw, tid=True)
    p("@auto off")
    p(f"s_branch {tag}_done")
    p(f"{tag}_nspin:")
    p(f"s_mov_b32 s{sSp}, {SPIN}")
    p(f"{tag}_nspin_l:")
    p("s_waitcnt vmcnt(0)")
    p(f"v_readfirstlane_b32 s{sN}, v{pC}"); p(f"v_readfirstlane_b32 s{sN+1}, v{pC+1}")
    p(f"s_cmp_lg_u32 s{sN}, 0"); p(f"s_cbranch_scc1 {tag}_nok")
    p(poll(pC))
    p(f"s_sub_u32 s{sSp}, s{sSp}, 1"); p(f"s_cmp_lg_u32 s{sSp}, 0"); p(f"s_cbranch_scc1 {tag}_nspin_l")
    p("s_waitcnt vmcnt(0)")
    p(f"s_branch {tag}_nok")
    p(f"{tag}_gspin:")
    p(f"s_mov_b32 s{sSp}, {SPIN}")
    p(f"{tag}_gspin_l:")
    for l in gather_loads(): p(l)
    p("s_waitcnt vmcnt(0)")
    for l in chk_ops([GX] + GC): p(l)
    p(f"s_cbranch_scc0 {tag}_gok")
    p(f"s_sub_u32 s{sSp}, s{sSp}, 1"); p(f"s_cmp_lg_u32 s{sSp}, 0"); p(f"s_cbranch_scc1 {tag}_gspin_l")
    p(f"s_branch {tag}_gok")
    if a2a:
        p(f"{tag}_zspin:")
        p(f"s_mov_b32 s{sSp}, {SPIN}")
        p(f"{tag}_zspin_l:")
        for l in zg_loads(): p(l)
        p("s_waitcnt vmcnt(0)")
        for l in zg_chk() + zg_chk2(): p(l)
        p(f"s_cbranch_scc0 {tag}_zok")
        p(f"s_sub_u32 s{sSp}, s{sSp}, 1"); p(f"s_cmp_lg_u32 s{sSp}, 0"); p(f"s_cbranch_scc1 {tag}_zspin_l")
        p(f"s_branch {tag}_zok")
    p(f"{tag}_aux:")
    p("s_waitcnt lgkmcnt(0)")
    fin(sX, 2048*1280); fin(sWS, WS_SIZE); fin(sD, 256)
    p(f"s_load_dwordx2 s[{sWi}:{sWi+1}], s[0:1], 56"); p(f"s_load_dwordx2 s[{sWq}:{sWq+1}], s[0:1], 16"); p(f"s_load_dwordx2 s[{sP}:{sP+1}], s[0:1], 40")
    p(poll(pA))
    xrow_loads()
    p("s_waitcnt vmcnt(0)")
    for l in xstats_ops(xr, vD_, vE_, vQ_, XP): p(l)
    p(f"s_cmp_lg_u32 s{sw}, 0"); p(f"s_cbranch_scc1 {tag}_aux_w")
    p(f"s_mov_b32 s{sSp}, {SPIN}")
    p(f"{tag}_aux_l:")
    p(f"v_readfirstlane_b32 s{sN}, v{pA}"); p(f"v_readfirstlane_b32 s{sN+1}, v{pA+1}")
    p(f"s_cmp_lg_u32 s{sN}, 0"); p(f"s_cbranch_scc1 {tag}_aux_ok")
    p(poll(pA)); p("s_waitcnt vmcnt(0)")
    p(f"s_sub_u32 s{sSp}, s{sSp}, 1"); p(f"s_cmp_lg_u32 s{sSp}, 0"); p(f"s_cbranch_scc1 {tag}_aux_l")
    p(f"{tag}_aux_ok:")
    p(f"v_mov_b32 v{pA}, s{sN}"); p(f"v_mov_b32 v{pA+1}, s{sN+1}"); p(f"v_mov_b32 v{vA}, {NONL}")
    p(f"ds_write_b64 v{vA}, v[{pA}:{pA+1}]")
    p(f"{tag}_aux_w:")
    p("s_waitcnt lgkmcnt(0)"); p("s_barrier")
    p(f"v_mov_b32 v{vA}, {NONL}"); p(f"ds_read_b64 v[{XP+2}:{XP+3}], v{vA}"); p("s_waitcnt lgkmcnt(0)")
    p(f"buffer_store_dwordx4 v[{XP}:{XP+3}], v{vL0}, s[{sWS}:{sWS+3}], s{sXG} offen sc1")
    fin(sWi, 864*1280); fin(sWq, 640*1280)
    if touch:
        fin(sP, 2048*4096)
        p(f"s_lshl_b32 s{sT0}, s{sRb}, 19"); p(f"v_lshlrev_b32 v{vA}, 7, v0")
        for k in range(8):
            p(f"buffer_load_dword v{T+k}, v{vA}, s[{sP}:{sP+3}], s{sT0} offen")
            p(f"s_add_u32 s{sT0}, s{sT0}, 0x10000")
    sM1 = sLA; sM2 = sLB; sIt = sJ; sC0 = sOX
    p(f"s_mov_b32 s{sM1}, {magic(15040, 131072)}"); p(f"s_mov_b32 s{sM2}, {magic(10, 15040)}")
    p(f"s_mul_i32 s{sC0}, s{sRb}, {15*512}"); p(f"s_mov_b32 s{sIt}, 0"); p(f"s_mov_b32 s{sWSo}, {WS_WR}")
    NU = 5
    rr = X; cc = X + 4*NU; a_, b_, d_, e_ = cc + NU, cc + NU + 1, cc + NU + 2, cc + NU + 3
    p(f"{tag}_rp:")
    for u in range(NU):
        c_ = cc + u
        p(f"v_add_u32 v{c_}, s{sC0}, v0"); p(f"s_add_u32 s{sC0}, s{sC0}, 512")
        p(f"v_mul_hi_u32 v{a_}, v{c_}, s{sM1}")
        p(f"v_mul_u32_u24 v{b_}, 15040, v{a_}"); p(f"v_sub_u32 v{b_}, v{c_}, v{b_}")
        p(f"v_mul_hi_u32 v{d_}, v{b_}, s{sM2}")
        p(f"v_mul_u32_u24 v{e_}, 10, v{d_}"); p(f"v_sub_u32 v{b_}, v{b_}, v{e_}")
        p(f"v_lshlrev_b32 v{b_}, 4, v{b_}"); p(f"v_mul_u32_u24 v{a_}, 160, v{a_}"); p(f"v_add_u32 v{b_}, v{a_}, v{b_}")
        p(f"v_and_b32 v{a_}, 0xfffffff3, v{d_}")
        p(f"v_lshrrev_b32 v{e_}, 1, v{d_}"); p(f"v_and_b32 v{e_}, 4, v{e_}"); p(f"v_or_b32 v{a_}, v{a_}, v{e_}")
        p(f"v_lshlrev_b32 v{e_}, 1, v{d_}"); p(f"v_and_b32 v{e_}, 8, v{e_}"); p(f"v_or_b32 v{a_}, v{a_}, v{e_}")
        p(f"v_mul_u32_u24 v{d_}, 1280, v{a_}"); p(f"v_add_u32 v{b_}, v{b_}, v{d_}")
        p(f"v_cmp_gt_u32 vcc, 864, v{a_}"); p(f"s_and_saveexec_b64 s[{sE}:{sE+1}], vcc")
        p(f"buffer_load_dwordx4 v[{rr+4*u}:{rr+4*u+3}], v{b_}, s[{sWi}:{sWi+3}], 0 offen")
        p(f"s_andn2_b64 exec, s[{sE}:{sE+1}], exec")
        p(f"v_subrev_u32 v{b_}, {864*1280}, v{b_}")
        p(f"buffer_load_dwordx4 v[{rr+4*u}:{rr+4*u+3}], v{b_}, s[{sWq}:{sWq+3}], 0 offen")
        p(f"s_mov_b64 exec, s[{sE}:{sE+1}]")
        p(f"v_cmp_gt_u32 vcc, 120320, v{c_}"); p(f"v_lshlrev_b32 v{c_}, 4, v{c_}"); p(f"v_mov_b32 v{a_}, {hx(OOB)}"); p(f"v_cndmask_b32 v{c_}, v{a_}, v{c_}, vcc")
    p("s_waitcnt vmcnt(0)")
    for u in range(NU):
        p(f"buffer_store_dwordx4 v[{rr+4*u}:{rr+4*u+3}], v{cc+u}, s[{sWS}:{sWS+3}], s{sWSo} offen {sc}")
    p(f"s_add_u32 s{sIt}, s{sIt}, 1"); p(f"s_cmp_lt_u32 s{sIt}, 3")
    p("s_waitcnt vmcnt(0)")
    p(f"s_cbranch_scc1 {tag}_rp")
    p(f"{tag}_done:")
    return dict(vgpr=V.n, sgpr=S.n, lds=LDS, stamps=st.names)
```

```python
import sys
sys.path.insert(0, 'dev')
from build7 import *
import shutil
shutil.copy('v50.s', 'a.s')
base = dict(codepf=0x8800, lessbar=True, fpre=True, nfill1=10, g0=5)
mk('b.s', p1=dict(base))
mk('c.s', p1=dict(base))
a2 = dict(base, a2a=True)
mk('d.s', p1=dict(a2, nf2a=6.3, mg=54, mc=64, nf3=6, nf2q=5), km=dict(k1b=False))
mk('e.s', p1=dict(a2, nf2a=7, mg=52, mc=62, nf3=5, nf2q=5), km=dict(k1b=False))
mk('f.s', p1=dict(a2, nf2a=6.3, mg=56, mc=68, nf3=7, nf2q=4), km=dict(k1b=False))
```

```python
import sys
sys.path.insert(0, 'dev')
from build import *
from build_exp1 import build2
from gen4 import *
from gen5 import *
from gen6 import *
ssc = "sc1"
P1B = dict(sc=ssc, codepf=0x8800, lessbar=True, fpre=True, nfill1=10, g0=5, a2a=True, nf2a=6.3, mg=54, mc=64, nf3=6, nf2q=5)
def mk2(path, p1={}, k2={}):
    kw = dict(P1B); kw.update(p1)
    k = dict(ssc=ssc, att=True); k.update(k2)
    K = [("p1x_kernel", emit_p1x, kw), ("k2_kernel", emit_k2, k)]
    build2(K, [k[0] for k in K], path)
if __name__ == "__main__":
    mk2('g.s')
```

```python
from asmlib import Prog
from gen import *
from gen2 import *

WS_NON = 0xD90000
WS_FLG = 0xD80000
SPIN = 100000

class VQ:
    def __init__(self): self.n = 0; self.marks = {}
    def op(self, k=1): self.n += k
    def mark(self, name): self.marks[name] = self.n
    def after(self, name): return self.n - self.marks[name]

def emit_k2(p, D=7, bper=2, D3=6, tag="K2", ssc="sc1", prof=False, samexcd=False, flagst=3, pollst=4, chkst=6, usc="", balance=True, w0poll=True, npoll=4, pslp=0, att=False, zpre=7, lpre=7, afill=5, oflagst=10, opollst=21, ochkst=24):
    NST = 32; DZ = D; NZ = DZ + 2; NS = D + 1 + bper
    NSS = 10; NSY = 14; NST3 = NSS + NSY; NS3 = D3 + 2; NB = D3 + 2
    L3 = NS*8192
    assert L3 + NS3*10240 <= 163840
    S = Alloc(4, 100, 's'); V = Alloc(1, 256, 'v')
    sW = S('srdW', 4); sWS = S('srdWS', 4); sB = S('srdB', 4); sX = S('srdX', 4); sO = S('srdO', 4); sD = S('srdD', 4)
    R = dict(x=sX, wsp=sW, bsp=sB, out=sO, dbg=sD, ws=sWS)
    for nm, off in (('ws', 80), ('wsp', 40), ('bsp', 48), ('dbg', 72), ('x', 0), ('out', 64)):
        p(f"s_load_dwordx2 s[{R[nm]}:{R[nm]+1}], s[0:1], {off}")
    def srdfin(s_, size):
        p(f"s_mov_b32 s{s_+2}, {hx(size)}"); p(f"s_mov_b32 s{s_+3}, {SRD3}")
    sw = S('w'); sRt = S('rt'); sCt = S('ct'); sB0 = S('b0'); sNb = S('nb'); sT0 = S('t0'); sT1 = S('t1')
    sOffZ = S('offZ'); sOffZ1 = S('offZ1'); sC1 = S('c1'); sK = S('k54'); sK2 = S('k2'); sK3 = S('k3')
    sPar = S('par'); sTb = S('tb'); sOffW = S('offW'); sOffB = S('offB'); sOffB2 = S('offB2'); sM0 = S('m0b'); sE = S('ex', 2)
    sU = S('offU'); sZ1 = S('offZ1p'); sNon = S('nonce', 2); sFo = S('flagoff'); sSp = S('spin')
    st0 = Stamps(p, S, bool(prof))
    class _St:
        L = st0.L; names = st0.names
        def __call__(self, n):
            if prof and (prof is True or n in prof): st0(n)
    st = _St()
    v16 = V('l16'); vT0 = V('tr0'); vT1 = V('tr1'); vXo = V('xoff', 2); vRd = V('rd', 2); vX = V('xv', 8, 4); bf3 = V('bf3', 4*NB, 4)
    vN = V('nonce', 2, 2); vF = V('flag', 2, 2); vFo = V('fo')
    vP = None
    base2 = V.n
    vT = V('t'); vG = V('g'); vA = V('a'); vA2 = V('a2')
    vZ = V('z'); vB00 = V('b00'); vB01 = V('b01'); vB10 = V('b10'); vB11 = V('b11'); vC2 = V('c2')
    vBias = V('bias', 4); vZp = V('zp', 8, 2); vGe = V('ge', 16); vTmp = V('tmp', 2); vS = V('st'); vL = V('ld')
    acc = V('acc', 16, 4); bf = V('bf', 64, 4); zb = V('zb', 8*NZ, 4)
    nv = V.n
    vP = vGe
    accy = bf; accs = bf + 20; af = bf + 40
    vB = vA2; vC = vTmp
    ACC = lambda tb: acc + tb*4
    BF = lambda i, par, tb: bf + (i & 1)*32 + par*16 + tb*4
    ZB = lambda i, par: zb + (i % NZ)*8 + par*4
    AF = lambda i, nb: af + (i & 1)*20 + nb*4
    BF3 = lambda i: bf3 + (i % NB)*4
    st('start')
    p(f"v_lshrrev_b32 v{vA}, 6, v0")
    p(f"v_readfirstlane_b32 s{sw}, v{vA}")
    if not att:
        p(f"s_or_b32 s{sT0}, s2, s{sw}"); p(f"s_cmp_lg_u32 s{sT0}, 0"); p(f"s_cbranch_scc1 {tag}_nonon")
        p(f"s_memrealtime s[{sNon}:{sNon+1}]")
        p("s_waitcnt lgkmcnt(0)")
        p(f"s_or_b32 s{sNon}, s{sNon}, 1")
        srdfin(sD, 256)
        p(f"v_mov_b32 v{vN}, s{sNon}"); p(f"v_mov_b32 v{vN+1}, s{sNon+1}"); p(f"v_mov_b32 v{vFo}, 0")
        p("s_mov_b64 exec, 1")
        p(f"buffer_store_dwordx2 v[{vN}:{vN+1}], v{vFo}, s[{sD}:{sD+3}], 0 offen sc1")
        p("s_mov_b64 exec, -1")
        p(f"{tag}_nonon:")
    p(f"s_and_b32 s{sT0}, s2, 7")
    p(f"s_lshr_b32 s{sT1}, s2, 3")
    if samexcd:
        p(f"s_lshl_b32 s{sRt}, s{sT0}, 2"); p(f"s_and_b32 s{sCt}, s{sT1}, 3"); p(f"s_add_u32 s{sRt}, s{sRt}, s{sCt}")
        p(f"s_lshr_b32 s{sCt}, s{sT1}, 2")
    else:
        p(f"s_lshr_b32 s{sRt}, s{sT0}, 1"); p(f"s_lshl_b32 s{sRt}, s{sRt}, 3")
        p(f"s_and_b32 s{sCt}, s{sT1}, 7"); p(f"s_add_u32 s{sRt}, s{sRt}, s{sCt}")
        p(f"s_and_b32 s{sCt}, s{sT0}, 1"); p(f"s_lshl_b32 s{sCt}, s{sCt}, 2")
        p(f"s_lshr_b32 s{sT1}, s{sT1}, 3"); p(f"s_add_u32 s{sCt}, s{sCt}, s{sT1}")
        if balance:
            p(f"s_lshl_b32 s{sCt}, s{sCt}, 2"); p(f"s_lshr_b32 s{sCt}, 0x75436210, s{sCt}"); p(f"s_and_b32 s{sCt}, s{sCt}, 7")
    p(f"s_mul_i32 s{sB0}, s{sCt}, 7"); p(f"s_mul_i32 s{sT0}, s{sCt}, 6"); p(f"s_add_u32 s{sT0}, s{sT0}, 6")
    p(f"s_min_u32 s{sB0}, s{sB0}, s{sT0}")
    p(f"s_cmp_lt_u32 s{sCt}, 6"); p(f"s_cselect_b32 s{sNb}, 7, 6")
    p(f"s_and_b32 s{sTb}, s{sw}, 3"); p(f"s_lshr_b32 s{sPar}, s{sw}, 2")

    def p3_setup():
        vLn = vGe; t0 = vGe + 1; t1 = vGe + 2; t2 = vGe + 3
        sM = sE
        p(f"v_and_b32 v{vLn}, 63, v0")
        p(f"v_lshlrev_b32 v{v16}, 4, v{vLn}")
        p(f"v_lshrrev_b32 v{t0}, 5, v{vLn}"); p(f"v_lshlrev_b32 v{t0}, 4, v{t0}")
        p(f"v_lshrrev_b32 v{t1}, 4, v{vLn}"); p(f"v_and_b32 v{t1}, 1, v{t1}"); p(f"v_lshlrev_b32 v{t1}, 2, v{t1}"); p(f"v_add_u32 v{t0}, v{t0}, v{t1}")
        p(f"v_lshrrev_b32 v{t1}, 2, v{vLn}"); p(f"v_and_b32 v{t1}, 3, v{t1}"); p(f"v_add_u32 v{t0}, v{t0}, v{t1}")
        p(f"v_mul_u32_u24 v{t0}, 160, v{t0}"); p(f"v_and_b32 v{t1}, 3, v{vLn}"); p(f"v_lshlrev_b32 v{t1}, 3, v{t1}"); p(f"v_add_u32 v{t0}, v{t0}, v{t1}")
        p(f"s_mul_i32 s{sT0}, s{sPar}, 5120"); p(f"s_add_u32 s{sT0}, s{sT0}, {L3}"); p(f"v_add_u32 v{vT0}, s{sT0}, v{t0}"); p(f"v_add_u32 v{vT1}, 0x10000, v{vT0}")
        p(f"s_mov_b32 s{sM}, {magic(10, 1024)}")
        p(f"s_lshl_b32 s{sT0}, s{sRt}, 6"); p(f"s_mul_i32 s{sT0}, s{sT0}, 1280"); p(f"s_mul_i32 s{sT1}, s{sCt}, 160"); p(f"s_add_u32 s{sT0}, s{sT0}, s{sT1}")
        for k in range(2):
            p(f"v_add_u32 v{t2}, {512*k}, v0")
            p(f"v_mul_hi_u32 v{t0}, v{t2}, s{sM}"); p(f"v_mul_u32_u24 v{t1}, 10, v{t0}"); p(f"v_sub_u32 v{t1}, v{t2}, v{t1}")
            p(f"v_mul_u32_u24 v{t2}, 1280, v{t0}"); p(f"v_lshlrev_b32 v{vXo+k}, 4, v{t1}"); p(f"v_add_u32 v{vXo+k}, v{vXo+k}, v{t2}")
            p(f"v_add_u32 v{vXo+k}, s{sT0}, v{vXo+k}")
            p(f"v_mul_u32_u24 v{t2}, 336, v{t0}"); p(f"v_lshlrev_b32 v{vRd+k}, 5, v{t1}"); p(f"v_add_u32 v{vRd+k}, v{vRd+k}, v{t2}")
        p(f"s_cmp_lt_u32 s{sw}, 2"); p(f"s_cselect_b32 s{sT0}, 0, {hx(OOB)}"); p(f"v_or_b32 v{vXo+1}, s{sT0}, v{vXo+1}")
        p(f"v_and_b32 v{vFo}, 7, v{vLn}"); p(f"v_lshlrev_b32 v{vFo}, 3, v{vFo}")
        p(f"s_lshl_b32 s{sFo}, s{sRt}, 6"); p(f"s_add_u32 s{sFo}, s{sFo}, {WS_FLG}")
        p(f"s_mul_i32 s{sOffW}, s{sCt}, {47*5120}"); p(f"s_mul_i32 s{sT0}, s{sw}, 1280"); p(f"s_add_u32 s{sOffW}, s{sOffW}, s{sT0}")
        p(f"s_add_u32 s{sOffW}, s{sOffW}, {WS_WR + 27*5120}")
        p(f"s_add_u32 s{sM0}, s{sT0}, {L3}")
        p(f"s_lshl_b32 s{sT0}, s{sRt}, 2"); p(f"s_add_u32 s{sT0}, s{sT0}, s{sTb}")
        p(f"s_mul_i32 s{sOffB}, s{sT0}, {54*512}"); p(f"s_lshl_b32 s{sT1}, s{sPar}, 10"); p(f"s_add_u32 s{sOffB}, s{sOffB}, s{sT1}"); p(f"s_add_u32 s{sOffB}, s{sOffB}, {WS_U}")
        p(f"s_mul_i32 s{sOffB2}, s{sT0}, {20*1024}"); p(f"s_add_u32 s{sOffB2}, s{sOffB2}, s{sT1}"); p(f"s_add_u32 s{sOffB2}, s{sOffB2}, {WS_O}")
    def wl3(i):
        slot = i % NS3
        adv = 10240 if i != NSS - 1 else (10240 - 47*5120) & 0xffffffff
        return [[f"s_add_u32 m0, s{sM0}, {slot*10240}", f"buffer_load_dwordx4 v{v16}, s[{sWS}:{sWS+3}], s{sOffW} offen lds"],
                [f"s_mov_b64 exec, 0xffff", f"buffer_load_dwordx4 v{v16}, s[{sWS}:{sWS+3}], s{sOffW} offen offset:1024 lds", "s_mov_b64 exec, -1",
                 f"s_add_u32 s{sOffW}, s{sOffW}, {hx(adv)}"]]
    def bl3(i):
        if i < NSS:
            return [f"buffer_load_dwordx4 v[{BF3(i)}:{BF3(i)+3}], v{v16}, s[{sWS}:{sWS+3}], s{sOffB2} offen", f"s_add_u32 s{sOffB2}, s{sOffB2}, 2048"]
        return [f"buffer_load_dwordx4 v[{BF3(i)}:{BF3(i)+3}], v{v16}, s[{sWS}:{sWS+3}], s{sOffB} offen {usc}", f"s_add_u32 s{sOffB}, s{sOffB}, 2048"]
    PF0 = NST - DZ
    assert D3 <= NST - PF0
    def pf3(s): return wl3(s) + [bl3(s)]

    LA = L3; LO = LA + 40960; MAT = 160*2048*8
    AT = acc; assert bf == acc + 16
    TT = []
    for par in range(2):
        b_ = AT + 40*par
        TT.append(dict(q=b_, kp=b_+4, kc=b_+8, v0=b_+12, v1=b_+16, s=b_+20, pb=b_+28, o0=b_+32, o1=b_+36, m=bf3+8+3*par, t=bf3+9+3*par, r=bf3+10+3*par))
    aBias = bf3; aQa, aKa, aKb, aVa, aOa, aOb, aOo, aOr, aA, aB, aC = range(bf3+14, bf3+25); aD = bf3 + 25; aOd = bf3
    sAb = S('attb'); sAm = S('attm'); sO0 = S('o0'); sO1 = S('o1'); sHd = S('hd'); sBb = S('bb'); sSc = S('asc')
    def att_dma_addr():
        j = aA; e = aB; t = aC; u = aQa
        p(f"s_lshr_b32 s{sHd}, s{sw}, 1"); p(f"s_and_b32 s{sBb}, s{sw}, 1")
        p(f"v_and_b32 v{e}, 7, v0"); p(f"v_lshlrev_b32 v{e}, 4, v{e}"); p(f"v_bfe_u32 v{j}, v0, 3, 3")
        def kv(dst, o, base):
            p(f"v_mul_u32_u24 v{t}, 86, v{o}"); p(f"v_lshrrev_b32 v{t}, 8, v{t}"); p(f"v_mul_u32_u24 v{t}, 16000, v{t}")
            p(f"v_lshl_add_u32 v{t}, v{o}, 7, v{t}"); p(f"v_add_u32 v{t}, {hx(base)}, v{t}"); p(f"v_add_u32 v{dst}, v{t}, v{e}")
        p(f"v_lshrrev_b32 v{t}, 1, v{j}"); p(f"v_mul_u32_u24 v{t}, 16128, v{t}"); p(f"v_lshl_add_u32 v{t}, v{j}, 7, v{t}"); p(f"v_add_u32 v{t}, 128, v{t}"); p(f"v_add_u32 v{aD}, v{t}, v{e}")
        p(f"v_subrev_u32 v{u}, 2, v{j}"); p(f"v_and_b32 v{u}, 7, v{u}"); kv(aD+1, u, MAT)
        p(f"v_lshlrev_b32 v{t}, 7, v{j}"); p(f"v_add_u32 v{t}, {4*16384 + 128}, v{t}"); p(f"v_add_u32 v{t}, v{t}, v{e}")
        p(f"v_cmp_gt_u32 vcc, 2, v{j}"); p(f"v_cndmask_b32 v{aD+1}, v{aD+1}, v{t}, vcc")
        p(f"v_add_u32 v{u}, 6, v{j}"); kv(aD+2, u, MAT)
        p(f"v_subrev_u32 v{u}, 1, v{j}"); p(f"v_and_b32 v{u}, 7, v{u}"); kv(aD+3, u, 2*MAT)
        p(f"v_add_u32 v{t}, {hx(MAT + 4*16000 + 14*128)}, v{e}")
        p(f"v_cmp_eq_u32 vcc, 0, v{j}"); p(f"v_cndmask_b32 v{aD+3}, v{aD+3}, v{t}, vcc")
        p(f"v_add_u32 v{u}, 7, v{j}"); kv(aD+4, u, 2*MAT)
        p(f"s_mul_i32 s{sAb}, s{sCt}, 20"); p(f"s_mul_i32 s{sT0}, s{sHd}, 5"); p(f"s_add_u32 s{sAb}, s{sAb}, s{sT0}"); p(f"s_lshl_b32 s{sAb}, s{sAb}, 14")
        p(f"s_lshl_b32 s{sT0}, s{sRt}, 9"); p(f"s_add_u32 s{sAb}, s{sAb}, s{sT0}"); p(f"s_lshl_b32 s{sT0}, s{sBb}, 8"); p(f"s_add_u32 s{sAb}, s{sAb}, s{sT0}")
        p(f"s_add_u32 s{sAb}, s{sAb}, {WS_QKV - 128}")
        p(f"s_mul_i32 s{sAm}, s{sw}, 5120"); p(f"s_add_u32 s{sAm}, s{sAm}, {LA}")
    def att_dma():
        for k in range(5):
            p(f"s_add_u32 m0, s{sAm}, {1024*k}")
            p(f"buffer_load_dwordx4 v{aD+k}, s[{sWS}:{sWS+3}], s{sAb} offen lds")
    def att_setup():
        vLn = aD; vQ = aD + 1; vGq = aD + 2
        p(f"v_and_b32 v{vLn}, 63, v0"); p(f"v_and_b32 v{vQ}, 15, v{vLn}"); p(f"v_lshrrev_b32 v{vGq}, 4, v{vLn}")
        p(f"v_lshlrev_b32 v{aB}, 4, v{vQ}")
        p(f"v_lshl_add_u32 v{aA}, v{vGq}, 8, v{aB}"); p(f"v_add_u32 v{aQa}, s{sAm}, v{aA}")
        p(f"s_add_u32 s{sT0}, s{sAm}, {1280 - 128}")
        p(f"v_mul_u32_u24 v{aA}, 384, v{vGq}"); p(f"v_add_u32 v{aA}, v{aA}, v{aB}"); p(f"v_add_u32 v{aKa}, s{sT0}, v{aA}")
        p(f"s_add_u32 s{sT0}, s{sT0}, {4*384}"); p(f"v_add_u32 v{aKb}, s{sT0}, v{aB}")
        p(f"s_add_u32 s{sT0}, s{sAm}, {3200 - 128}")
        p(f"v_and_b32 v{aA}, 3, v{vLn}"); p(f"v_mul_u32_u24 v{aA}, 384, v{aA}"); p(f"v_lshrrev_b32 v{aB}, 2, v{vLn}"); p(f"v_lshl_add_u32 v{aA}, v{aB}, 4, v{aA}")
        p(f"v_add_u32 v{aVa}, s{sT0}, v{aA}")
        p(f"s_mul_i32 s{sT0}, s{sHd}, 5"); p(f"v_add_u32 v{aA}, s{sT0}, v{vGq}")
        p(f"v_lshrrev_b32 v{aB}, 1, v{aA}"); p(f"v_lshlrev_b32 v{aB}, 10, v{aB}"); p(f"v_and_b32 v{aA}, 1, v{aA}"); p(f"v_lshl_add_u32 v{aA}, v{aA}, 3, v{aB}")
        p(f"v_lshlrev_b32 v{aB}, 5, v{vQ}"); p(f"v_add_u32 v{aA}, v{aA}, v{aB}")
        p(f"s_lshl_b32 s{sT1}, s{sBb}, 9"); p(f"s_add_u32 s{sT1}, s{sT1}, {LO}"); p(f"v_add_u32 v{aOa}, s{sT1}, v{aA}")
        p(f"s_add_u32 s{sT0}, s{sT0}, 4"); p(f"s_and_b32 s{sE}, s{sT0}, 1"); p(f"s_lshl_b32 s{sE}, s{sE}, 3"); p(f"s_lshr_b32 s{sT0}, s{sT0}, 1"); p(f"s_lshl_b32 s{sT0}, s{sT0}, 10")
        p(f"s_add_u32 s{sT0}, s{sT0}, s{sE}"); p(f"s_add_u32 s{sT0}, s{sT0}, s{sT1}"); p(f"v_add_u32 v{aOb}, s{sT0}, v{aB}")
        p(f"v_lshlrev_b32 v{aA}, 2, v{vGq}"); p(f"v_sub_u32 v{aA}, v{aA}, v{vQ}")
        p(f"s_or_b32 s{sT0}, s{sRt}, s{sBb}"); p(f"s_cmp_eq_u32 s{sT0}, 0"); p(f"s_cselect_b32 s{sT0}, 100, 9")
        p(f"v_mov_b32 v{aC}, {hx(f2u(NEGBIG))}")
        for e in range(4):
            p(f"v_add_u32 v{aB}, {e}, v{aA}")
            p(f"v_cmp_gt_i32 vcc, s{sT0}, v{aB}"); p(f"v_cndmask_b32 v{aBias+e}, 0, v{aC}, vcc")
            p(f"v_add_u32 v{aB}, 7, v{aB}")
            p(f"v_cmp_lt_u32 vcc, 7, v{aB}"); p(f"v_cndmask_b32 v{aBias+4+e}, 0, v{aC}, vcc")
        for t in TT:
            p(f"v_mov_b32 v{t['q']+2}, 0"); p(f"v_mov_b32 v{t['q']+3}, 0")
        p(f"v_mul_u32_u24 v{aA}, 20480, v{vGq}"); p(f"v_lshl_add_u32 v{aOo}, v{vQ}, 4, v{aA}")
        p(f"v_lshlrev_b32 v{aOr}, 4, v0"); p(f"v_add_u32 v{aOr}, {LO}, v{aOr}")
        p(f"s_mul_i32 s{sT1}, s{sRt}, {4*20480}"); p(f"s_add_u32 s{sT1}, s{sT1}, {WS_O}")
        for k, d in enumerate((sO0, sO1)):
            p(f"s_mul_i32 s{sT0}, s{sCt}, 10"); p(f"s_add_u32 s{sT0}, s{sT0}, s{sw}")
            if k: p(f"s_add_u32 s{sT0}, s{sT0}, 8")
            p(f"s_and_b32 s{d}, s{sT0}, 3"); p(f"s_lshl_b32 s{d}, s{d}, 8"); p(f"s_lshr_b32 s{sT0}, s{sT0}, 2"); p(f"s_lshl_b32 s{sT0}, s{sT0}, 10")
            p(f"s_add_u32 s{d}, s{d}, s{sT0}"); p(f"s_add_u32 s{d}, s{d}, s{sT1}")
        p(f"s_cmp_lt_u32 s{sw}, 2"); p(f"s_cselect_b32 s{sO1}, s{sO1}, {hx(OOB)}")
        p(f"s_mov_b32 s{sSc}, {hx(f2u(20**-0.5*LOG2E))}")
    def att_compute(fillers):
        L = []
        T = TT
        for par, t in enumerate(T):
            o = 8*par
            L += [f"ds_read_b64 v[{t['q']}:{t['q']+1}], v{aQa} offset:{o}",
                  f"ds_read_b64 v[{t['kp']}:{t['kp']+1}], v{aKa} offset:{o}", f"ds_read_b64 v[{t['kp']+2}:{t['kp']+3}], v{aKb} offset:{o}",
                  f"ds_read_b64 v[{t['kc']}:{t['kc']+1}], v{aKa} offset:{o+256}", f"ds_read_b64 v[{t['kc']+2}:{t['kc']+3}], v{aKb} offset:{o+256}",
                  "!s_mov_b64 exec, 0xffff", f"!ds_read_b64 v[{t['q']+2}:{t['q']+3}], v{aQa} offset:{o+1024}", "!s_mov_b64 exec, -1"]
        for par, t in enumerate(T):
            o = 8*par
            L += [f"ds_read_b64_tr_b16 v[{t['v0']}:{t['v0']+1}], v{aVa} offset:{o}", f"ds_read_b64_tr_b16 v[{t['v0']+2}:{t['v0']+3}], v{aVa} offset:{o+256}",
                  f"ds_read_b64_tr_b16 v[{t['v1']}:{t['v1']+1}], v{aVa} offset:{o+4*384}", f"ds_read_b64_tr_b16 v[{t['v1']+2}:{t['v1']+3}], v{aVa} offset:{o+4*384+256}"]
        for par, t in enumerate(T):
            L.append(f"s_waitcnt lgkmcnt({8 + (6 if par == 0 else 0)})")
            L.append(f"v_mfma_f32_16x16x32_bf16 v[{t['s']}:{t['s']+3}], v[{t['kp']}:{t['kp']+3}], v[{t['q']}:{t['q']+3}], v[{aBias}:{aBias+3}]")
            L.append(f"v_mfma_f32_16x16x32_bf16 v[{t['s']+4}:{t['s']+7}], v[{t['kc']}:{t['kc']+3}], v[{t['q']}:{t['q']+3}], v[{aBias+4}:{aBias+7}]")
        for t in T:
            s_ = t['s']
            L += [f"v_max3_f32 v{t['m']}, v{s_}, v{s_+1}, v{s_+2}", f"v_max3_f32 v{t['m']}, v{t['m']}, v{s_+3}, v{s_+4}",
                  f"v_max3_f32 v{t['m']}, v{t['m']}, v{s_+5}, v{s_+6}", f"v_max_f32 v{t['m']}, v{t['m']}, v{s_+7}"]
        for sw_ in ("v_permlane16_swap_b32", "v_permlane32_swap_b32"):
            for t in T: L.append(f"v_mov_b32 v{t['t']}, v{t['m']}")
            for t in T: L.append(f"{sw_} v{t['m']}, v{t['t']}")
            for t in T: L.append(f"v_max_f32 v{t['m']}, v{t['m']}, v{t['t']}")
        for t in T: L.append(f"v_mul_f32 v{t['m']}, s{sSc}, v{t['m']}")
        for e in range(8):
            for t in T: L.append(f"v_fma_f32 v{t['s']+e}, v{t['s']+e}, s{sSc}, -v{t['m']}")
        for e in range(8):
            for t in T: L.append(f"v_exp_f32 v{t['s']+e}, v{t['s']+e}")
        for t in T:
            s_ = t['s']
            for e in range(0, 8, 2): L.append(f"v_cvt_pk_bf16_f32 v{t['pb']+e//2}, v{s_+e}, v{s_+e+1}")
        for t in T:
            s_ = t['s']
            L.append(f"v_add_f32 v{t['r']}, v{s_}, v{s_+1}")
            for e in range(2, 8): L.append(f"v_add_f32 v{t['r']}, v{t['r']}, v{s_+e}")
        L.append("s_waitcnt lgkmcnt(0)")
        for t in T:
            L.append(f"v_mfma_f32_16x16x32_bf16 v[{t['o0']}:{t['o0']+3}], v[{t['v0']}:{t['v0']+3}], v[{t['pb']}:{t['pb']+3}], 0")
            L.append(f"v_mfma_f32_16x16x32_bf16 v[{t['o1']}:{t['o1']+3}], v[{t['v1']}:{t['v1']+3}], v[{t['pb']}:{t['pb']+3}], 0")
        for sw_ in ("v_permlane16_swap_b32", "v_permlane32_swap_b32"):
            for t in T: L.append(f"v_mov_b32 v{t['t']}, v{t['r']}")
            for t in T: L.append(f"{sw_} v{t['r']}, v{t['t']}")
            for t in T: L.append(f"v_add_f32 v{t['r']}, v{t['r']}, v{t['t']}")
        for t in T: L.append(f"v_rcp_f32 v{t['r']}, v{t['r']}")
        for t in T:
            for blk in ('o0', 'o1'):
                for e in range(4): L.append(f"v_mul_f32 v{t[blk]+e}, v{t[blk]+e}, v{t['r']}")
                L.append(f"v_cvt_pk_bf16_f32 v{t[blk]}, v{t[blk]}, v{t[blk]+1}"); L.append(f"v_cvt_pk_bf16_f32 v{t[blk]+1}, v{t[blk]+2}, v{t[blk]+3}")
        for par, t in enumerate(T):
            L.append(f"ds_write_b64 v{aOa}, v[{t['o0']}:{t['o0']+1}] offset:{16*par}")
        L.append("!s_mov_b64 exec, 0xffff")
        for par, t in enumerate(T):
            L.append(f"!ds_write_b64 v{aOb}, v[{t['o1']}:{t['o1']+1}] offset:{16*par}")
        L.append("!s_mov_b64 exec, -1")
        fillers = list(fillers); k = 0
        for n, l in enumerate(L):
            if l.startswith('!'):
                p(l[1:]); continue
            p(l); k += 1
            if fillers and k >= afill and not (n + 1 < len(L) and L[n+1].startswith('!')):
                for f in fillers.pop(0): p(f)
                k = 0
        for gr in fillers:
            for f in gr: p(f)
        p("s_waitcnt lgkmcnt(0)")
    def att_ostore():
        p(f"ds_read_b128 v[{aOd}:{aOd+3}], v{aOr}"); p(f"ds_read_b128 v[{aOd+4}:{aOd+7}], v{aOr} offset:8192")
    def att_ostore2():
        p(f"buffer_store_dwordx4 v[{aOd}:{aOd+3}], v{aOo}, s[{sWS}:{sWS+3}], s{sO0} offen {ssc}")
        p(f"buffer_store_dwordx4 v[{aOd+4}:{aOd+7}], v{aOo}, s[{sWS}:{sWS+3}], s{sO1} offen {ssc}")
    if att: att_dma_addr()

    p("s_waitcnt lgkmcnt(0)")
    srdfin(sWS, WS_SIZE); srdfin(sX, 2048*1280); srdfin(sO, 2048*1280); srdfin(sD, 256); srdfin(sB, 4096)
    if att:
        att_dma()
        p(f"s_mov_b32 s{sSp}, {WS_NON}"); p(f"s_load_dwordx2 s[{sNon}:{sNon+1}], s[{sWS}:{sWS+1}], s{sSp}")
    p(f"s_cmp_ge_u32 s{sw}, s{sNb}")
    p(f"s_cbranch_scc1 {tag}_helper")
    p(f"v_and_b32 v{vA}, 63, v0")
    p(f"v_and_b32 v{vT}, 15, v{vA}"); p(f"v_lshrrev_b32 v{vG}, 4, v{vA}")
    p(f"s_add_u32 s{sB0}, s{sB0}, s{sw}")
    p(f"s_lshl_b32 s{sT0}, s{sB0}, 10")
    p(f"v_lshlrev_b32 v{vA}, 4, v{vA}"); p(f"v_add_u32 v{vZ}, s{sT0}, v{vA}")
    p(f"s_mov_b32 s{sOffZ}, {WS_Z2N}"); p(f"s_mov_b32 s{sOffZ1}, {WS_Z2N + 54*1024}")
    def zloads(i):
        return [[f"buffer_load_dwordx4 v[{ZB(i,0)}:{ZB(i,0)+3}], v{vZ}, s[{sWS}:{sWS+3}], s{sOffZ} offen", f"s_add_u32 s{sOffZ}, s{sOffZ}, {2*54*1024}"],
                [f"buffer_load_dwordx4 v[{ZB(i,1)}:{ZB(i,1)+3}], v{vZ}, s[{sWS}:{sWS+3}], s{sOffZ1} offen", f"s_add_u32 s{sOffZ1}, s{sOffZ1}, {2*54*1024}"]]
    q = VQ()
    if att: q.op(5); q.mark("att")
    for i in range(2):
        for gr in zloads(i):
            for l in gr: p(l)
        q.op(2); q.mark(f"z{i}")
    p(f"v_lshrrev_b32 v{vA2}, 1, v{vT}"); p(f"v_xor_b32 v{vA}, v{vG}, v{vA2}"); p(f"v_lshlrev_b32 v{vA}, 4, v{vA}")
    p(f"v_lshlrev_b32 v{vA2}, 7, v{vT}"); p(f"v_add_u32 v{vB00}, v{vA}, v{vA2}")
    p(f"v_xor_b32 v{vB10}, 64, v{vB00}")
    p(f"v_add_u32 v{vB01}, 0x10000, v{vB00}"); p(f"v_add_u32 v{vB11}, 0x10000, v{vB10}")
    p(f"s_mov_b32 s{sC1}, {hx(f2u(C1))}"); p(f"v_mov_b32 v{vC2}, {hx(f2u(C2))}")
    p(f"s_mov_b32 s{sK}, {54*512}"); p(f"s_mov_b32 s{sK2}, {2*54*512}"); p(f"s_mov_b32 s{sK3}, {3*54*512}")
    p(f"s_lshl_b32 s{sT0}, s{sRt}, 2"); p(f"s_mul_i32 s{sT1}, s{sT0}, 54"); p(f"s_add_u32 s{sT1}, s{sT1}, s{sB0}"); p(f"s_lshl_b32 s{sT1}, s{sT1}, 9")
    p(f"v_and_b32 v{vA}, 1, v{vG}"); p(f"v_lshlrev_b32 v{vA}, 8, v{vA}")
    p(f"v_lshlrev_b32 v{vA2}, 4, v{vT}"); p(f"v_add_u32 v{vA}, v{vA}, v{vA2}")
    p(f"v_lshrrev_b32 v{vA2}, 1, v{vG}"); p(f"v_lshlrev_b32 v{vA2}, 3, v{vA2}"); p(f"v_add_u32 v{vA}, v{vA}, v{vA2}")
    p(f"v_add_u32 v{vL}, s{sT1}, v{vA}"); p(f"v_add_u32 v{vL}, {WS_Z1P}, v{vL}")
    p(f"v_lshrrev_b32 v{vA}, 1, v{vG}"); p(f"v_lshlrev_b32 v{vA}, 8, v{vA}")
    p(f"v_lshlrev_b32 v{vA2}, 4, v{vT}"); p(f"v_add_u32 v{vA}, v{vA}, v{vA2}")
    p(f"v_and_b32 v{vA2}, 1, v{vG}"); p(f"v_lshlrev_b32 v{vA2}, 3, v{vA2}"); p(f"v_add_u32 v{vA}, v{vA}, v{vA2}")
    p(f"v_add_u32 v{vS}, s{sT1}, v{vA}"); p(f"v_add_u32 v{vS}, {WS_U}, v{vS}")
    KS = ["0", f"s{sK}", f"s{sK2}", f"s{sK3}"]
    for k in range(4):
        p(f"buffer_load_dwordx2 v[{vZp+2*k}:{vZp+2*k+1}], v{vL}, s[{sWS}:{sWS+3}], {KS[k]} offen")
    p(f"s_lshl_b32 s{sT0}, s{sT0}, 5")
    p(f"v_lshlrev_b32 v{vA}, 1, v{vT}"); p(f"v_add_u32 v{vA}, s{sT0}, v{vA}")
    for k in range(4):
        p(f"buffer_load_ushort v{vBias+k}, v{vA}, s[{sB}:{sB+3}], 0 offen offset:{32*k}")
    q.op(8); q.mark("z1p")
    for i in range(2, min(DZ, zpre) if att else DZ):
        for gr in zloads(i):
            for l in gr: p(l)
        q.op(2); q.mark(f"z{i}")
    p3_setup()
    st('setup')
    if att:
        att_setup()
        p(f"s_waitcnt vmcnt({q.after('att')}) lgkmcnt(0)")
        p(f"v_mov_b32 v{vN}, s{sNon}"); p(f"v_mov_b32 v{vN+1}, s{sNon+1}")
        st('att0')
        fl = []
        for i in range(max(2, min(DZ, zpre)), DZ):
            fl += zloads(i); q.op(2); q.mark(f"z{i}")
        att_compute(fl)
        st('att1')
    gel = []
    for qq in range(16):
        k, c = qq//4, qq % 4
        src = vZp + k*2 + c//2
        ops = [f"v_lshlrev_b32 v{vGe+qq}, 16, v{src}" if c % 2 == 0 else f"v_and_b32 v{vGe+qq}, 0xffff0000, v{src}"]
        ops += gelu_ops(vGe+qq, vTmp + (qq & 1), sC1, vC2)
        gel.append(ops)
    def mfmas(i):
        L = []
        for par in range(2):
            for tb in range(4):
                c = "0" if (i == 0 and par == 0) else f"v[{ACC(tb)}:{ACC(tb)+3}]"
                L.append(f"v_mfma_f32_16x16x32_bf16 v[{ACC(tb)}:{ACC(tb)+3}], v[{ZB(i,par)}:{ZB(i,par)+3}], v[{BF(i,par,tb)}:{BF(i,par,tb)+3}], {c}")
        return L
    for i in range(NST + 1):
        if i < NST:
            if att and i == ochkst:
                p(f"s_cmp_lg_u32 s{sw}, 0"); p(f"s_cbranch_scc1 {tag}_ook")
                p(f"s_waitcnt vmcnt({min(63, q.after('OFL'))})")
                p(f"v_cmp_ne_u32 vcc, s{sNon}, v{vF}"); p(f"s_mov_b64 s[{sE}:{sE+1}], vcc")
                p(f"v_cmp_ne_u32 vcc, s{sNon+1}, v{vF+1}"); p(f"s_or_b64 s[{sE}:{sE+1}], s[{sE}:{sE+1}], vcc")
                p(f"s_cmp_lg_u64 s[{sE}:{sE+1}], 0"); p(f"s_cbranch_scc1 {tag}_ospin")
                p(f"{tag}_ook:")
            if i % bper == 0: p("s_barrier")
            if i in (0, 8, 16, 24): st(f's{i}')
            if att and i == 0: att_ostore()
            if att and i == oflagst:
                assert i % bper == 0 and i >= DZ + 3
                p(f"s_lshl_b32 s{sT0}, s{sCt}, 3"); p(f"s_add_u32 s{sT0}, s{sT0}, s{sFo}"); p(f"s_add_u32 s{sT0}, s{sT0}, 4096")
                p(f"s_cmp_eq_u32 s{sw}, 0"); p(f"s_cselect_b32 s{sT0}, s{sT0}, {hx(OOB)}")
                p(f"v_mov_b32 v{vF}, 0")
                p("s_mov_b64 exec, 1")
                p(f"buffer_store_dwordx2 v[{vN}:{vN+1}], v{vF}, s[{sWS}:{sWS+3}], s{sT0} offen sc1")
                p("s_mov_b64 exec, -1")
                q.op(1)
            if att and i == opollst:
                p(f"s_add_u32 s{sT0}, s{sFo}, 4096"); p(f"s_cmp_eq_u32 s{sw}, 0"); p(f"s_cselect_b32 s{sT0}, s{sT0}, {hx(OOB)}")
                p(f"buffer_load_dwordx2 v[{vF}:{vF+1}], v{vFo}, s[{sWS}:{sWS+3}], s{sT0} offen sc1")
                q.op(1); q.mark("OFL")
            slot = i % NS
            for par in range(2):
                for tb in range(4):
                    off = slot*8192 + tb*2048
                    vb = [[vB00, vB01], [vB10, vB11]][par][off >= 65536]
                    p(f"ds_read_b128 v[{BF(i,par,tb)}:{BF(i,par,tb)+3}], v{vb} offset:{off & 0xffff}")
            if att and i == 0:
                p("s_waitcnt lgkmcnt(8)"); att_ostore2(); q.op(2)
        if i + DZ < NST: groups = [(g, 1) for g in zloads(i + DZ)]; mk = f"z{i+DZ}"
        elif i - PF0 < D3 and i < NST: groups = [(g, 1) for g in pf3(i - PF0)]; mk = f"p{i-PF0}"
        else: groups = []; mk = None
        if i >= 1:
            j = i - 1
            need = f"z{j}"
            out = q.after(need)
            if j == 2: out = min(out, q.after("z1p"))
            p(f"s_waitcnt vmcnt({min(out,63)}) lgkmcnt({8 if i < NST else 0})")
            M = mfmas(j)
            g = list(gel[i-3]) if 3 <= i < 19 else []
            pos = (0, 4) if len(groups) == 2 else (0, 3, 6)
            for n, m in enumerate(M):
                if n in pos and groups:
                    gr, k = groups.pop(0)
                    for l in gr: p(l)
                    q.op(k)
                p(m)
                if g: p(g.pop(0))
            for l in g: p(l)
        for gr, k in groups:
            for l in gr: p(l)
            q.op(k)
        if mk: q.mark(mk)
    st('main2')
    for k in range(4): p(f"v_lshlrev_b32 v{vBias+k}, 16, v{vBias+k}")
    for qq in range(16): p(f"v_add_f32 v{acc+qq}, v{acc+qq}, v{vBias+qq//4}")
    for qq in range(16): p(f"v_mul_f32 v{acc+qq}, v{acc+qq}, v{vGe+qq}")
    for qq in range(0, 16, 2): p(f"v_cvt_pk_bf16_f32 v{acc+qq//2}, v{acc+qq}, v{acc+qq+1}")
    for k in range(4):
        p(f"buffer_store_dwordx2 v[{acc+2*k}:{acc+2*k+1}], v{vS}, s[{sWS}:{sWS+3}], {KS[k]} offen {ssc}")
    p(f"s_branch {tag}_p3")
    p(f"{tag}_helper:")
    p(f"s_cmp_eq_u32 s{sw}, 7")
    p(f"s_cbranch_scc1 {tag}_loader")
    p3_setup()
    if att:
        att_setup()
        p("s_waitcnt vmcnt(0) lgkmcnt(0)")
        att_compute([])
    for i in range(NST):
        if att and i == oflagst - 2: p("s_waitcnt vmcnt(0)")
        if i % bper == 0: p("s_barrier")
        if att and i == 0:
            att_ostore(); p("s_waitcnt lgkmcnt(0)"); att_ostore2()
        if PF0 <= i < PF0 + D3:
            for gr in pf3(i - PF0):
                for l in gr: p(l)
    p(f"s_branch {tag}_p3")
    p(f"{tag}_loader:")
    p(f"v_and_b32 v{vL}, 63, v0")
    p(f"v_lshrrev_b32 v{vG}, 4, v{vL}"); p(f"v_and_b32 v{vA2}, 7, v{vL}"); p(f"v_xor_b32 v{vA}, v{vG}, v{vA2}")
    p(f"v_lshlrev_b32 v{vA}, 4, v{vA}")
    p(f"v_lshrrev_b32 v{vA2}, 3, v{vL}"); p(f"v_lshlrev_b32 v{vA2}, 12, v{vA2}")
    p(f"v_add_u32 v{vB00}, v{vA}, v{vA2}"); p(f"v_xor_b32 v{vB10}, 64, v{vB00}")
    p(f"v_add_u32 v{vB10}, 0x8000, v{vB10}")
    p(f"s_lshl_b32 s{sT0}, s{sRt}, 18")
    p(f"s_add_u32 s{sW}, s{sW}, s{sT0}"); p(f"s_addc_u32 s{sW+1}, s{sW+1}, 0"); srdfin(sW, 64*4096)
    sq = [sK, sK2, sK3, sOffZ]
    for qq in range(4): p(f"s_mov_b32 s{sq[qq]}, {qq*65536}")
    def wloads(i):
        L = []
        slot = i % NS
        for qq in range(8):
            L.append(f"s_mov_b32 m0, {slot*8192 + qq*1024}")
            L.append(f"buffer_load_dwordx4 v{vB10 if qq & 1 else vB00}, s[{sW}:{sW+3}], s{sq[qq//2]} offen lds")
        for qq in range(4): L.append(f"s_add_u32 s{sq[qq]}, s{sq[qq]}, 128")
        return L
    ql = VQ()
    if att: ql.op(5); ql.mark("att")
    for i in range(min(D, lpre) if att else D):
        for l in wloads(i): p(l)
        ql.op(8); ql.mark(f"w{i}")
        if i == 1:
            p3_setup()
    if att:
        assert lpre >= 2
        att_setup()
        p(f"s_waitcnt vmcnt({min(63, ql.after('att'))}) lgkmcnt(0)")
        fl = []
        for i in range(min(D, lpre), D):
            W_ = wloads(i)
            fl += [W_[2*k:2*k+2] for k in range(8)]; fl[-1] = fl[-1] + W_[16:]
            ql.op(8); ql.mark(f"w{i}")
        att_compute(fl)
    for i in range(NST):
        if i % bper == 0:
            need = min(i + bper - 1, NST - 1)
            p(f"s_waitcnt vmcnt({min(63, ql.after(f'w{need}'))})")
            p("s_barrier")
        if att and i == 0:
            att_ostore(); p("s_waitcnt lgkmcnt(0)"); att_ostore2(); ql.op(2)
        if i + D < NST:
            for l in wloads(i + D): p(l)
            ql.op(8); ql.mark(f"w{i+D}")
        elif i - PF0 < D3:
            for gr in pf3(i - PF0):
                for l in gr: p(l)
            ql.op(3)
    p(f"{tag}_p3:")
    st('p3')
    q = VQ()
    for s in range(D3):
        q.op(2); q.mark(f"W{s}"); q.op(1); q.mark(f"B{s}")
    q.mark("ST")
    def mfmas3(j):
        a = accs if j < NSS else accy
        first = j in (0, NSS)
        return [f"v_mfma_f32_16x16x32_bf16 v[{a+4*nb}:{a+4*nb+3}], v[{AF(j,nb)}:{AF(j,nb)+3}], v[{BF3(j)}:{BF3(j)+3}], " + ("0" if first else f"v[{a+4*nb}:{a+4*nb+3}]") for nb in range(5)]
    nextB = D3
    for i in range(NST3 + 1):
        if i < NST3:
            n = q.after(f"W{i}")
            if i == flagst: n = min(n, q.after("ST"), q.after("NON") if not att else 63)
            p(f"s_waitcnt vmcnt({min(63, n)})")
            if i == flagst and not att:
                p(f"v_readfirstlane_b32 s{sNon}, v{vN}"); p(f"v_readfirstlane_b32 s{sNon+1}, v{vN+1}")
                p(f"s_cmp_eq_u32 s{sNon}, 0"); p(f"s_cbranch_scc1 {tag}_nspin")
                p(f"{tag}_nok:")
            if w0poll and i == chkst:
                p(f"s_cmp_lg_u32 s{sw}, 0"); p(f"s_cbranch_scc1 {tag}_fok")
                p(f"s_waitcnt vmcnt({min(63, q.after('FLG'))})")
                p(f"v_cmp_ne_u32 vcc, s{sNon}, v{vF}"); p(f"s_mov_b64 s[{sE}:{sE+1}], vcc")
                p(f"v_cmp_ne_u32 vcc, s{sNon+1}, v{vF+1}"); p(f"s_or_b64 s[{sE}:{sE+1}], s[{sE}:{sE+1}], vcc")
                p(f"s_cmp_lg_u64 s[{sE}:{sE+1}], 0"); p(f"s_cbranch_scc1 {tag}_fspin")
                p(f"{tag}_fok:")
            p("s_barrier")
            if w0poll and i == chkst: st('fok')
            if i == flagst: st('flg')
            if i in (0, 4, 8, 10, 12, 16, 20): st(f'q{i}')
            if i == flagst:
                p(f"s_cmp_lg_u32 s{sw}, 0"); p(f"s_cbranch_scc1 {tag}_noflag")
                p(f"s_lshl_b32 s{sT0}, s{sCt}, 3"); p(f"s_add_u32 s{sT0}, s{sT0}, s{sFo}")
                p(f"v_mov_b32 v{vF}, 0")
                p("s_mov_b64 exec, 1")
                p(f"buffer_store_dwordx2 v[{vN}:{vN+1}], v{vF}, s[{sWS}:{sWS+3}], s{sT0} offen sc1")
                p("s_mov_b64 exec, -1")
                p(f"{tag}_noflag:")
            slot = i % NS3
            for nb in range(5):
                for half in range(2):
                    off = slot*10240 + half*1280 + nb*32
                    vb = vT1 if off >= 65536 else vT0
                    p(f"ds_read_b64_tr_b16 v[{AF(i,nb)+2*half}:{AF(i,nb)+2*half+1}], v{vb} offset:{off & 0xffff}")
        groups = []
        if i + D3 < NST3: groups += [(g, f"W{i+D3}" if k else None) for k, g in enumerate(wl3(i + D3))]
        if i == 0 and not att: groups.append(([f"buffer_load_dwordx2 v[{vN}:{vN+1}], v{vFo}, s[{sD}:{sD+3}], 0 offen sc1".replace(f"v{vFo},", f"v{vC},")], "NON"))
        if i == pollst:
            ld = f"buffer_load_dwordx2 v[{vF}:{vF+1}], v{vFo}, s[{sWS}:{sWS+3}], s{sFo} offen sc1"
            if w0poll: groups.append(([f"s_cmp_eq_u32 s{sw}, 0", f"s_cselect_b64 exec, -1, 0xffffffff00000000" if False else f"s_cselect_b32 s{sT0}, s{sFo}, {hx(OOB)}", ld.replace(f"s{sFo} offen", f"s{sT0} offen")], "FLG"))
            else: groups.append(([ld], "FLG"))
        if i == pollst + 1:
            groups.append(([f"buffer_load_dwordx4 v[{vX}:{vX+3}], v{vXo}, s[{sX}:{sX+3}], 0 offen"], None))
            groups.append(([f"buffer_load_dwordx4 v[{vX+4}:{vX+7}], v{vXo+1}, s[{sX}:{sX+3}], 0 offen"], "X"))
        pre = []
        while nextB < NST3 and nextB <= i + D3 and (nextB < NSS or i >= chkst):
            groups.append((bl3(nextB), f"B{nextB}")); nextB += 1
        if i == 0: p(f"v_mov_b32 v{vC}, 0")
        if i == chkst and not w0poll:
            p(f"s_waitcnt vmcnt({min(63, q.after('FLG'))})")
            p(f"{tag}_fchk:")
            p(f"v_cmp_ne_u32 vcc, s{sNon}, v{vF}"); p(f"s_mov_b64 s[{sE}:{sE+1}], vcc")
            p(f"v_cmp_ne_u32 vcc, s{sNon+1}, v{vF+1}"); p(f"s_or_b64 s[{sE}:{sE+1}], s[{sE}:{sE+1}], vcc")
            p(f"s_cmp_lg_u64 s[{sE}:{sE+1}], 0"); p(f"s_cbranch_scc1 {tag}_fspin")
            p(f"{tag}_fok:")
            st('fok')
        if i >= 1:
            j = i - 1
            p(f"s_waitcnt vmcnt({min(63, q.after(f'B{j}'))}) lgkmcnt({10 if i < NST3 else 0})")
            if j == NST3 - 1:
                p(f"s_cmp_eq_u32 s{sPar}, 1"); p(f"s_cbranch_scc1 {tag}_skipm")
            M = mfmas3(j)
            for n, m in enumerate(M):
                if j != NST3 - 1 and groups:
                    gr, mk = groups.pop(0)
                    for l in gr: p(l)
                    q.op(1)
                    if mk: q.mark(mk)
                p(m)
            if j == NST3 - 1: p(f"{tag}_skipm:")
        for gr, mk in groups:
            for l in gr: p(l)
            q.op(1)
            if mk: q.mark(mk)
    st('main3')
    vA_ = vA; vLn = vT
    p("s_barrier")
    p(f"v_lshrrev_b32 v{vLn}, 4, v{v16}")
    p(f"v_and_b32 v{vA_}, 15, v{vLn}"); p(f"s_lshl_b32 s{sT0}, s{sTb}, 4"); p(f"v_add_u32 v{vA_}, s{sT0}, v{vA_}"); p(f"v_mul_u32_u24 v{vA_}, 336, v{vA_}")
    p(f"v_lshrrev_b32 v{vB}, 4, v{vLn}"); p(f"v_lshlrev_b32 v{vB}, 4, v{vB}"); p(f"v_add_u32 v{vA_}, v{vA_}, v{vB}")
    p(f"s_mul_i32 s{sT0}, s{sPar}, {2*21504}"); p(f"v_add_u32 v{vA_}, s{sT0}, v{vA_}")
    for nb in range(5):
        p(f"ds_write_b128 v{vA_}, v[{accy+4*nb}:{accy+4*nb+3}] offset:{nb*64}")
        p(f"ds_write_b128 v{vA_}, v[{accs+4*nb}:{accs+4*nb+3}] offset:{21504 + nb*64}")
    p("s_waitcnt lgkmcnt(0)"); p("s_barrier")
    sNL = sK; p(f"s_mov_b32 s{sNL}, {hx(f2u(-LOG2E))}")
    t = af
    def final(k):
        rd = vRd + k
        for m, (o, dst) in enumerate(((0, t), (16, t+4), (2*21504, t+8), (2*21504+16, t+12), (21504, t+16), (21504+16, t+20), (3*21504, t+24), (3*21504+16, t+28))):
            p(f"ds_read_b128 v[{dst}:{dst+3}], v{rd} offset:{o}")
        p("s_waitcnt lgkmcnt(4)")
        for e in range(8): p(f"v_add_f32 v{t+e}, v{t+e}, v{t+8+e}")
        for e in range(8): p(f"v_mul_f32 v{t+8+e}, s{sNL}, v{t+e}")
        for e in range(8): p(f"v_exp_f32 v{t+8+e}, v{t+8+e}")
        for e in range(8): p(f"v_add_f32 v{t+8+e}, 1.0, v{t+8+e}")
        for e in range(8): p(f"v_rcp_f32 v{t+8+e}, v{t+8+e}")
        for e in range(8): p(f"v_mul_f32 v{t+e}, v{t+e}, v{t+8+e}")
        p("s_waitcnt lgkmcnt(0)")
        for e in range(8): p(f"v_add_f32 v{t+16+e}, v{t+16+e}, v{t+24+e}")
        xv = vX + 4*k
        for e in range(8):
            src = xv + e//2
            p(f"v_lshlrev_b32 v{t+8+e}, 16, v{src}" if e % 2 == 0 else f"v_and_b32 v{t+8+e}, 0xffff0000, v{src}")
        for e in range(8): p(f"v_fmac_f32 v{t+8+e}, v{t+16+e}, v{t+e}")
        for e in range(0, 8, 2): p(f"v_cvt_pk_bf16_f32 v{t+32+e//2}, v{t+8+e}, v{t+8+e+1}")
        p(f"buffer_store_dwordx4 v[{t+32}:{t+35}], v{vXo+k}, s[{sO}:{sO+3}], 0 offen {ssc}")
    p(f"s_waitcnt vmcnt(0)")
    final(0)
    p(f"s_cmp_lt_u32 s{sw}, 2"); p(f"s_cbranch_scc0 {tag}_fin")
    final(1)
    p(f"{tag}_fin:")
    if prof:
        st('end')
        S.names['w'] = sw
        emit_prof_store(p, R['ws'], st.L, vA, t+16, S, region=1)
    p(f"s_branch {tag}_done")
    if not att:
        p(f"{tag}_nspin:")
        p(f"s_mov_b32 s{sSp}, {SPIN}")
        p(f"{tag}_nspin_l:")
        p(f"buffer_load_dwordx2 v[{vN}:{vN+1}], v{vC}, s[{sD}:{sD+3}], 0 offen sc1")
        p("s_waitcnt vmcnt(0)")
        p(f"v_readfirstlane_b32 s{sNon}, v{vN}"); p(f"v_readfirstlane_b32 s{sNon+1}, v{vN+1}")
        p(f"s_cmp_lg_u32 s{sNon}, 0"); p(f"s_cbranch_scc1 {tag}_nok")
        p(f"s_sub_u32 s{sSp}, s{sSp}, 1"); p(f"s_cmp_lg_u32 s{sSp}, 0"); p(f"s_cbranch_scc1 {tag}_nspin_l")
        p(f"s_branch {tag}_nok")
    else:
        p(f"{tag}_ospin:")
        p(f"s_mov_b32 s{sSp}, {SPIN}"); p(f"s_add_u32 s{sT0}, s{sFo}, 4096")
        p(f"{tag}_ospin_l:")
        p(f"buffer_load_dwordx2 v[{vF}:{vF+1}], v{vFo}, s[{sWS}:{sWS+3}], s{sT0} offen sc1")
        p("s_waitcnt vmcnt(0)")
        p(f"v_cmp_ne_u32 vcc, s{sNon}, v{vF}"); p(f"s_mov_b64 s[{sE}:{sE+1}], vcc")
        p(f"v_cmp_ne_u32 vcc, s{sNon+1}, v{vF+1}"); p(f"s_or_b64 s[{sE}:{sE+1}], s[{sE}:{sE+1}], vcc")
        p(f"s_cmp_eq_u64 s[{sE}:{sE+1}], 0"); p(f"s_cbranch_scc1 {tag}_ook")
        p(f"s_sub_u32 s{sSp}, s{sSp}, 1"); p(f"s_cmp_lg_u32 s{sSp}, 0"); p(f"s_cbranch_scc1 {tag}_ospin_l")
        p(f"s_branch {tag}_ook")
    p(f"{tag}_fspin:")
    p(f"s_mov_b32 s{sSp}, {SPIN}")
    FR = [vF, vX, vX+2, vX+4] if False else [vF, af, af+2, af+4]
    def poll(r): p(f"buffer_load_dwordx2 v[{r}:{r+1}], v{vFo}, s[{sWS}:{sWS+3}], s{sFo} offen sc1")
    def chk(r):
        p(f"v_cmp_ne_u32 vcc, s{sNon}, v{r}"); p(f"s_mov_b64 s[{sE}:{sE+1}], vcc")
        p(f"v_cmp_ne_u32 vcc, s{sNon+1}, v{r+1}"); p(f"s_or_b64 s[{sE}:{sE+1}], s[{sE}:{sE+1}], vcc")
        p(f"s_cmp_eq_u64 s[{sE}:{sE+1}], 0"); p(f"s_cbranch_scc1 {tag}_fexit")
    if w0poll and npoll > 1:
        R4 = [vP + 2*k for k in range(npoll)]
        for k in range(npoll - 1):
            poll(R4[k])
            if pslp: p(f"s_sleep {pslp}")
        p(f"{tag}_fspin_l:")
        for k in range(npoll):
            poll(R4[(k + npoll - 1) % npoll])
            p(f"s_waitcnt vmcnt({npoll - 1})")
            chk(R4[k])
            if pslp: p(f"s_sleep {pslp}")
        p(f"s_sub_u32 s{sSp}, s{sSp}, 1"); p(f"s_cmp_lg_u32 s{sSp}, 0"); p(f"s_cbranch_scc1 {tag}_fspin_l")
        p(f"{tag}_fexit:")
        p(f"s_branch {tag}_fok")
    else:
        p(f"{tag}_fspin_l:")
        poll(vF)
        p("s_waitcnt vmcnt(0)")
        chk(vF)
        p(f"s_sub_u32 s{sSp}, s{sSp}, 1"); p(f"s_cmp_lg_u32 s{sSp}, 0"); p(f"s_cbranch_scc1 {tag}_fspin_l")
        p(f"{tag}_fexit:")
        p(f"s_branch {tag}_fok")
    p(f"{tag}_done:")
    return dict(vgpr=nv, sgpr=S.n, lds=L3 + NS3*10240, stamps=st.names)
```

```python
import sys
sys.path.insert(0, 'dev')
from build8 import *
import shutil
shutil.copy('v60.s', 'a.s')
shutil.copy('v60.s', 'b.s')
P = dict(codepf=0x9900)
mk2('c.s', p1=P)
mk2('d.s', p1=P, k2=dict(zpre=4, lpre=3))
mk2('e.s', p1=P, k2=dict(zpre=2, lpre=2, afill=4))
mk2('f.s', p1=P, k2=dict(zpre=3, lpre=2, afill=3))
```

```python
from asmlib import Prog
from gen import *
from gen2 import *

WS_NON = 0xD90000
WS_FLG = 0xD80000
SPIN = 100000

class VQ:
    def __init__(self): self.n = 0; self.marks = {}
    def op(self, k=1): self.n += k
    def mark(self, name): self.marks[name] = self.n
    def after(self, name): return self.n - self.marks[name]

def emit_k2(p, D=7, bper=2, D3=6, tag="K2", ssc="sc1", prof=False, samexcd=False, flagst=3, pollst=4, chkst=6, usc="", balance=True, w0poll=True, npoll=4, pslp=0, att=False, zpre=7, lpre=7, afill=5, oflagst=10, opollst=21, ochkst=24,
            d0=3, l0=3, r0=0, rk=2, al=(-1,-1,-1,-1,-1), ac=7, zs=2, gs=3, bs=20, dbgw=99, ilv2=0, ilv3=0, p3v=1, npf=6, pfo=0, wq=(2,2,2,2,2,2,2,2,1,1), ubar=11, uq=14, ur=1, dbgc=0, pwave=0, npr=10, pfn=(3,3,3,3,2,2,2), ug=0, xst=None, ubars=0, wfrag=False):
    NST = 32; DZ = D; NZ = DZ + 2; NS = D + 1 + bper
    NSS = 10; NSY = 14; NST3 = NSS + NSY; NS3 = D3 + 2; NB = D3 + 2
    L3 = NS*8192
    assert L3 + NS3*10240 <= 163840
    S = Alloc(4, 100, 's'); V = Alloc(1, 256, 'v')
    sW = S('srdW', 4); sWS = S('srdWS', 4); sB = S('srdB', 4); sX = S('srdX', 4); sO = S('srdO', 4); sD = S('srdD', 4)
    R = dict(x=sX, wsp=sW, bsp=sB, out=sO, dbg=sD, ws=sWS)
    for nm, off in (('ws', 80), ('wsp', 40), ('bsp', 48), ('dbg', 72), ('x', 0), ('out', 64)):
        p(f"s_load_dwordx2 s[{R[nm]}:{R[nm]+1}], s[0:1], {off}")
    def srdfin(s_, size):
        p(f"s_mov_b32 s{s_+2}, {hx(size)}"); p(f"s_mov_b32 s{s_+3}, {SRD3}")
    sw = S('w'); sRt = S('rt'); sCt = S('ct'); sB0 = S('b0'); sNb = S('nb'); sT0 = S('t0'); sT1 = S('t1')
    sOffZ = S('offZ'); sOffZ1 = S('offZ1'); sC1 = S('c1'); sK = S('k54'); sK2 = S('k2'); sK3 = S('k3')
    sPar = S('par'); sTb = S('tb'); sOffW = S('offW'); sOffB = S('offB'); sOffB2 = S('offB2'); sM0 = S('m0b'); sE = S('ex', 2)
    sU = S('offU'); sZ1 = S('offZ1p'); sNon = S('nonce', 2); sFo = S('flagoff'); sSp = S('spin')
    st0 = Stamps(p, S, bool(prof))
    class _St:
        L = st0.L; names = st0.names
        def __call__(self, n):
            if prof and (prof is True or n in prof): st0(n)
    st = _St()
    v16 = V('l16'); vT0 = V('tr0'); vT1 = V('tr1'); vT2 = V('tr2') if p3v == 2 else None; vXo = V('xoff', 2); vRd = V('rd', 2); vX = V('xv', 8, 4); bf3 = V('bf3', 4*NB, 4)
    vN = V('nonce', 2, 2); vF = V('flag', 2, 2); vFo = V('fo')
    vP = None
    base2 = V.n
    vT = V('t'); vG = V('g'); vA = V('a'); vA2 = V('a2')
    vZ = V('z'); vB00 = V('b00'); vB01 = V('b01'); vB10 = V('b10'); vB11 = V('b11'); vC2 = V('c2')
    vBias = V('bias', 4); vZp = V('zp', 8, 2); vGe = V('ge', 16); vTmp = V('tmp', 2); vS = V('st'); vL = V('ld')
    acc = V('acc', 16, 4); bf = V('bf', 64, 4); zb = V('zb', 8*NZ, 4)
    nv = V.n
    vP = vGe
    accy = bf; accs = bf + 20; af = bf + 40
    vB = vA2; vC = vTmp
    ACC = lambda tb: acc + tb*4
    BF = lambda i, par, tb: bf + (i & 1)*32 + par*16 + tb*4
    ZB = lambda i, par: zb + (i % NZ)*8 + par*4
    AF = lambda i, nb: af + (i & 1)*20 + nb*4
    BF3 = lambda i: (zb + 16 + (i - NSS)*4) if (p3v == 2 and i >= NSS) else bf3 + (i % NB)*4
    NPF = D3 if p3v == 1 else npf
    if p3v == 2: assert L3 == 81920 and NZ == 9 and att
    st('start')
    p(f"v_lshrrev_b32 v{vA}, 6, v0")
    p(f"v_readfirstlane_b32 s{sw}, v{vA}")
    if not att:
        p(f"s_or_b32 s{sT0}, s2, s{sw}"); p(f"s_cmp_lg_u32 s{sT0}, 0"); p(f"s_cbranch_scc1 {tag}_nonon")
        p(f"s_memrealtime s[{sNon}:{sNon+1}]")
        p("s_waitcnt lgkmcnt(0)")
        p(f"s_or_b32 s{sNon}, s{sNon}, 1")
        srdfin(sD, 256)
        p(f"v_mov_b32 v{vN}, s{sNon}"); p(f"v_mov_b32 v{vN+1}, s{sNon+1}"); p(f"v_mov_b32 v{vFo}, 0")
        p("s_mov_b64 exec, 1")
        p(f"buffer_store_dwordx2 v[{vN}:{vN+1}], v{vFo}, s[{sD}:{sD+3}], 0 offen sc1")
        p("s_mov_b64 exec, -1")
        p(f"{tag}_nonon:")
    p(f"s_and_b32 s{sT0}, s2, 7")
    p(f"s_lshr_b32 s{sT1}, s2, 3")
    if samexcd:
        p(f"s_lshl_b32 s{sRt}, s{sT0}, 2"); p(f"s_and_b32 s{sCt}, s{sT1}, 3"); p(f"s_add_u32 s{sRt}, s{sRt}, s{sCt}")
        p(f"s_lshr_b32 s{sCt}, s{sT1}, 2")
    else:
        p(f"s_lshr_b32 s{sRt}, s{sT0}, 1"); p(f"s_lshl_b32 s{sRt}, s{sRt}, 3")
        p(f"s_and_b32 s{sCt}, s{sT1}, 7"); p(f"s_add_u32 s{sRt}, s{sRt}, s{sCt}")
        p(f"s_and_b32 s{sCt}, s{sT0}, 1"); p(f"s_lshl_b32 s{sCt}, s{sCt}, 2")
        p(f"s_lshr_b32 s{sT1}, s{sT1}, 3"); p(f"s_add_u32 s{sCt}, s{sCt}, s{sT1}")
        if balance:
            p(f"s_lshl_b32 s{sCt}, s{sCt}, 2"); p(f"s_lshr_b32 s{sCt}, 0x75436210, s{sCt}"); p(f"s_and_b32 s{sCt}, s{sCt}, 7")
    p(f"s_mul_i32 s{sB0}, s{sCt}, 7"); p(f"s_mul_i32 s{sT0}, s{sCt}, 6"); p(f"s_add_u32 s{sT0}, s{sT0}, 6")
    p(f"s_min_u32 s{sB0}, s{sB0}, s{sT0}")
    p(f"s_cmp_lt_u32 s{sCt}, 6"); p(f"s_cselect_b32 s{sNb}, 7, 6")
    p(f"s_and_b32 s{sTb}, s{sw}, 3"); p(f"s_lshr_b32 s{sPar}, s{sw}, 2")

    def p3_setup():
        vLn = vGe; t0 = vGe + 1; t1 = vGe + 2; t2 = vGe + 3
        sM = sE
        p(f"v_and_b32 v{vLn}, 63, v0")
        p(f"v_lshlrev_b32 v{v16}, 4, v{vLn}")
        p(f"v_lshrrev_b32 v{t0}, 5, v{vLn}"); p(f"v_lshlrev_b32 v{t0}, 4, v{t0}")
        p(f"v_lshrrev_b32 v{t1}, 4, v{vLn}"); p(f"v_and_b32 v{t1}, 1, v{t1}"); p(f"v_lshlrev_b32 v{t1}, 2, v{t1}"); p(f"v_add_u32 v{t0}, v{t0}, v{t1}")
        p(f"v_lshrrev_b32 v{t1}, 2, v{vLn}"); p(f"v_and_b32 v{t1}, 3, v{t1}"); p(f"v_add_u32 v{t0}, v{t0}, v{t1}")
        p(f"v_mul_u32_u24 v{t0}, 160, v{t0}"); p(f"v_and_b32 v{t1}, 3, v{vLn}"); p(f"v_lshlrev_b32 v{t1}, 3, v{t1}"); p(f"v_add_u32 v{t0}, v{t0}, v{t1}")
        if wfrag: p(f"v_mov_b32 v{t0}, v{v16}")
        p(f"s_mul_i32 s{sT0}, s{sPar}, 5120"); p(f"s_add_u32 s{sT0}, s{sT0}, {L3 if p3v == 1 else 0}"); p(f"v_add_u32 v{vT0}, s{sT0}, v{t0}"); p(f"v_add_u32 v{vT1}, 0x10000, v{vT0}")
        if p3v == 2: p(f"v_add_u32 v{vT2}, 0x20000, v{vT0}")
        p(f"s_mov_b32 s{sM}, {magic(10, 1024)}")
        p(f"s_lshl_b32 s{sT0}, s{sRt}, 6"); p(f"s_mul_i32 s{sT0}, s{sT0}, 1280"); p(f"s_mul_i32 s{sT1}, s{sCt}, 160"); p(f"s_add_u32 s{sT0}, s{sT0}, s{sT1}")
        for k in range(2):
            p(f"v_add_u32 v{t2}, {512*k}, v0")
            p(f"v_mul_hi_u32 v{t0}, v{t2}, s{sM}"); p(f"v_mul_u32_u24 v{t1}, 10, v{t0}"); p(f"v_sub_u32 v{t1}, v{t2}, v{t1}")
            p(f"v_mul_u32_u24 v{t2}, 1280, v{t0}"); p(f"v_lshlrev_b32 v{vXo+k}, 4, v{t1}"); p(f"v_add_u32 v{vXo+k}, v{vXo+k}, v{t2}")
            p(f"v_add_u32 v{vXo+k}, s{sT0}, v{vXo+k}")
            p(f"v_mul_u32_u24 v{t2}, 336, v{t0}"); p(f"v_lshlrev_b32 v{vRd+k}, 5, v{t1}"); p(f"v_add_u32 v{vRd+k}, v{vRd+k}, v{t2}")
        p(f"s_cmp_lt_u32 s{sw}, 2"); p(f"s_cselect_b32 s{sT0}, 0, {hx(OOB)}"); p(f"v_or_b32 v{vXo+1}, s{sT0}, v{vXo+1}")
        p(f"v_and_b32 v{vFo}, 7, v{vLn}"); p(f"v_lshlrev_b32 v{vFo}, 3, v{vFo}")
        p(f"s_lshl_b32 s{sFo}, s{sRt}, 6"); p(f"s_add_u32 s{sFo}, s{sFo}, {WS_FLG}")
        p(f"s_mul_i32 s{sOffW}, s{sCt}, {47*5120 if not (dbgc & 1) else 0}"); p(f"s_mul_i32 s{sT0}, s{sw}, {1280 if p3v == 1 else 1024}"); p(f"s_add_u32 s{sOffW}, s{sOffW}, s{sT0}")
        p(f"s_add_u32 s{sOffW}, s{sOffW}, {WS_WR + 27*5120}")
        p(f"s_add_u32 s{sM0}, s{sT0}, {L3 if p3v == 1 else 0}")
        p(f"s_lshl_b32 s{sT0}, s{sRt}, 2"); p(f"s_add_u32 s{sT0}, s{sT0}, s{sTb}")
        p(f"s_mul_i32 s{sOffB}, s{sT0}, {54*512 if not (dbgc & 4) else 0}"); p(f"s_lshl_b32 s{sT1}, s{sPar}, 10"); p(f"s_add_u32 s{sOffB}, s{sOffB}, s{sT1}"); p(f"s_add_u32 s{sOffB}, s{sOffB}, {WS_U}")
        p(f"s_mul_i32 s{sOffB2}, s{sT0}, {20*1024 if not (dbgc & 2) else 0}"); p(f"s_add_u32 s{sOffB2}, s{sOffB2}, s{sT1}"); p(f"s_add_u32 s{sOffB2}, s{sOffB2}, {WS_O}")
    def wl3(i):
        slot = i % NS3 if p3v == 1 else (i + 8) % 16
        adv = 10240 if i != NSS - 1 else (10240 - 47*5120) & 0xffffffff
        return [[f"s_add_u32 m0, s{sM0}, {slot*10240}", f"buffer_load_dwordx4 v{v16}, s[{sWS}:{sWS+3}], s{sOffW} offen lds"],
                [f"s_mov_b64 exec, 0xffff", f"buffer_load_dwordx4 v{v16}, s[{sWS}:{sWS+3}], s{sOffW} offen offset:1024 lds", "s_mov_b64 exec, -1",
                 f"s_add_u32 s{sOffW}, s{sOffW}, {hx(adv)}"]]
    RL = lambda s_: (10*s_ + 9)//8
    def wr3(r):
        DJ = (-138240 - 102400) & 0xffffffff
        L = [f"s_add_u32 m0, s{sM0}, {(81920 + r*8192) % 163840}"]
        if r == 12: L += [f"s_cmp_ge_u32 s{sw}, 4", f"s_cselect_b32 s{sT0}, {hx(DJ)}, 0", f"s_add_u32 s{sOffW}, s{sOffW}, s{sT0}"]
        L += [f"buffer_load_dwordx4 v{v16}, s[{sWS}:{sWS+3}], s{sOffW} offen lds", f"s_add_u32 s{sOffW}, s{sOffW}, 8192"]
        if r == 12: L += [f"s_cmp_ge_u32 s{sw}, 4", f"s_cselect_b32 s{sT0}, 0, {hx(DJ)}", f"s_add_u32 s{sOffW}, s{sOffW}, s{sT0}"]
        return L
    def bl3(i):
        if i < NSS:
            return [f"buffer_load_dwordx4 v[{BF3(i)}:{BF3(i)+3}], v{v16}, s[{sWS}:{sWS+3}], s{sOffB2} offen", f"s_add_u32 s{sOffB2}, s{sOffB2}, 2048"]
        return [f"buffer_load_dwordx4 v[{BF3(i)}:{BF3(i)+3}], v{v16}, s[{sWS}:{sWS+3}], s{sOffB} offen {usc}", f"s_add_u32 s{sOffB}, s{sOffB}, 2048"]
    PF0 = NST - DZ + pfo
    if p3v == 2:
        seq = []; r_ = 0
        for s_ in range(NSS):
            while r_ <= RL(s_) and r_ < npr: seq.append(('R', r_)); r_ += 1
            if s_ < npf: seq.append(('B', s_))
        assert npr <= 10 and npf <= NB and sum(pfn) == len(seq), len(seq)
        PFS = []
        for n_ in pfn: PFS.append(seq[:n_]); seq = seq[n_:]
        NPF = len(pfn)
    assert NPF <= NST - PF0
    def pf3(s):
        if p3v == 2: return [wr3(x) if k == 'R' else bl3(x) for k, x in PFS[s]]
        return wl3(s) + [bl3(s)]

    LA = L3; LO = LA + 40960; MAT = 160*2048*8
    AT = acc; assert bf == acc + 16
    TT = []
    inl = (att == 2)
    if not inl:
        for par in range(2):
            b_ = AT + 40*par
            TT.append(dict(q=b_, kp=b_+4, kc=b_+8, v0=b_+12, v1=b_+16, s=b_+20, pb=b_+28, o0=b_+32, o1=b_+36, m=bf3+8+3*par, t=bf3+9+3*par, r=bf3+10+3*par))
        aBias = bf3; aQa, aKa, aKb, aVa, aOa, aOb, aOo, aOr, aA, aB, aC = range(bf3+14, bf3+25); aD = bf3 + 25; aOd = bf3
        aS = aD
    else:
        assert ac % 2 == 1 and NB*4 >= 32
        for par in range(2):
            b_ = (bf + (ac & 1)*32) if par == 0 else bf3
            TT.append(dict(q=b_, kp=b_+4, kc=b_+8, v0=b_+12, v1=b_+16, s=b_+20, pb=b_+28, o0=b_+4, o1=b_+8, m=vGe+3*par, t=vGe+1+3*par, r=vGe+2+3*par))
        aBias = vX; aQa, aKa, aKb, aVa, aOa, aOb, aA, aB, aC = range(vGe+6, vGe+15); aOo = vBias; aOr = vBias + 1; aD = vZp; aOd = vX
        aS = bf3 + 28
        dep = lambda i, d: min(DZ, d + max(0, (i + 1 - r0)//rk)) if i >= 0 else d
        assert dep(NST - DZ - 1, d0) == DZ and dep(NST - DZ - 1, l0) == D and gs > ac and gs + 16 <= NST + 1 and zs > max(al) and bs > ac + 1 and bs < NST - DZ
    sAb = S('attb'); sAm = S('attm'); sO0 = S('o0'); sO1 = S('o1'); sHd = S('hd'); sBb = S('bb'); sSc = S('asc')
    def att_dma_addr():
        j = aA; e = aB; t = aC; u = aQa
        p(f"s_lshr_b32 s{sHd}, s{sw}, 1"); p(f"s_and_b32 s{sBb}, s{sw}, 1")
        p(f"v_and_b32 v{e}, 7, v0"); p(f"v_lshlrev_b32 v{e}, 4, v{e}"); p(f"v_bfe_u32 v{j}, v0, 3, 3")
        def kv(dst, o, base):
            p(f"v_mul_u32_u24 v{t}, 86, v{o}"); p(f"v_lshrrev_b32 v{t}, 8, v{t}"); p(f"v_mul_u32_u24 v{t}, 16000, v{t}")
            p(f"v_lshl_add_u32 v{t}, v{o}, 7, v{t}"); p(f"v_add_u32 v{t}, {hx(base)}, v{t}"); p(f"v_add_u32 v{dst}, v{t}, v{e}")
        p(f"v_lshrrev_b32 v{t}, 1, v{j}"); p(f"v_mul_u32_u24 v{t}, 16128, v{t}"); p(f"v_lshl_add_u32 v{t}, v{j}, 7, v{t}"); p(f"v_add_u32 v{t}, 128, v{t}"); p(f"v_add_u32 v{aD}, v{t}, v{e}")
        p(f"v_subrev_u32 v{u}, 2, v{j}"); p(f"v_and_b32 v{u}, 7, v{u}"); kv(aD+1, u, MAT)
        p(f"v_lshlrev_b32 v{t}, 7, v{j}"); p(f"v_add_u32 v{t}, {4*16384 + 128}, v{t}"); p(f"v_add_u32 v{t}, v{t}, v{e}")
        p(f"v_cmp_gt_u32 vcc, 2, v{j}"); p(f"v_cndmask_b32 v{aD+1}, v{aD+1}, v{t}, vcc")
        p(f"v_add_u32 v{u}, 6, v{j}"); kv(aD+2, u, MAT)
        p(f"v_subrev_u32 v{u}, 1, v{j}"); p(f"v_and_b32 v{u}, 7, v{u}"); kv(aD+3, u, 2*MAT)
        p(f"v_add_u32 v{t}, {hx(MAT + 4*16000 + 14*128)}, v{e}")
        p(f"v_cmp_eq_u32 vcc, 0, v{j}"); p(f"v_cndmask_b32 v{aD+3}, v{aD+3}, v{t}, vcc")
        p(f"v_add_u32 v{u}, 7, v{j}"); kv(aD+4, u, 2*MAT)
        p(f"s_mul_i32 s{sAb}, s{sCt}, 20"); p(f"s_mul_i32 s{sT0}, s{sHd}, 5"); p(f"s_add_u32 s{sAb}, s{sAb}, s{sT0}"); p(f"s_lshl_b32 s{sAb}, s{sAb}, 14")
        p(f"s_lshl_b32 s{sT0}, s{sRt}, 9"); p(f"s_add_u32 s{sAb}, s{sAb}, s{sT0}"); p(f"s_lshl_b32 s{sT0}, s{sBb}, 8"); p(f"s_add_u32 s{sAb}, s{sAb}, s{sT0}")
        p(f"s_add_u32 s{sAb}, s{sAb}, {WS_QKV - 128}")
        p(f"s_mul_i32 s{sAm}, s{sw}, 5120"); p(f"s_add_u32 s{sAm}, s{sAm}, {LA}")
    def att_ld(k): return [f"s_add_u32 m0, s{sAm}, {1024*k}", f"buffer_load_dwordx4 v{aD+k}, s[{sWS}:{sWS+3}], s{sAb} offen lds"]
    def att_dma():
        for k in range(5):
            for l in att_ld(k): p(l)
    def att_setup():
        vLn = aS; vQ = aS + 1; vGq = aS + 2
        p(f"v_and_b32 v{vLn}, 63, v0"); p(f"v_and_b32 v{vQ}, 15, v{vLn}"); p(f"v_lshrrev_b32 v{vGq}, 4, v{vLn}")
        p(f"v_lshlrev_b32 v{aB}, 4, v{vQ}")
        p(f"v_lshl_add_u32 v{aA}, v{vGq}, 8, v{aB}"); p(f"v_add_u32 v{aQa}, s{sAm}, v{aA}")
        p(f"s_add_u32 s{sT0}, s{sAm}, {1280 - 128}")
        p(f"v_mul_u32_u24 v{aA}, 384, v{vGq}"); p(f"v_add_u32 v{aA}, v{aA}, v{aB}"); p(f"v_add_u32 v{aKa}, s{sT0}, v{aA}")
        p(f"s_add_u32 s{sT0}, s{sT0}, {4*384}"); p(f"v_add_u32 v{aKb}, s{sT0}, v{aB}")
        p(f"s_add_u32 s{sT0}, s{sAm}, {3200 - 128}")
        p(f"v_and_b32 v{aA}, 3, v{vLn}"); p(f"v_mul_u32_u24 v{aA}, 384, v{aA}"); p(f"v_lshrrev_b32 v{aB}, 2, v{vLn}"); p(f"v_lshl_add_u32 v{aA}, v{aB}, 4, v{aA}")
        p(f"v_add_u32 v{aVa}, s{sT0}, v{aA}")
        p(f"s_mul_i32 s{sT0}, s{sHd}, 5"); p(f"v_add_u32 v{aA}, s{sT0}, v{vGq}")
        p(f"v_lshrrev_b32 v{aB}, 1, v{aA}"); p(f"v_lshlrev_b32 v{aB}, 10, v{aB}"); p(f"v_and_b32 v{aA}, 1, v{aA}"); p(f"v_lshl_add_u32 v{aA}, v{aA}, 3, v{aB}")
        p(f"v_lshlrev_b32 v{aB}, 5, v{vQ}"); p(f"v_add_u32 v{aA}, v{aA}, v{aB}")
        p(f"s_lshl_b32 s{sT1}, s{sBb}, 9"); p(f"s_add_u32 s{sT1}, s{sT1}, {LO}"); p(f"v_add_u32 v{aOa}, s{sT1}, v{aA}")
        p(f"s_add_u32 s{sT0}, s{sT0}, 4"); p(f"s_and_b32 s{sE}, s{sT0}, 1"); p(f"s_lshl_b32 s{sE}, s{sE}, 3"); p(f"s_lshr_b32 s{sT0}, s{sT0}, 1"); p(f"s_lshl_b32 s{sT0}, s{sT0}, 10")
        p(f"s_add_u32 s{sT0}, s{sT0}, s{sE}"); p(f"s_add_u32 s{sT0}, s{sT0}, s{sT1}"); p(f"v_add_u32 v{aOb}, s{sT0}, v{aB}")
        p(f"v_lshlrev_b32 v{aA}, 2, v{vGq}"); p(f"v_sub_u32 v{aA}, v{aA}, v{vQ}")
        p(f"s_or_b32 s{sT0}, s{sRt}, s{sBb}"); p(f"s_cmp_eq_u32 s{sT0}, 0"); p(f"s_cselect_b32 s{sT0}, 100, 9")
        p(f"v_mov_b32 v{aC}, {hx(f2u(NEGBIG))}")
        for e in range(4):
            p(f"v_add_u32 v{aB}, {e}, v{aA}")
            p(f"v_cmp_gt_i32 vcc, s{sT0}, v{aB}"); p(f"v_cndmask_b32 v{aBias+e}, 0, v{aC}, vcc")
            p(f"v_add_u32 v{aB}, 7, v{aB}")
            p(f"v_cmp_lt_u32 vcc, 7, v{aB}"); p(f"v_cndmask_b32 v{aBias+4+e}, 0, v{aC}, vcc")
        if not inl:
            for t in TT:
                p(f"v_mov_b32 v{t['q']+2}, 0"); p(f"v_mov_b32 v{t['q']+3}, 0")
        p(f"v_mul_u32_u24 v{aA}, 20480, v{vGq}"); p(f"v_lshl_add_u32 v{aOo}, v{vQ}, 4, v{aA}")
        p(f"v_lshlrev_b32 v{aOr}, 4, v0"); p(f"v_add_u32 v{aOr}, {LO}, v{aOr}")
        p(f"s_mul_i32 s{sT1}, s{sRt}, {4*20480}"); p(f"s_add_u32 s{sT1}, s{sT1}, {WS_O}")
        for k, d in enumerate((sO0, sO1)):
            p(f"s_mul_i32 s{sT0}, s{sCt}, 10"); p(f"s_add_u32 s{sT0}, s{sT0}, s{sw}")
            if k: p(f"s_add_u32 s{sT0}, s{sT0}, 8")
            p(f"s_and_b32 s{d}, s{sT0}, 3"); p(f"s_lshl_b32 s{d}, s{d}, 8"); p(f"s_lshr_b32 s{sT0}, s{sT0}, 2"); p(f"s_lshl_b32 s{sT0}, s{sT0}, 10")
            p(f"s_add_u32 s{d}, s{d}, s{sT0}"); p(f"s_add_u32 s{d}, s{d}, s{sT1}")
        p(f"s_cmp_lt_u32 s{sw}, 2"); p(f"s_cselect_b32 s{sO1}, s{sO1}, {hx(OOB)}")
        p(f"s_mov_b32 s{sSc}, {hx(f2u(20**-0.5*LOG2E))}")
    def att_compute(fillers):
        L = []
        T = TT
        if inl:
            for t in T: L += [f"v_mov_b32 v{t['q']+2}, 0", f"v_mov_b32 v{t['q']+3}, 0"]
        for par, t in enumerate(T):
            o = 8*par
            L += [f"ds_read_b64 v[{t['q']}:{t['q']+1}], v{aQa} offset:{o}",
                  f"ds_read_b64 v[{t['kp']}:{t['kp']+1}], v{aKa} offset:{o}", f"ds_read_b64 v[{t['kp']+2}:{t['kp']+3}], v{aKb} offset:{o}",
                  f"ds_read_b64 v[{t['kc']}:{t['kc']+1}], v{aKa} offset:{o+256}", f"ds_read_b64 v[{t['kc']+2}:{t['kc']+3}], v{aKb} offset:{o+256}",
                  "!s_mov_b64 exec, 0xffff", f"!ds_read_b64 v[{t['q']+2}:{t['q']+3}], v{aQa} offset:{o+1024}", "!s_mov_b64 exec, -1"]
        for par, t in enumerate(T):
            o = 8*par
            L += [f"ds_read_b64_tr_b16 v[{t['v0']}:{t['v0']+1}], v{aVa} offset:{o}", f"ds_read_b64_tr_b16 v[{t['v0']+2}:{t['v0']+3}], v{aVa} offset:{o+256}",
                  f"ds_read_b64_tr_b16 v[{t['v1']}:{t['v1']+1}], v{aVa} offset:{o+4*384}", f"ds_read_b64_tr_b16 v[{t['v1']+2}:{t['v1']+3}], v{aVa} offset:{o+4*384+256}"]
        for par, t in enumerate(T):
            L.append(f"s_waitcnt lgkmcnt({8 + (6 if par == 0 else 0)})")
            L.append(f"v_mfma_f32_16x16x32_bf16 v[{t['s']}:{t['s']+3}], v[{t['kp']}:{t['kp']+3}], v[{t['q']}:{t['q']+3}], v[{aBias}:{aBias+3}]")
            L.append(f"v_mfma_f32_16x16x32_bf16 v[{t['s']+4}:{t['s']+7}], v[{t['kc']}:{t['kc']+3}], v[{t['q']}:{t['q']+3}], v[{aBias+4}:{aBias+7}]")
        for t in T:
            s_ = t['s']
            L += [f"v_max3_f32 v{t['m']}, v{s_}, v{s_+1}, v{s_+2}", f"v_max3_f32 v{t['m']}, v{t['m']}, v{s_+3}, v{s_+4}",
                  f"v_max3_f32 v{t['m']}, v{t['m']}, v{s_+5}, v{s_+6}", f"v_max_f32 v{t['m']}, v{t['m']}, v{s_+7}"]
        for sw_ in ("v_permlane16_swap_b32", "v_permlane32_swap_b32"):
            for t in T: L.append(f"v_mov_b32 v{t['t']}, v{t['m']}")
            for t in T: L.append(f"{sw_} v{t['m']}, v{t['t']}")
            for t in T: L.append(f"v_max_f32 v{t['m']}, v{t['m']}, v{t['t']}")
        for t in T: L.append(f"v_mul_f32 v{t['m']}, s{sSc}, v{t['m']}")
        for e in range(8):
            for t in T: L.append(f"v_fma_f32 v{t['s']+e}, v{t['s']+e}, s{sSc}, -v{t['m']}")
        for e in range(8):
            for t in T: L.append(f"v_exp_f32 v{t['s']+e}, v{t['s']+e}")
        for t in T:
            s_ = t['s']
            for e in range(0, 8, 2): L.append(f"v_cvt_pk_bf16_f32 v{t['pb']+e//2}, v{s_+e}, v{s_+e+1}")
        for t in T:
            s_ = t['s']
            L.append(f"v_add_f32 v{t['r']}, v{s_}, v{s_+1}")
            for e in range(2, 8): L.append(f"v_add_f32 v{t['r']}, v{t['r']}, v{s_+e}")
        L.append("s_waitcnt lgkmcnt(0)")
        for t in T:
            L.append(f"v_mfma_f32_16x16x32_bf16 v[{t['o0']}:{t['o0']+3}], v[{t['v0']}:{t['v0']+3}], v[{t['pb']}:{t['pb']+3}], 0")
            L.append(f"v_mfma_f32_16x16x32_bf16 v[{t['o1']}:{t['o1']+3}], v[{t['v1']}:{t['v1']+3}], v[{t['pb']}:{t['pb']+3}], 0")
        for sw_ in ("v_permlane16_swap_b32", "v_permlane32_swap_b32"):
            for t in T: L.append(f"v_mov_b32 v{t['t']}, v{t['r']}")
            for t in T: L.append(f"{sw_} v{t['r']}, v{t['t']}")
            for t in T: L.append(f"v_add_f32 v{t['r']}, v{t['r']}, v{t['t']}")
        for t in T: L.append(f"v_rcp_f32 v{t['r']}, v{t['r']}")
        for t in T:
            for blk in ('o0', 'o1'):
                for e in range(4): L.append(f"v_mul_f32 v{t[blk]+e}, v{t[blk]+e}, v{t['r']}")
                L.append(f"v_cvt_pk_bf16_f32 v{t[blk]}, v{t[blk]}, v{t[blk]+1}"); L.append(f"v_cvt_pk_bf16_f32 v{t[blk]+1}, v{t[blk]+2}, v{t[blk]+3}")
        for par, t in enumerate(T):
            L.append(f"ds_write_b64 v{aOa}, v[{t['o0']}:{t['o0']+1}] offset:{16*par}")
        L.append("!s_mov_b64 exec, 0xffff")
        for par, t in enumerate(T):
            L.append(f"!ds_write_b64 v{aOb}, v[{t['o1']}:{t['o1']+1}] offset:{16*par}")
        L.append("!s_mov_b64 exec, -1")
        fillers = list(fillers); k = 0
        for n, l in enumerate(L):
            if l.startswith('!'):
                p(l[1:]); continue
            p(l); k += 1
            if fillers and k >= afill and not (n + 1 < len(L) and L[n+1].startswith('!')):
                for f in fillers.pop(0): p(f)
                k = 0
        for gr in fillers:
            for f in gr: p(f)
        p("s_waitcnt lgkmcnt(0)")
    def att_ostore():
        p(f"ds_read_b128 v[{aOd}:{aOd+3}], v{aOr}"); p(f"ds_read_b128 v[{aOd+4}:{aOd+7}], v{aOr} offset:8192")
    def att_ostore2():
        p(f"buffer_store_dwordx4 v[{aOd}:{aOd+3}], v{aOo}, s[{sWS}:{sWS+3}], s{sO0} offen {ssc}")
        p(f"buffer_store_dwordx4 v[{aOd+4}:{aOd+7}], v{aOo}, s[{sWS}:{sWS+3}], s{sO1} offen {ssc}")
    if att: att_dma_addr()

    p("s_waitcnt lgkmcnt(0)")
    srdfin(sWS, WS_SIZE); srdfin(sX, 2048*1280); srdfin(sO, 2048*1280); srdfin(sD, 256); srdfin(sB, 4096)
    if att:
        if not inl: att_dma()
        p(f"s_mov_b32 s{sSp}, {WS_NON}"); p(f"s_load_dwordx2 s[{sNon}:{sNon+1}], s[{sWS}:{sWS+1}], s{sSp}")
    p(f"s_cmp_ge_u32 s{sw}, s{sNb}")
    p(f"s_cbranch_scc1 {tag}_helper")
    p(f"v_and_b32 v{vA}, 63, v0")
    p(f"v_and_b32 v{vT}, 15, v{vA}"); p(f"v_lshrrev_b32 v{vG}, 4, v{vA}")
    p(f"s_add_u32 s{sB0}, s{sB0}, s{sw}")
    p(f"s_lshl_b32 s{sT0}, s{sB0}, 10")
    p(f"v_lshlrev_b32 v{vA}, 4, v{vA}"); p(f"v_add_u32 v{vZ}, s{sT0}, v{vA}")
    p(f"s_mov_b32 s{sOffZ}, {WS_Z2N}"); p(f"s_mov_b32 s{sOffZ1}, {WS_Z2N + 54*1024}")
    def zloads(i):
        return [[f"buffer_load_dwordx4 v[{ZB(i,0)}:{ZB(i,0)+3}], v{vZ}, s[{sWS}:{sWS+3}], s{sOffZ} offen", f"s_add_u32 s{sOffZ}, s{sOffZ}, {2*54*1024}"],
                [f"buffer_load_dwordx4 v[{ZB(i,1)}:{ZB(i,1)+3}], v{vZ}, s[{sWS}:{sWS+3}], s{sOffZ1} offen", f"s_add_u32 s{sOffZ1}, s{sOffZ1}, {2*54*1024}"]]
    q = VQ()
    if att and not inl: q.op(5); q.mark("att")
    for i in range(2):
        for gr in zloads(i):
            for l in gr: p(l)
        q.op(2); q.mark(f"z{i}")
    if inl:
        for i in range(2, d0):
            for gr in zloads(i):
                for l in gr: p(l)
            q.op(2); q.mark(f"z{i}")
        for k in range(5):
            if al[k] < 0:
                for l in att_ld(k): p(l)
                q.op(1); q.mark("att")
    p(f"v_lshrrev_b32 v{vA2}, 1, v{vT}"); p(f"v_xor_b32 v{vA}, v{vG}, v{vA2}"); p(f"v_lshlrev_b32 v{vA}, 4, v{vA}")
    p(f"v_lshlrev_b32 v{vA2}, 7, v{vT}"); p(f"v_add_u32 v{vB00}, v{vA}, v{vA2}")
    p(f"v_xor_b32 v{vB10}, 64, v{vB00}")
    p(f"v_add_u32 v{vB01}, 0x10000, v{vB00}"); p(f"v_add_u32 v{vB11}, 0x10000, v{vB10}")
    p(f"s_mov_b32 s{sC1}, {hx(f2u(C1))}"); p(f"v_mov_b32 v{vC2}, {hx(f2u(C2))}")
    p(f"s_mov_b32 s{sK}, {54*512}"); p(f"s_mov_b32 s{sK2}, {2*54*512}"); p(f"s_mov_b32 s{sK3}, {3*54*512}")
    p(f"s_lshl_b32 s{sT0}, s{sRt}, 2"); p(f"s_mul_i32 s{sT1}, s{sT0}, 54"); p(f"s_add_u32 s{sT1}, s{sT1}, s{sB0}"); p(f"s_lshl_b32 s{sT1}, s{sT1}, 9")
    p(f"v_and_b32 v{vA}, 1, v{vG}"); p(f"v_lshlrev_b32 v{vA}, 8, v{vA}")
    p(f"v_lshlrev_b32 v{vA2}, 4, v{vT}"); p(f"v_add_u32 v{vA}, v{vA}, v{vA2}")
    p(f"v_lshrrev_b32 v{vA2}, 1, v{vG}"); p(f"v_lshlrev_b32 v{vA2}, 3, v{vA2}"); p(f"v_add_u32 v{vA}, v{vA}, v{vA2}")
    p(f"v_add_u32 v{vL}, s{sT1}, v{vA}"); p(f"v_add_u32 v{vL}, {WS_Z1P}, v{vL}")
    p(f"v_lshrrev_b32 v{vA}, 1, v{vG}"); p(f"v_lshlrev_b32 v{vA}, 8, v{vA}")
    p(f"v_lshlrev_b32 v{vA2}, 4, v{vT}"); p(f"v_add_u32 v{vA}, v{vA}, v{vA2}")
    p(f"v_and_b32 v{vA2}, 1, v{vG}"); p(f"v_lshlrev_b32 v{vA2}, 3, v{vA2}"); p(f"v_add_u32 v{vA}, v{vA}, v{vA2}")
    p(f"v_add_u32 v{vS}, s{sT1}, v{vA}"); p(f"v_add_u32 v{vS}, {WS_U}, v{vS}")
    KS = ["0", f"s{sK}", f"s{sK2}", f"s{sK3}"]
    z1pl = [[f"buffer_load_dwordx2 v[{vZp+2*k}:{vZp+2*k+1}], v{vL}, s[{sWS}:{sWS+3}], {KS[k]} offen"] for k in range(4)]
    p(f"s_lshl_b32 s{sT0}, s{sT0}, 5")
    vBo = vA if not inl else vS + 0
    if inl: vBo = vA
    biasl = [[f"buffer_load_ushort v{vBias+k}, v{vBo}, s[{sB}:{sB+3}], 0 offen offset:{32*k}"] for k in range(4)]
    if not inl:
        for gr in z1pl:
            for l in gr: p(l)
    p(f"v_lshlrev_b32 v{vA}, 1, v{vT}"); p(f"v_add_u32 v{vA}, s{sT0}, v{vA}")
    if not inl:
        for gr in biasl:
            for l in gr: p(l)
        q.op(8); q.mark("z1p")
    for i in range(2, (min(DZ, zpre) if att else DZ) if not inl else 0):
        for gr in zloads(i):
            for l in gr: p(l)
        q.op(2); q.mark(f"z{i}")
    p3_setup()
    st('setup')
    if inl:
        att_setup()
        p("s_waitcnt lgkmcnt(0)")
        p(f"v_mov_b32 v{vN}, s{sNon}"); p(f"v_mov_b32 v{vN+1}, s{sNon+1}")
    elif att:
        att_setup()
        p(f"s_waitcnt vmcnt({q.after('att')}) lgkmcnt(0)")
        p(f"v_mov_b32 v{vN}, s{sNon}"); p(f"v_mov_b32 v{vN+1}, s{sNon+1}")
        st('att0')
        fl = []
        for i in range(max(2, min(DZ, zpre)), DZ):
            fl += zloads(i); q.op(2); q.mark(f"z{i}")
        att_compute(fl)
        st('att1')
    gel = []
    for qq in range(16):
        k, c = qq//4, qq % 4
        src = vZp + k*2 + c//2
        ops = [f"v_lshlrev_b32 v{vGe+qq}, 16, v{src}" if c % 2 == 0 else f"v_and_b32 v{vGe+qq}, 0xffff0000, v{src}"]
        ops += gelu_ops(vGe+qq, vTmp + (qq & 1), sC1, vC2)
        gel.append(ops)
    def mfmas(i):
        L = []
        for par in range(2):
            for tb in range(4):
                c = "0" if (i == 0 and par == 0) else f"v[{ACC(tb)}:{ACC(tb)+3}]"
                L.append(f"v_mfma_f32_16x16x32_bf16 v[{ACC(tb)}:{ACC(tb)+3}], v[{ZB(i,par)}:{ZB(i,par)+3}], v[{BF(i,par,tb)}:{BF(i,par,tb)+3}], {c}")
        return L
    nz = d0 if inl else DZ
    OS = (ac + 1) if inl else 0
    for i in range(NST + 1):
        if i < NST:
            if inl and i == ac:
                st('att0')
                p(f"s_waitcnt vmcnt({min(63, q.after('att'))})")
                att_compute([])
                st('att1')
            if inl and i == oflagst: p(f"s_waitcnt vmcnt({min(63, q.after('ost'))})")
            if att and i == ochkst:
                p(f"s_cmp_lg_u32 s{sw}, 0"); p(f"s_cbranch_scc1 {tag}_ook")
                p(f"s_waitcnt vmcnt({min(63, q.after('OFL'))})")
                p(f"v_cmp_ne_u32 vcc, s{sNon}, v{vF}"); p(f"s_mov_b64 s[{sE}:{sE+1}], vcc")
                p(f"v_cmp_ne_u32 vcc, s{sNon+1}, v{vF+1}"); p(f"s_or_b64 s[{sE}:{sE+1}], s[{sE}:{sE+1}], vcc")
                p(f"s_cmp_lg_u64 s[{sE}:{sE+1}], 0"); p(f"s_cbranch_scc1 {tag}_ospin")
                p(f"{tag}_ook:")
            if i % bper == 0: p("s_barrier")
            if i in (0, 8, 16, 24): st(f's{i}')
            if att and i == OS: att_ostore()
            if att and i == oflagst:
                assert i % bper == 0 and (inl or i >= DZ + 3)
                p(f"s_lshl_b32 s{sT0}, s{sCt}, 3"); p(f"s_add_u32 s{sT0}, s{sT0}, s{sFo}"); p(f"s_add_u32 s{sT0}, s{sT0}, 4096")
                p(f"s_cmp_eq_u32 s{sw}, 0"); p(f"s_cselect_b32 s{sT0}, s{sT0}, {hx(OOB)}")
                p(f"v_mov_b32 v{vF}, 0")
                p("s_mov_b64 exec, 1")
                p(f"buffer_store_dwordx2 v[{vN}:{vN+1}], v{vF}, s[{sWS}:{sWS+3}], s{sT0} offen sc1")
                p("s_mov_b64 exec, -1")
                q.op(1)
            if att and i == opollst:
                p(f"s_add_u32 s{sT0}, s{sFo}, 4096"); p(f"s_cmp_eq_u32 s{sw}, 0"); p(f"s_cselect_b32 s{sT0}, s{sT0}, {hx(OOB)}")
                p(f"buffer_load_dwordx2 v[{vF}:{vF+1}], v{vFo}, s[{sWS}:{sWS+3}], s{sT0} offen sc1")
                q.op(1); q.mark("OFL")
            slot = i % NS
            rds = []
            for par in range(2):
                for tb in range(4):
                    off = slot*8192 + tb*2048
                    vb = [[vB00, vB01], [vB10, vB11]][par][off >= 65536]
                    rds.append(f"ds_read_b128 v[{BF(i,par,tb)}:{BF(i,par,tb)+3}], v{vb} offset:{off & 0xffff}")
            il2 = ilv2 and i >= 1 and not (att and i == OS)
            if not il2:
                for l in rds: p(l)
                rds = []
            if att and i == OS:
                p("s_waitcnt lgkmcnt(8)"); att_ostore2(); q.op(2); q.mark("ost")
        if inl:
            groups = []; mk = None
            while i < NST and nz < NST and nz <= i + dep(i, d0):
                zl = zloads(nz); groups += [(zl[0], 1, None), (zl[1], 1, f"z{nz}")]; nz += 1
            for k in range(5):
                if al[k] == i: groups.append((att_ld(k), 1, "att"))
            if i in (zs, zs + 1): groups += [(z1pl[2*(i - zs) + k], 1, "z1p") for k in range(2)]
            if i in (bs, bs + 1): groups += [(biasl[2*(i - bs) + k], 1, None) for k in range(2)]
            if i >= PF0 and i - PF0 < NPF and i < NST:
                assert nz == NST
                groups += [(g, 1, None) for g in pf3(i - PF0)]
        elif i + DZ < NST: groups = [(g, 1, None) for g in zloads(i + DZ)]; mk = f"z{i+DZ}"
        elif 0 <= i - PF0 < NPF and i < NST: groups = [(g, 1, None) for g in pf3(i - PF0)]; mk = f"p{i-PF0}"
        else: groups = []; mk = None
        if i >= 1:
            j = i - 1
            need = f"z{j}"
            out = q.after(need)
            if i == gs: out = min(out, q.after("z1p"))
            ilv = ilv2 and (i == NST or rds)
            if ilv: p(f"s_waitcnt vmcnt({min(out,63)})")
            else: p(f"s_waitcnt vmcnt({min(out,63)}) lgkmcnt({8 if i < NST else 0})")
            M = mfmas(j)
            g = list(gel[i-gs]) if gs <= i < gs + 16 else []
            pos = {0: (), 1: (0,), 2: (0, 4), 3: (0, 3, 6), 4: (0, 2, 4, 6), 5: (0, 2, 3, 5, 7), 6: (0, 1, 3, 4, 6, 7)}.get(len(groups), range(8))
            for n, m in enumerate(M):
                if n in pos and groups:
                    gr, k, mk_ = groups.pop(0)
                    for l in gr: p(l)
                    q.op(k)
                    if mk_: q.mark(mk_)
                if ilv: p(f"s_waitcnt lgkmcnt({7 if i < NST else 7 - n})")
                p(m)
                if ilv and rds: p(rds.pop(0))
                if g: p(g.pop(0))
            for l in g: p(l)
        for gr, k, mk_ in groups:
            for l in gr: p(l)
            q.op(k)
            if mk_: q.mark(mk_)
        if mk: q.mark(mk)
    st('main2')
    for k in range(4): p(f"v_lshlrev_b32 v{vBias+k}, 16, v{vBias+k}")
    for qq in range(16): p(f"v_add_f32 v{acc+qq}, v{acc+qq}, v{vBias+qq//4}")
    for qq in range(16): p(f"v_mul_f32 v{acc+qq}, v{acc+qq}, v{vGe+qq}")
    for qq in range(0, 16, 2): p(f"v_cvt_pk_bf16_f32 v{acc+qq//2}, v{acc+qq}, v{acc+qq+1}")
    for k in range(4):
        p(f"buffer_store_dwordx2 v[{acc+2*k}:{acc+2*k+1}], v{vS}, s[{sWS}:{sWS+3}], {KS[k]} offen {ssc}")
    p(f"s_branch {tag}_p3")
    p(f"{tag}_helper:")
    p(f"s_cmp_eq_u32 s{sw}, 7")
    p(f"s_cbranch_scc1 {tag}_loader")
    p3_setup()
    if inl:
        for k in range(5):
            if al[k] < 0:
                for l in att_ld(k): p(l)
        att_setup()
        p("s_waitcnt lgkmcnt(0)")
    elif att:
        att_setup()
        p("s_waitcnt vmcnt(0) lgkmcnt(0)")
        att_compute([])
    for i in range(NST):
        if inl and i == ac:
            p("s_waitcnt vmcnt(0)"); att_compute([])
        if att and not inl and i == oflagst - 2: p("s_waitcnt vmcnt(0)")
        if inl and i == oflagst: p("s_waitcnt vmcnt(0)")
        if i % bper == 0: p("s_barrier")
        if att and i == OS:
            att_ostore(); p("s_waitcnt lgkmcnt(0)"); att_ostore2()
        if inl:
            for k in range(5):
                if al[k] == i:
                    for l in att_ld(k): p(l)
        if PF0 <= i < PF0 + NPF:
            for gr in pf3(i - PF0):
                for l in gr: p(l)
    p(f"s_branch {tag}_p3")
    p(f"{tag}_loader:")
    p(f"v_and_b32 v{vL}, 63, v0")
    p(f"v_lshrrev_b32 v{vG}, 4, v{vL}"); p(f"v_and_b32 v{vA2}, 7, v{vL}"); p(f"v_xor_b32 v{vA}, v{vG}, v{vA2}")
    p(f"v_lshlrev_b32 v{vA}, 4, v{vA}")
    p(f"v_lshrrev_b32 v{vA2}, 3, v{vL}"); p(f"v_lshlrev_b32 v{vA2}, 12, v{vA2}")
    p(f"v_add_u32 v{vB00}, v{vA}, v{vA2}"); p(f"v_xor_b32 v{vB10}, 64, v{vB00}")
    p(f"v_add_u32 v{vB10}, 0x8000, v{vB10}")
    p(f"s_lshl_b32 s{sT0}, s{sRt}, 18")
    p(f"s_add_u32 s{sW}, s{sW}, s{sT0}"); p(f"s_addc_u32 s{sW+1}, s{sW+1}, 0"); srdfin(sW, 64*4096)
    sq = [sK, sK2, sK3, sOffZ]
    for qq in range(4): p(f"s_mov_b32 s{sq[qq]}, {qq*65536}")
    def wloads(i):
        L = []
        slot = i % NS
        for qq in range(8):
            L.append(f"s_mov_b32 m0, {slot*8192 + qq*1024}")
            L.append(f"buffer_load_dwordx4 v{vB10 if qq & 1 else vB00}, s[{sW}:{sW+3}], s{sq[qq//2]} offen lds")
        for qq in range(4): L.append(f"s_add_u32 s{sq[qq]}, s{sq[qq]}, 128")
        return L
    ql = VQ()
    if att and not inl: ql.op(5); ql.mark("att")
    for i in range((min(D, lpre) if att else D) if not inl else l0):
        for l in wloads(i): p(l)
        ql.op(8); ql.mark(f"w{i}")
        if i == 1 and not inl:
            p3_setup()
    if inl:
        for k in range(5):
            if al[k] < 0:
                for l in att_ld(k): p(l)
                ql.op(1); ql.mark("att")
        p3_setup(); att_setup()
        p("s_waitcnt lgkmcnt(0)")
    elif att:
        assert lpre >= 2
        att_setup()
        p(f"s_waitcnt vmcnt({min(63, ql.after('att'))}) lgkmcnt(0)")
        fl = []
        for i in range(min(D, lpre), D):
            W_ = wloads(i)
            fl += [W_[2*k:2*k+2] for k in range(8)]; fl[-1] = fl[-1] + W_[16:]
            ql.op(8); ql.mark(f"w{i}")
        att_compute(fl)
    nw = l0 if inl else D
    for i in range(NST):
        if inl and i == ac:
            p(f"s_waitcnt vmcnt({min(63, ql.after('att'))})"); att_compute([])
        if i % bper == 0:
            need = min(i + bper - 1, NST - 1)
            n_ = ql.after(f'w{need}')
            if inl and i == oflagst: n_ = min(n_, ql.after('ost'))
            p(f"s_waitcnt vmcnt({min(63, n_)})")
            p("s_barrier")
        if att and i == OS:
            att_ostore(); p("s_waitcnt lgkmcnt(0)"); att_ostore2(); ql.op(2); ql.mark("ost")
        if inl:
            while nw < NST and nw <= i + dep(i, l0):
                for l in wloads(nw): p(l)
                ql.op(8); ql.mark(f"w{nw}"); nw += 1
            for k in range(5):
                if al[k] == i:
                    for l in att_ld(k): p(l)
                    ql.op(1); ql.mark("att")
            if i >= PF0 and i - PF0 < NPF:
                assert nw == NST
                for gr in pf3(i - PF0):
                    for l in gr: p(l)
                    ql.op(1)
        elif i + D < NST:
            for l in wloads(i + D): p(l)
            ql.op(8); ql.mark(f"w{i+D}")
        elif 0 <= i - PF0 < NPF:
            for gr in pf3(i - PF0):
                for l in gr: p(l)
                ql.op(1)
    p(f"{tag}_p3:")
    st('p3')
    q = VQ()
    if p3v == 2:
        for g_ in PFS:
            for k, x in g_: q.op(1); q.mark(f"{k}{x}")
    else:
        for s in range(NPF):
            q.op(2); q.mark(f"W{s}"); q.op(1); q.mark(f"B{s}")
    WM = (lambda s_: f"R{RL(s_)}") if p3v == 2 else (lambda s_: f"W{s_}")
    q.mark("ST")
    def mfmas3(j):
        a = accs if j < NSS else accy
        first = j in (0, NSS)
        return [f"v_mfma_f32_16x16x32_bf16 v[{a+4*nb}:{a+4*nb+3}], v[{AF(j,nb)}:{AF(j,nb)+3}], v[{BF3(j)}:{BF3(j)+3}], " + ("0" if first else f"v[{a+4*nb}:{a+4*nb+3}]") for nb in range(5)]
    nextB = NPF; nextW = NPF
    if p3v == 2: nextB = npf; nextW = npr
    if p3v == 2: assert chkst <= NSS and (ubar is None or ubar > NSS)
    for i in range(NST3 + 1):
        if i < NST3:
            bar = p3v == 1 or i <= NSS or i == ubar
            wneed = i if (p3v == 1 or i < NSS) else (ubar - 1 if (i == NSS and ubar) else NST3 - 1)
            n = q.after(WM(wneed)) if bar else 63
            if i == flagst: n = min(n, q.after("ST"), q.after("NON") if not att else 63)
            if bar: p(f"s_waitcnt vmcnt({min(63, n)})")
            if i == flagst and not att:
                p(f"v_readfirstlane_b32 s{sNon}, v{vN}"); p(f"v_readfirstlane_b32 s{sNon+1}, v{vN+1}")
                p(f"s_cmp_eq_u32 s{sNon}, 0"); p(f"s_cbranch_scc1 {tag}_nspin")
                p(f"{tag}_nok:")
            if w0poll and i == chkst:
                p(f"s_cmp_lg_u32 s{sw}, 0"); p(f"s_cbranch_scc1 {tag}_fok")
                p(f"s_waitcnt vmcnt({min(63, q.after('FLG'))})")
                p(f"v_cmp_ne_u32 vcc, s{sNon}, v{vF}"); p(f"s_mov_b64 s[{sE}:{sE+1}], vcc")
                p(f"v_cmp_ne_u32 vcc, s{sNon+1}, v{vF+1}"); p(f"s_or_b64 s[{sE}:{sE+1}], s[{sE}:{sE+1}], vcc")
                p(f"s_cmp_lg_u64 s[{sE}:{sE+1}], 0"); p(f"s_cbranch_scc1 {tag}_fspin")
                p(f"{tag}_fok:")
            if bar: p("s_barrier")
            if w0poll and i == chkst: st('fok')
            if p3v == 2 and i == chkst:
                while nextB < NSS + uq and nextB < NST3:
                    if nextB < NSS: raise Exception("O loads must precede U loads")
                    for l in bl3(nextB): p(l)
                    q.op(1); q.mark(f"B{nextB}"); nextB += 1
                    if ubars and nextB < NSS + uq: p("s_barrier")
            if i == flagst: st('flg')
            st(f'q{i}')
            if i == flagst:
                p(f"s_cmp_lg_u32 s{sw}, 0"); p(f"s_cbranch_scc1 {tag}_noflag")
                p(f"s_lshl_b32 s{sT0}, s{sCt}, 3"); p(f"s_add_u32 s{sT0}, s{sT0}, s{sFo}")
                p(f"v_mov_b32 v{vF}, 0")
                p("s_mov_b64 exec, 1")
                p(f"buffer_store_dwordx2 v[{vN}:{vN+1}], v{vF}, s[{sWS}:{sWS+3}], s{sT0} offen sc1")
                p("s_mov_b64 exec, -1")
                p(f"{tag}_noflag:")
            slot = i % NS3 if p3v == 1 else (i + 8) % 16
            rds = []
            RPN = 1 if wfrag else 2
            for nb in range(5 if wfrag else 0):
                off = slot*10240 + nb*1024
                rds.append(f"ds_read_b128 v[{AF(i,nb)}:{AF(i,nb)+3}], v{[vT0, vT1, vT2][off >> 16]} offset:{off & 0xffff}")
            for nb in range(0 if wfrag else 5):
                for half in range(2):
                    off = slot*10240 + half*1280 + nb*32
                    vb = [vT0, vT1, vT2][off >> 16]
                    rds.append(f"ds_read_b64_tr_b16 v[{AF(i,nb)+2*half}:{AF(i,nb)+2*half+1}], v{vb} offset:{off & 0xffff}")
            if not (ilv3 and i >= 1):
                for l in rds: p(l)
                rds = []
        groups = []
        if p3v == 2:
            for _ in range(wq[i] if i < len(wq) else 0):
                r_ = nextW; nextW += 1
                assert r_ < 30 and (r_ < 20 or i >= (8*r_ + 7 - 160)//10 + 2), (r_, i)
                groups.append((wr3(r_), f"R{r_}"))
                if nextB < NSS and RL(nextB) <= r_ and nextB <= i + NB - 2:
                    groups.append((bl3(nextB), f"B{nextB}")); nextB += 1
        elif i + D3 < NST3 and i + D3 < dbgw: groups += [(g, f"W{i+D3}" if k else None) for k, g in enumerate(wl3(i + D3))]
        elif i + D3 < NST3: q.mark(f"W{i+D3}")
        if i == 0 and not att: groups.append(([f"buffer_load_dwordx2 v[{vN}:{vN+1}], v{vFo}, s[{sD}:{sD+3}], 0 offen sc1".replace(f"v{vFo},", f"v{vC},")], "NON"))
        if i == pollst:
            ld = f"buffer_load_dwordx2 v[{vF}:{vF+1}], v{vFo}, s[{sWS}:{sWS+3}], s{sFo} offen sc1"
            if w0poll: groups.append(([f"s_cmp_eq_u32 s{sw}, 0", f"s_cselect_b64 exec, -1, 0xffffffff00000000" if False else f"s_cselect_b32 s{sT0}, s{sFo}, {hx(OOB)}", ld.replace(f"s{sFo} offen", f"s{sT0} offen")], "FLG"))
            else: groups.append(([ld], "FLG"))
        if i == (pollst + 1 if xst is None else xst):
            groups.append(([f"buffer_load_dwordx4 v[{vX}:{vX+3}], v{vXo}, s[{sX}:{sX+3}], 0 offen"], None))
            groups.append(([f"buffer_load_dwordx4 v[{vX+4}:{vX+7}], v{vXo+1}, s[{sX}:{sX+3}], 0 offen"], "X"))
        pre = []
        while nextB < NST3 and (nextB <= i + D3 if (p3v == 1 or nextB < NSS) else nextB < NSS + uq + ug + ur*(i - chkst)) and (nextB < NSS or i >= chkst):
            groups.append((bl3(nextB), f"B{nextB}")); nextB += 1
        if i == 0: p(f"v_mov_b32 v{vC}, 0")
        if i == chkst and not w0poll:
            p(f"s_waitcnt vmcnt({min(63, q.after('FLG'))})")
            p(f"{tag}_fchk:")
            p(f"v_cmp_ne_u32 vcc, s{sNon}, v{vF}"); p(f"s_mov_b64 s[{sE}:{sE+1}], vcc")
            p(f"v_cmp_ne_u32 vcc, s{sNon+1}, v{vF+1}"); p(f"s_or_b64 s[{sE}:{sE+1}], s[{sE}:{sE+1}], vcc")
            p(f"s_cmp_lg_u64 s[{sE}:{sE+1}], 0"); p(f"s_cbranch_scc1 {tag}_fspin")
            p(f"{tag}_fok:")
            st('fok')
        if i >= 1:
            j = i - 1
            if ilv3: p(f"s_waitcnt vmcnt({min(63, q.after(f'B{j}'))})" + (" lgkmcnt(0)" if i == NST3 else ""))
            else: p(f"s_waitcnt vmcnt({min(63, q.after(f'B{j}'))}) lgkmcnt({5*RPN if i < NST3 else 0})")
            st(f'b{j}')
            if j == NST3 - 1:
                p(f"s_cmp_eq_u32 s{sPar}, 1"); p(f"s_cbranch_scc1 {tag}_skipm")
            M = mfmas3(j)
            for n, m in enumerate(M):
                if j != NST3 - 1 and groups:
                    gr, mk = groups.pop(0)
                    for l in gr: p(l)
                    q.op(1)
                    if mk: q.mark(mk)
                if ilv3 and i < NST3: p(f"s_waitcnt lgkmcnt({4*RPN})")
                p(m)
                if ilv3 and i < NST3:
                    for _ in range(RPN): p(rds.pop(0))
            if j == NST3 - 1: p(f"{tag}_skipm:")
        for gr, mk in groups:
            for l in gr: p(l)
            q.op(1)
            if mk: q.mark(mk)
    st('main3')
    vA_ = vA; vLn = vT
    p("s_barrier")
    st('e0')
    p(f"v_lshrrev_b32 v{vLn}, 4, v{v16}")
    p(f"v_and_b32 v{vA_}, 15, v{vLn}"); p(f"s_lshl_b32 s{sT0}, s{sTb}, 4"); p(f"v_add_u32 v{vA_}, s{sT0}, v{vA_}"); p(f"v_mul_u32_u24 v{vA_}, 336, v{vA_}")
    p(f"v_lshrrev_b32 v{vB}, 4, v{vLn}"); p(f"v_lshlrev_b32 v{vB}, 4, v{vB}"); p(f"v_add_u32 v{vA_}, v{vA_}, v{vB}")
    p(f"s_mul_i32 s{sT0}, s{sPar}, {2*21504}"); p(f"v_add_u32 v{vA_}, s{sT0}, v{vA_}")
    for nb in range(5):
        p(f"ds_write_b128 v{vA_}, v[{accy+4*nb}:{accy+4*nb+3}] offset:{nb*64}")
        p(f"ds_write_b128 v{vA_}, v[{accs+4*nb}:{accs+4*nb+3}] offset:{21504 + nb*64}")
    st('e1')
    p("s_waitcnt lgkmcnt(0)"); p("s_barrier")
    st('e2')
    sNL = sK; p(f"s_mov_b32 s{sNL}, {hx(f2u(-LOG2E))}")
    t = af
    def final(k):
        rd = vRd + k
        for m, (o, dst) in enumerate(((0, t), (16, t+4), (2*21504, t+8), (2*21504+16, t+12), (21504, t+16), (21504+16, t+20), (3*21504, t+24), (3*21504+16, t+28))):
            p(f"ds_read_b128 v[{dst}:{dst+3}], v{rd} offset:{o}")
        p("s_waitcnt lgkmcnt(4)")
        for e in range(8): p(f"v_add_f32 v{t+e}, v{t+e}, v{t+8+e}")
        for e in range(8): p(f"v_mul_f32 v{t+8+e}, s{sNL}, v{t+e}")
        for e in range(8): p(f"v_exp_f32 v{t+8+e}, v{t+8+e}")
        for e in range(8): p(f"v_add_f32 v{t+8+e}, 1.0, v{t+8+e}")
        for e in range(8): p(f"v_rcp_f32 v{t+8+e}, v{t+8+e}")
        for e in range(8): p(f"v_mul_f32 v{t+e}, v{t+e}, v{t+8+e}")
        p("s_waitcnt lgkmcnt(0)")
        for e in range(8): p(f"v_add_f32 v{t+16+e}, v{t+16+e}, v{t+24+e}")
        xv = vX + 4*k
        for e in range(8):
            src = xv + e//2
            p(f"v_lshlrev_b32 v{t+8+e}, 16, v{src}" if e % 2 == 0 else f"v_and_b32 v{t+8+e}, 0xffff0000, v{src}")
        for e in range(8): p(f"v_fmac_f32 v{t+8+e}, v{t+16+e}, v{t+e}")
        for e in range(0, 8, 2): p(f"v_cvt_pk_bf16_f32 v{t+32+e//2}, v{t+8+e}, v{t+8+e+1}")
        p(f"buffer_store_dwordx4 v[{t+32}:{t+35}], v{vXo+k}, s[{sO}:{sO+3}], 0 offen {ssc}")
    p(f"s_waitcnt vmcnt(0)")
    st('e3')
    final(0)
    st('e4')
    p(f"s_cmp_lt_u32 s{sw}, 2"); p(f"s_cbranch_scc0 {tag}_fin")
    final(1)
    p(f"{tag}_fin:")
    if prof:
        st('end')
        S.names['w'] = sw
        emit_prof_store(p, R['ws'], st.L, vA, t+16, S, region=1, wave=pwave, tid=True)
    p(f"s_branch {tag}_done")
    if not att:
        p(f"{tag}_nspin:")
        p(f"s_mov_b32 s{sSp}, {SPIN}")
        p(f"{tag}_nspin_l:")
        p(f"buffer_load_dwordx2 v[{vN}:{vN+1}], v{vC}, s[{sD}:{sD+3}], 0 offen sc1")
        p("s_waitcnt vmcnt(0)")
        p(f"v_readfirstlane_b32 s{sNon}, v{vN}"); p(f"v_readfirstlane_b32 s{sNon+1}, v{vN+1}")
        p(f"s_cmp_lg_u32 s{sNon}, 0"); p(f"s_cbranch_scc1 {tag}_nok")
        p(f"s_sub_u32 s{sSp}, s{sSp}, 1"); p(f"s_cmp_lg_u32 s{sSp}, 0"); p(f"s_cbranch_scc1 {tag}_nspin_l")
        p(f"s_branch {tag}_nok")
    else:
        p(f"{tag}_ospin:")
        p(f"s_mov_b32 s{sSp}, {SPIN}"); p(f"s_add_u32 s{sT0}, s{sFo}, 4096")
        p(f"{tag}_ospin_l:")
        p(f"buffer_load_dwordx2 v[{vF}:{vF+1}], v{vFo}, s[{sWS}:{sWS+3}], s{sT0} offen sc1")
        p("s_waitcnt vmcnt(0)")
        p(f"v_cmp_ne_u32 vcc, s{sNon}, v{vF}"); p(f"s_mov_b64 s[{sE}:{sE+1}], vcc")
        p(f"v_cmp_ne_u32 vcc, s{sNon+1}, v{vF+1}"); p(f"s_or_b64 s[{sE}:{sE+1}], s[{sE}:{sE+1}], vcc")
        p(f"s_cmp_eq_u64 s[{sE}:{sE+1}], 0"); p(f"s_cbranch_scc1 {tag}_ook")
        p(f"s_sub_u32 s{sSp}, s{sSp}, 1"); p(f"s_cmp_lg_u32 s{sSp}, 0"); p(f"s_cbranch_scc1 {tag}_ospin_l")
        p(f"s_branch {tag}_ook")
    p(f"{tag}_fspin:")
    p(f"s_mov_b32 s{sSp}, {SPIN}")
    FR = [vF, vX, vX+2, vX+4] if False else [vF, af, af+2, af+4]
    def poll(r): p(f"buffer_load_dwordx2 v[{r}:{r+1}], v{vFo}, s[{sWS}:{sWS+3}], s{sFo} offen sc1")
    def chk(r):
        p(f"v_cmp_ne_u32 vcc, s{sNon}, v{r}"); p(f"s_mov_b64 s[{sE}:{sE+1}], vcc")
        p(f"v_cmp_ne_u32 vcc, s{sNon+1}, v{r+1}"); p(f"s_or_b64 s[{sE}:{sE+1}], s[{sE}:{sE+1}], vcc")
        p(f"s_cmp_eq_u64 s[{sE}:{sE+1}], 0"); p(f"s_cbranch_scc1 {tag}_fexit")
    if w0poll and npoll > 1:
        R4 = [vP + 2*k for k in range(npoll)]
        for k in range(npoll - 1):
            poll(R4[k])
            if pslp: p(f"s_sleep {pslp}")
        p(f"{tag}_fspin_l:")
        for k in range(npoll):
            poll(R4[(k + npoll - 1) % npoll])
            p(f"s_waitcnt vmcnt({npoll - 1})")
            chk(R4[k])
            if pslp: p(f"s_sleep {pslp}")
        p(f"s_sub_u32 s{sSp}, s{sSp}, 1"); p(f"s_cmp_lg_u32 s{sSp}, 0"); p(f"s_cbranch_scc1 {tag}_fspin_l")
        p(f"{tag}_fexit:")
        p(f"s_branch {tag}_fok")
    else:
        p(f"{tag}_fspin_l:")
        poll(vF)
        p("s_waitcnt vmcnt(0)")
        chk(vF)
        p(f"s_sub_u32 s{sSp}, s{sSp}, 1"); p(f"s_cmp_lg_u32 s{sSp}, 0"); p(f"s_cbranch_scc1 {tag}_fspin_l")
        p(f"{tag}_fexit:")
        p(f"s_branch {tag}_fok")
    p(f"{tag}_done:")
    return dict(vgpr=nv, sgpr=S.n, lds=L3 + NS3*10240, stamps=st.names)
```

```python
from asmlib import Prog
from gen import *
from gen2 import *

WS_NON = 0xD90000
WS_CG  = 0xE00000
WS_XG  = 0xE80000
WS_ZG  = 0xE90000
SPIN = 200000

def dpp_sum64_ops(v, t):
    L = []
    for d in ("quad_perm:[1,0,3,2]", "quad_perm:[2,3,0,1]", "row_half_mirror", "row_mirror"):
        L.append(f"v_add_f32_dpp v{v}, v{v}, v{v} {d} row_mask:0xf bank_mask:0xf")
    L += [f"v_mov_b32 v{t}, v{v}", f"v_permlane16_swap_b32 v{v}, v{t}", f"v_add_f32 v{v}, v{v}, v{t}",
          f"v_mov_b32 v{t}, v{v}", f"v_permlane32_swap_b32 v{v}, v{t}", f"v_add_f32 v{v}, v{v}, v{t}"]
    return L

def xstats_ops(vx, vD, vE, vQ, dst):
    L = []
    for j in range(5):
        L.append(f"v_and_b32 v{vx+5+j}, 0xffff0000, v{vx+j}"); L.append(f"v_lshlrev_b32 v{vx+j}, 16, v{vx+j}")
    L.append(f"v_add_f32 v{vD}, v{vx}, v{vx+1}"); L.append(f"v_add_f32 v{vE}, v{vx+2}, v{vx+3}")
    for j in range(4, 10, 2):
        L.append(f"v_add_f32 v{vD}, v{vD}, v{vx+j}"); L.append(f"v_add_f32 v{vE}, v{vE}, v{vx+j+1}")
    L.append(f"v_add_f32 v{vD}, v{vD}, v{vE}")
    L += dpp_sum64_ops(vD, vE)
    L.append(f"v_mul_f32 v{vD}, {hx(f2u(1/640))}, v{vD}")
    for j in range(10): L.append(f"v_sub_f32 v{vx+j}, v{vx+j}, v{vD}")
    L.append(f"v_mul_f32 v{vQ}, v{vx}, v{vx}"); L.append(f"v_mul_f32 v{vE}, v{vx+1}, v{vx+1}")
    for j in range(2, 10, 2):
        L.append(f"v_fmac_f32 v{vQ}, v{vx+j}, v{vx+j}"); L.append(f"v_fmac_f32 v{vE}, v{vx+j+1}, v{vx+j+1}")
    L.append(f"v_add_f32 v{vQ}, v{vQ}, v{vE}")
    L += dpp_sum64_ops(vQ, vE)
    L.append(f"v_mov_b32 v{vE}, {hx(f2u(1e-5))}"); L.append(f"v_fmac_f32 v{vE}, {hx(f2u(1/640))}, v{vQ}")
    L.append(f"v_rsq_f32 v{dst}, v{vE}")
    L.append(f"v_sub_f32 v{dst+1}, 0, v{vD}")
    return L

def emit_p1x(p, tag="P1", prof=False, nfill1=8, nfill2=4, sc="", pw=0, ng=26, nc=37, codepf=0, touch=False, z2n=False, pfid=8, g0=6, nonb=2, npro=3, statpos=3, la2=2, lessbar=False, fpre=False, nf2a=None, a2a=False, dbgz2=False, dmapen=2, zbar=14, mg=58, mc=67, nf3=6, nf2q=None, wfrag=False):
    S = Alloc(4, 100, 's'); V = Alloc(1, 256, 'v')
    sX = S('srdX', 4); sWi = S('srdWi', 4); sWq = S('srdWq', 4); sWS = S('srdWS', 4); sD = S('srdD', 4); sP = S('srdP', 4)
    for r_, off in ((sWS, 80), (sX, 0), (sWi, 32), (sWq, 8), (sD, 72)):
        p(f"s_load_dwordx2 s[{r_}:{r_+1}], s[0:1], {off}")
    def fin(s_, size):
        p(f"s_mov_b32 s{s_+2}, {hx(size)}"); p(f"s_mov_b32 s{s_+3}, {SRD3}")
    sw = S('w'); sRb = S('rb'); sCg = S('cg'); sRg = S('rg'); sCh = S('ch'); sT0 = S('t0'); sT1 = S('t1'); sT2 = S('t2')
    sCk = S('blk', 14, 4)
    sLA, sLB, sOX, sOW0, sOW1, sXr, sSt, sCG, sXG, sJ, sZso, sRow0, sV1 = range(sCk, sCk + 13)
    sMb = S('mb'); sE = S('ex', 2)
    sC1 = S('c1'); sQo = S('qo'); sZ2o = S('z2o'); sV2 = S('v2'); sWSo = S('wso')
    sN = S('nonce', 2); sSp = S('spin')
    st = Stamps(p, S, prof)
    vL = V('lane'); vW = V('wrd'); vW2 = V('wrd2'); vDW = V('dmaW'); vDQ = V('dmaQ'); vSt = V('xst', 2); vCs = V('cs'); vC2 = V('c2')
    vZ1 = V('z1o'); vQo = V('qoff'); vSw = V('stw'); vSr = V('str'); vZs = V('zso'); vL0 = V('l0'); vA = V('ab', 2, 2); vB = vA + 1; vZt = V('zt'); vCA = V('ca_')
    T = V('T', 8, 4)
    WF = V('wf', 16, 4)
    AZ1 = V('az1', 16, 4); AZ2 = V('az2', 16, 4); AQ = V('aq', 16, 4)
    X = V('x', 160, 4)
    vXa = [AQ + j for j in range(4)]; vDX0 = AQ + 4; vDX1 = AQ + 5
    xr = X + 120; wl = X + 132; ca = X + 144; vPo = X + 148; XP = X + 152; CP = X + 156
    pA = X + 112; pB = X + 114; pC = X + 116; vNo = X + 118; vPf = X + 119; vD_ = X + 130; vE_ = X + 131; vQ_ = X + 149
    GX = AQ + 4; GC = [T, T + 4, AQ + 8, AQ + 12]
    TBL = 131072; STG = TBL + 1024
    LDS = STG + 8*2048
    ZT = 149504
    if a2a: LDS = ZT + 2048; assert la2 == 2
    NONL = STG
    st('start')
    p(f"s_memrealtime s[{sN}:{sN+1}]")
    p(f"v_lshrrev_b32 v{vA}, 6, v0"); p(f"v_and_b32 v{vL}, 63, v0"); p(f"v_readfirstlane_b32 s{sw}, v{vA}")
    if codepf:
        p(f"s_getpc_b64 s[{sE}:{sE+1}]")
        p(f"s_and_b32 s{sE}, s{sE}, 0xffffff00")
        p(f"v_lshlrev_b32 v{vA}, 7, v0")
        p(f"s_cmp_lt_u32 s2, {pfid}"); p(f"s_cselect_b64 exec, -1, 1")
        for k in range((codepf + 65535)//65536):
            if k: p(f"v_add_u32 v{vA}, 0x10000, v{vA}")
            p(f"v_min_u32 v{vB}, {codepf - 4}, v{vA}")
            p(f"global_load_dword v{vPf}, v{vB}, s[{sE}:{sE+1}]")
        p("s_mov_b64 exec, -1")
    p(f"s_and_b32 s{sT0}, s2, 7"); p(f"s_lshr_b32 s{sT1}, s2, 3")
    p(f"s_and_b32 s{sRb}, s{sT0}, 1"); p(f"s_lshl_b32 s{sRb}, s{sRb}, 3"); p(f"s_and_b32 s{sT2}, s{sT1}, 7"); p(f"s_add_u32 s{sRb}, s{sRb}, s{sT2}")
    p(f"s_lshr_b32 s{sCg}, s{sT0}, 1"); p(f"s_lshl_b32 s{sCg}, s{sCg}, 2"); p(f"s_lshr_b32 s{sT2}, s{sT1}, 3"); p(f"s_add_u32 s{sCg}, s{sCg}, s{sT2}")
    p(f"s_lshl_b32 s{sXG}, s{sRb}, 7"); p(f"s_lshl_b32 s{sT0}, s{sCg}, 3"); p(f"s_add_u32 s{sXG}, s{sXG}, s{sT0}"); p(f"s_add_u32 s{sXG}, s{sXG}, s{sw}")
    p(f"s_mul_i32 s{sXr}, s{sXG}, 1280")
    p(f"s_lshl_b32 s{sXG}, s{sXG}, 4"); p(f"s_add_u32 s{sXG}, s{sXG}, {WS_XG}")
    p(f"v_min_u32 v{vL0}, 1, v{vL}"); p(f"v_lshlrev_b32 v{vL0}, 31, v{vL0}")
    p(f"s_cmp_eq_u32 s{sw}, 0"); p(f"s_cselect_b32 s{sT0}, 0, {hx(OOB)}"); p(f"v_or_b32 v{vPo}, s{sT0}, v{vL0}")
    p(f"s_cmp_eq_u32 s2, 0"); p(f"s_cselect_b32 s{sT0}, 0, {hx(OOB)}"); p(f"v_or_b32 v{vNo}, s{sT0}, v{vPo}")
    vXo_ = X + 142; vPo_ = X + 143
    p(f"v_lshlrev_b32 v{vXo_}, 2, v{vL}")
    p(f"s_cmp_eq_u32 s{sCg}, 15"); p(f"s_cbranch_scc1 {tag}_aux")
    p(f"s_and_b32 s{sRg}, s{sw}, 3"); p(f"s_lshr_b32 s{sCh}, s{sw}, 2")
    p(f"s_min_u32 s{sLA}, s{sCg}, 13"); p(f"s_add_u32 s{sLB}, s{sCg}, 14"); p(f"s_cmp_lt_u32 s{sCg}, 13"); p(f"s_cselect_b32 s{sLB}, s{sLB}, 13")
    p(f"v_lshrrev_b32 v{T+2}, 4, v{vL}"); p(f"v_and_b32 v{T+3}, 7, v{vL}"); p(f"v_xor_b32 v{T+2}, v{T+2}, v{T+3}"); p(f"v_lshlrev_b32 v{T+2}, 4, v{T+2}")
    p(f"v_lshrrev_b32 v{T+3}, 3, v{vL}"); p(f"v_mul_u32_u24 v{T}, 1280, v{T+3}"); p(f"v_add_u32 v{vDX0}, v{T+2}, v{T}")
    p(f"v_xor_b32 v{vDX1}, 64, v{T+2}"); p(f"v_add_u32 v{vDX1}, v{vDX1}, v{T}"); p(f"v_add_u32 v{vDX1}, {10240-1024}, v{vDX1}")
    p(f"v_lshrrev_b32 v{T+2}, 2, v{vL}"); p(f"v_and_b32 v{T+2}, 4, v{T+2}"); p(f"v_and_b32 v{T+1}, 7, v{vL}"); p(f"v_xor_b32 v{T+2}, v{T+2}, v{T+1}"); p(f"v_lshlrev_b32 v{T+2}, 4, v{T+2}")
    p(f"v_mul_u32_u24 v{T}, 3456, v{T+3}"); p(f"v_add_u32 v{vDW}, v{T+2}, v{T}")
    p(f"v_mul_u32_u24 v{T}, 3840, v{T+3}"); p(f"v_add_u32 v{vDQ}, v{T+2}, v{T}")
    p(f"s_lshl_b32 s{sT0}, s{sRb}, 7"); p(f"s_lshl_b32 s{sT1}, s{sw}, 4"); p(f"s_add_u32 s{sT0}, s{sT0}, s{sT1}"); p(f"s_mul_i32 s{sOX}, s{sT0}, 1280")
    p(f"s_cmp_eq_u32 s{sCh}, 0"); p(f"s_cselect_b32 s{sT0}, s{sLA}, s{sLB}"); p(f"s_lshl_b32 s{sT0}, s{sT0}, 7")
    p(f"s_mul_i32 s{sT1}, s{sRg}, {16*3456}"); p(f"s_add_u32 s{sOW0}, s{sT0}, s{sT1}"); p(f"s_add_u32 s{sOW1}, s{sOW0}, {8*3456 - 1024}")
    p(f"s_lshl_b32 s{sMb}, s{sw}, 11")
    p(f"v_mov_b32 v{pA}, 0")
    p("s_waitcnt lgkmcnt(0)")
    st('karg')
    fin(sX, 2048*1280); fin(sWi, 640*3456); fin(sWq, 640*3840); fin(sWS, WS_SIZE); fin(sD, 256)
    def nonce_store():
        p(f"s_or_b32 s{sN}, s{sN}, 1")
        p(f"v_mov_b32 v{pC}, s{sN}"); p(f"v_mov_b32 v{pC+1}, s{sN+1}")
        p(f"buffer_store_dwordx2 v[{pC}:{pC+1}], v{vNo}, s[{sD}:{sD+3}], 0 offen sc1")
        p(f"s_mov_b32 s{sE}, {WS_NON}")
        p(f"buffer_store_dwordx2 v[{pC}:{pC+1}], v{vNo}, s[{sWS}:{sWS+3}], s{sE} offen")
    def poll(r): return f"buffer_load_dwordx2 v[{r}:{r+1}], v{vPo}, s[{sD}:{sD+3}], 0 offen sc1"
    def xrow_loads():
        for j in range(5): p(f"buffer_load_dword v{xr+j}, v{vXo_}, s[{sX}:{sX+3}], s{sXr} offen offset:{256*j}")
    def dmaX(i):
        return [f"s_add_u32 m0, s{sMb}, {(i % 4)*16384}",
                f"buffer_load_dwordx4 v{vDX0}, s[{sX}:{sX+3}], s{sOX} offen lds",
                f"buffer_load_dwordx4 v{vDX1}, s[{sX}:{sX+3}], s{sOX} offen offset:1024 lds",
                f"s_add_u32 s{sOX}, s{sOX}, 128"]
    def dmaW(i):
        return [f"s_add_u32 m0, s{sMb}, {(4 + i % 4)*16384}",
                f"buffer_load_dwordx4 v{vDW}, s[{sWi}:{sWi+3}], s{sOW0} offen lds",
                f"buffer_load_dwordx4 v{vDW}, s[{sWi}:{sWi+3}], s{sOW1} offen offset:1024 lds",
                f"s_add_u32 s{sOW0}, s{sOW0}, {64*3456}", f"s_add_u32 s{sOW1}, s{sOW1}, {64*3456}"]
    P2SLOT = [2, 6, 3, 7, 0, 4, 1, 5, 2, 6]
    sOQ0 = S('oQ0'); sOQ1 = S('oQ1')
    def dmaQ(t):
        L = [f"s_add_u32 m0, s{sMb}, {P2SLOT[t]*16384}",
             f"buffer_load_dwordx4 v{vDQ}, s[{sWq}:{sWq+3}], s{sOQ0} offen lds",
             f"buffer_load_dwordx4 v{vDQ}, s[{sWq}:{sWq+3}], s{sOQ1} offen offset:1024 lds"]
        d = 128*3840 if t != 4 else 128 - 4*128*3840
        L += [f"s_add_u32 s{sOQ0}, s{sOQ0}, {hx(d)}", f"s_add_u32 s{sOQ1}, s{sOQ1}, {hx(d)}"]
        return L
    def dma_stage(i):
        for l in dmaX(i) + dmaW(i): p(l)
        p(f"@mark st{i}")
    def stat_loads():
        p(f"s_lshr_b32 s{sT0}, s{sw}, 1")
        p(f"s_lshl_b32 s{sT1}, s{sCg}, 1"); p(f"s_add_u32 s{sT1}, s{sT1}, s{sT0}"); p(f"s_sub_u32 s{sT1}, s{sT1}, 2")
        p(f"s_cmp_eq_u32 s{sT0}, 0"); p(f"s_cselect_b32 s{sT1}, s{sLA}, s{sT1}")
        p(f"s_cmp_eq_u32 s{sT0}, 1"); p(f"s_cselect_b32 s{sT1}, s{sLB}, s{sT1}")
        p(f"s_lshl_b32 s{sT1}, s{sT1}, 7"); p(f"s_and_b32 s{sE}, s{sw}, 1"); p(f"s_lshl_b32 s{sE}, s{sE}, 6"); p(f"s_add_u32 s{sT1}, s{sT1}, s{sE}")
        p(f"s_mov_b32 s{sE}, 3840"); p(f"s_cmp_lt_u32 s{sT0}, 2"); p(f"s_cselect_b32 s{sSt}, 3456, s{sE}")
        p(f"s_mul_i32 s{sE}, s{sRb}, 40"); p(f"s_mul_i32 s{sE}, s{sE}, s{sSt}"); p(f"s_add_u32 s{sCG}, s{sT1}, s{sE}")
        p(f"v_lshrrev_b32 v{vPo_}, 3, v{vL}"); p(f"v_mul_lo_u32 v{vPo_}, v{vPo_}, s{sSt}"); p(f"v_and_b32 v{T}, 7, v{vL}"); p(f"v_lshlrev_b32 v{T}, 3, v{T}"); p(f"v_add_u32 v{vPo_}, v{vPo_}, v{T}")
        xrow_loads()
        p(f"s_cmp_lt_u32 s{sw}, 4")
        for k in range(3): p(f"s_cselect_b32 s{sP+k}, s{sWi+k}, s{sWq+k}")
        p(f"s_mov_b32 s{sP+3}, {SRD3}")
        p(f"s_lshl_b32 s{sSt}, s{sSt}, 3")
        for i in range(5):
            p(f"buffer_load_dwordx2 v[{wl+2*i}:{wl+2*i+1}], v{vPo_}, s[{sP}:{sP+3}], s{sCG} offen")
            if i < 4: p(f"s_add_u32 s{sCG}, s{sCG}, s{sSt}")
        p(f"s_lshl_b32 s{sCG}, s{sCg}, 3"); p(f"s_add_u32 s{sCG}, s{sCG}, s{sw}"); p(f"s_lshl_b32 s{sCG}, s{sCG}, 12"); p(f"s_add_u32 s{sCG}, s{sCG}, {WS_CG}")
    sZG = S('zg'); sZG2 = S('zg2'); sZm = S('zm')
    def setupA():
        p(f"v_and_b32 v{vA}, 31, v{vL}"); p(f"v_lshrrev_b32 v{vB}, 1, v{vA}"); p(f"v_and_b32 v{vB}, 7, v{vB}"); p(f"v_lshrrev_b32 v{T}, 5, v{vL}")
        p(f"v_xor_b32 v{vB}, v{vB}, v{T}"); p(f"v_lshlrev_b32 v{vB}, 4, v{vB}"); p(f"v_lshlrev_b32 v{vA}, 7, v{vA}"); p(f"v_add_u32 v{vA}, v{vA}, v{vB}")
        p(f"s_lshl_b32 s{sT0}, s{sRg}, 12"); p(f"v_add_u32 v{vXa[0]}, s{sT0}, v{vA}")
        for j in range(1, 4): p(f"v_xor_b32 v{vXa[j]}, {j << 5}, v{vXa[0]}")
        p(f"v_lshrrev_b32 v{vA}, 5, v{vL}"); p(f"v_lshlrev_b32 v{vA}, 3, v{vA}"); p(f"v_bfe_u32 v{vB}, v{vL}, 2, 2"); p(f"v_add_u32 v{vA}, v{vA}, v{vB}"); p(f"v_lshlrev_b32 v{vA}, 7, v{vA}")
        p(f"v_lshrrev_b32 v{vB}, 1, v{vB}"); p(f"v_lshlrev_b32 v{vB}, 6, v{vB}")
        p(f"v_bfe_u32 v{T}, v{vL}, 4, 1"); p(f"v_lshlrev_b32 v{T}, 5, v{T}"); p(f"v_and_b32 v{T+1}, 3, v{vL}"); p(f"v_lshlrev_b32 v{T+1}, 3, v{T+1}"); p(f"v_add_u32 v{T}, v{T}, v{T+1}")
        p(f"s_lshl_b32 s{sT0}, s{sCh}, 6"); p(f"v_add_u32 v{T}, s{sT0}, v{T}"); p(f"v_xor_b32 v{T}, v{T}, v{vB}"); p(f"v_add_u32 v{vW}, v{vA}, v{T}")
        p(f"v_add_u32 v{vW2}, 0x10000, v{vW}")
    def setupB():
        p(f"s_lshl_b32 s{sT0}, s{sRb}, 7"); p(f"s_lshl_b32 s{sT1}, s{sRg}, 5"); p(f"s_add_u32 s{sRow0}, s{sT0}, s{sT1}")
        p(f"s_mul_i32 s{sOQ0}, s{sw}, {16*3840}"); p(f"s_lshl_b32 s{sT0}, s{sCg}, 8"); p(f"s_add_u32 s{sOQ0}, s{sOQ0}, s{sT0}"); p(f"s_add_u32 s{sOQ1}, s{sOQ0}, {8*3840 - 1024}")
        p(f"v_lshrrev_b32 v{vA}, 5, v{vL}"); p(f"v_lshlrev_b32 v{vA}, 4, v{vA}"); p(f"s_lshl_b32 s{sT0}, s{sCh}, 7"); p(f"s_add_u32 s{sT0}, s{sT0}, {TBL}"); p(f"v_add_u32 v{vCs}, s{sT0}, v{vA}")
        p(f"s_mov_b32 s{sC1}, {hx(f2u(C1))}"); p(f"v_mov_b32 v{vC2}, {hx(f2u(C2))}")
        p(f"s_lshl_b32 s{sT0}, s{sCg}, 1"); p(f"s_add_u32 s{sT0}, s{sT0}, s{sCh}")
        p(f"s_cmp_le_u32 s{sT0}, 26"); p(f"s_cselect_b32 s{sV1}, 0, {hx(OOB)}")
        p(f"s_cmp_le_u32 s{sT0}, 25"); p(f"s_cselect_b32 s{sV2}, 0, {hx(OOB)}"); p(f"s_cmp_eq_u32 s{sT0}, 27"); p(f"s_cselect_b32 s{sV2}, 0, s{sV2}")
        p(f"s_lshl_b32 s{sT0}, s{sLA}, 1"); p(f"s_add_u32 s{sT0}, s{sT0}, s{sCh}"); p(f"s_lshl_b32 s{sT0}, s{sT0}, 10")
        p(f"s_lshr_b32 s{sT1}, s{sRow0}, 4"); p(f"s_mul_i32 s{sT1}, s{sT1}, {54*512}"); p(f"s_add_u32 s{sT0}, s{sT0}, s{sT1}"); p(f"s_or_b32 s{sT0}, s{sT0}, s{sV1}")
        p(f"v_bfe_u32 v{vA}, v{vL}, 4, 1"); p(f"v_mul_u32_u24 v{vA}, {54*512}, v{vA}"); p(f"v_lshrrev_b32 v{vB}, 5, v{vL}"); p(f"v_lshlrev_b32 v{vB}, 8, v{vB}"); p(f"v_add_u32 v{vA}, v{vA}, v{vB}")
        p(f"v_and_b32 v{vB}, 15, v{vL}"); p(f"v_lshlrev_b32 v{vB}, 4, v{vB}"); p(f"v_add_u32 v{vA}, v{vA}, v{vB}"); p(f"v_add_u32 v{vZ1}, s{sT0}, v{vA}")
    def setupC():
        p(f"s_lshl_b32 s{sJ}, s{sLB}, 1"); p(f"s_add_u32 s{sJ}, s{sJ}, s{sCh}"); p(f"s_sub_u32 s{sJ}, s{sJ}, 27"); p(f"s_max_i32 s{sJ}, s{sJ}, 0")
        p(f"s_lshr_b32 s{sT1}, s{sRow0}, 5"); p(f"s_mul_i32 s{sZ2o}, s{sT1}, {54*1024}"); p(f"s_lshl_b32 s{sT0}, s{sJ}, 11"); p(f"s_add_u32 s{sZ2o}, s{sZ2o}, s{sT0}")
        p(f"s_add_u32 s{sZ2o}, s{sZ2o}, {WS_Z2N if a2a else WS_Z2R}")
        if a2a:
            p(f"s_lshl_b32 s{sT0}, s{sRb}, 2"); p(f"s_add_u32 s{sT0}, s{sT0}, s{sRg}"); p(f"s_mul_i32 s{sT0}, s{sT0}, 7168"); p(f"s_add_u32 s{sZG}, s{sT0}, {WS_ZG}")
            p(f"s_add_u32 s{sZG2}, s{sZG}, 4096")
            p(f"s_cmp_lt_u32 s{sCg}, 14"); p(f"s_cselect_b32 s{sT0}, 0, {hx(OOB)}"); p(f"s_cmp_eq_u32 s{sCh}, 0"); p(f"s_cselect_b32 s{sT0}, s{sT0}, {hx(OOB)}")
            p(f"s_min_u32 s{sT1}, s{sCg}, 13"); p(f"s_lshl_b32 s{sT1}, s{sT1}, 9"); p(f"s_or_b32 s{sT0}, s{sT0}, s{sT1}")
            p(f"v_lshlrev_b32 v{vA}, 4, v{vL}"); p(f"v_lshrrev_b32 v{vB}, 5, v{vL}"); p(f"v_lshlrev_b32 v{vB}, 31, v{vB}"); p(f"v_or_b32 v{vA}, v{vA}, v{vB}")
            p(f"v_or_b32 v{vZs}, s{sT0}, v{vA}")
            p(f"s_cmp_eq_u32 s{sV2}, 0"); p(f"s_cselect_b32 s{sZm}, -1, 0")
            p(f"s_lshl_b32 s{sT0}, s{sw}, 8"); p(f"s_add_u32 s{sT0}, s{sT0}, {ZT}")
            p(f"v_and_b32 v{vA}, 31, v{vL}"); p(f"v_lshlrev_b32 v{vA}, 3, v{vA}"); p(f"v_add_u32 v{vZt}, s{sT0}, v{vA}")
        if not a2a:
            p(f"s_mul_i32 s{sT1}, s{sT1}, 27"); p(f"s_add_u32 s{sT1}, s{sT1}, s{sJ}"); p(f"s_lshl_b32 s{sT1}, s{sT1}, 8"); p(f"s_or_b32 s{sT1}, s{sT1}, s{sV2}")
            p(f"v_lshlrev_b32 v{vA}, 3, v{vL}"); p(f"v_lshrrev_b32 v{vB}, 5, v{vL}"); p(f"v_lshlrev_b32 v{vB}, 31, v{vB}"); p(f"v_or_b32 v{vA}, v{vA}, v{vB}"); p(f"v_or_b32 v{vA}, s{sV2}, v{vA}")
            p(f"s_and_b32 s{sT1}, s{sT1}, 0x7fffffff"); p(f"v_add_u32 v{vZs}, s{sT1}, v{vA}")
        p(f"v_and_b32 v{vA}, 31, v{vL}"); p(f"v_bfe_u32 v{vB}, v{vL}, 1, 2"); p(f"v_lshlrev_b32 v{vB}, 4, v{vB}"); p(f"v_lshlrev_b32 v{vA}, 6, v{vA}"); p(f"v_add_u32 v{vA}, v{vA}, v{vB}")
        p(f"v_lshrrev_b32 v{vB}, 5, v{vL}"); p(f"v_lshlrev_b32 v{vB}, 3, v{vB}"); p(f"v_add_u32 v{vA}, v{vA}, v{vB}")
        p(f"s_lshl_b32 s{sT0}, s{sw}, 11"); p(f"s_add_u32 s{sT0}, s{sT0}, {STG}"); p(f"v_add_u32 v{vSw}, s{sT0}, v{vA}")
        p(f"v_lshrrev_b32 v{vA}, 4, v{vL}"); p(f"v_lshlrev_b32 v{vA}, 3, v{vA}"); p(f"v_bfe_u32 v{vB}, v{vL}, 2, 2"); p(f"v_add_u32 v{vA}, v{vA}, v{vB}"); p(f"v_lshlrev_b32 v{vA}, 6, v{vA}")
        p(f"v_lshrrev_b32 v{vB}, 1, v{vB}"); p(f"v_bfe_u32 v{T}, v{vL}, 1, 1"); p(f"v_xor_b32 v{vB}, v{vB}, v{T}"); p(f"v_lshlrev_b32 v{vB}, 4, v{vB}"); p(f"v_add_u32 v{vA}, v{vA}, v{vB}")
        p(f"v_and_b32 v{vB}, 1, v{vL}"); p(f"v_lshlrev_b32 v{vB}, 3, v{vB}"); p(f"v_add_u32 v{vA}, v{vA}, v{vB}"); p(f"v_add_u32 v{vSr}, s{sT0}, v{vA}")
        p(f"v_lshrrev_b32 v{vA}, 5, v{vL}"); p(f"s_lshl_b32 s{sT0}, s{sCh}, 3"); p(f"v_add_u32 v{vA}, s{sT0}, v{vA}"); p(f"v_lshlrev_b32 v{vA}, 14, v{vA}")
        p(f"v_and_b32 v{vB}, 31, v{vL}"); p(f"v_add_u32 v{vB}, s{sRow0}, v{vB}"); p(f"v_lshlrev_b32 v{vB}, 3, v{vB}"); p(f"v_add_u32 v{vQo}, v{vA}, v{vB}")
        p(f"s_lshl_b32 s{sQo}, s{sCg}, 19"); p(f"s_add_u32 s{sQo}, s{sQo}, {WS_QKV}")
        p(f"s_mov_b32 s{sWSo}, {WS_Z1P}")
        p(f"s_mov_b32 s{sZso}, {WS_ZST}")
    p("@auto on")
    nonce_store()
    p(poll(pA))
    dma_stage(0)
    setupA()
    dma_stage(1)
    if statpos == 2: stat_loads()
    setupB()
    if npro >= 3: dma_stage(2)
    if statpos == 3: stat_loads()
    setupC()
    if npro >= 4: dma_stage(3)
    if statpos == 4: stat_loads()
    p(poll(pB))
    st('dma')
    def nonce_bcast():
        p(f"v_or_b32 v{pA}, v{pA}, v{pB}"); p(f"v_or_b32 v{pA+1}, v{pA+1}, v{pB+1}")
        if nonb > 0:
            p(f"v_or_b32 v{pA}, v{pA}, v{pC}"); p(f"v_or_b32 v{pA+1}, v{pA+1}, v{pC+1}")
        p(f"v_readfirstlane_b32 s{sN}, v{pA}"); p(f"v_readfirstlane_b32 s{sN+1}, v{pA+1}")
        p(f"s_cmp_lg_u32 s{sw}, 0"); p(f"s_cbranch_scc1 {tag}_nonw")
        p(f"s_cmp_eq_u32 s{sN}, 0"); p(f"s_cbranch_scc1 {tag}_nspin")
        p(f"{tag}_nok:")
        p(f"v_mov_b32 v{pA}, s{sN}"); p(f"v_mov_b32 v{pA+1}, s{sN+1}"); p(f"v_mov_b32 v{pB}, {NONL}")
        p(f"@raw ds_write_b64 v{pB}, v[{pA}:{pA+1}]")
        p(f"{tag}_nonw:")

    def wbase(slot): return (vW2 if slot >= 4 else vW), (slot % 4)*16384
    def rd1(n):
        i, j = divmod(n, 4)
        L = [f"ds_read_b128 v[{X+4*n}:{X+4*n+3}], v{vXa[j]} offset:{(i % 4)*16384}"]
        vb, o = wbase(4 + i % 4)
        for blk in range(2):
            f = WF + (n & 1)*8 + blk*4
            for rd in range(2):
                L.append(f"ds_read_b64_tr_b16 v[{f+2*rd}:{f+2*rd+1}], v{vb} offset:{o + blk*8192 + j*2048 + rd*512}")
        return L
    def mf1(n):
        L = []
        for blk, acc in enumerate((AZ1, AZ2)):
            f = WF + (n & 1)*8 + blk*4
            c = "0" if n == 0 else f"v[{acc}:{acc+15}]"
            L.append(f"v_mfma_f32_32x32x16_bf16 v[{acc}:{acc+15}], v[{f}:{f+3}], v[{X+4*n}:{X+4*n+3}], {c}")
        return L
    def rd2(m):
        t, j = divmod(m, 8)
        vb, o = wbase(P2SLOT[t])
        f = WF + (m % (la2 + 1))*4
        return [f"ds_read_b64_tr_b16 v[{f+2*rd}:{f+2*rd+1}], v{vb} offset:{o + j*2048 + rd*512}" for rd in range(2)]
    def mf2(m):
        acc = AQ if m < 40 else AZ1
        n = m % 40
        f = WF + (m % (la2 + 1))*4
        c = "0" if n == 0 else f"v[{acc}:{acc+15}]"
        return f"v_mfma_f32_32x32x16_bf16 v[{acc}:{acc+15}], v[{f}:{f+3}], v[{X+4*n}:{X+4*n+3}], {c}"
    def boundary(n_stage):
        if n_stage == nonb: nonce_bcast()
        if lessbar and n_stage >= 10:
            tab = {10: (10, True), 11: (11, True), 12: (14, True), 15: (19, False)}
            if n_stage not in tab: return []
            p(f"@waitvm st{tab[n_stage][0]}")
            if tab[n_stage][1]: p("s_waitcnt lgkmcnt(0)")
        else:
            p(f"@waitvm st{n_stage}")
            p("s_waitcnt lgkmcnt(0)")
        p("s_barrier")
        D = []
        n = n_stage
        if n == 0:
            D = [(dmaX(i) + dmaW(i), f"st{i}") for i in range(npro, 4)]
            if nonb > 0: D.append(([poll(pC)], "pc"))
        elif 1 <= n <= 6: D = [(dmaX(n+3) + dmaW(n+3), f"st{n+3}")]
        elif n == 7: D = [(dmaQ(0), "st10"), (dmaQ(1), "st11")]
        elif n == 8: D = [(dmaQ(2), "st12"), (dmaQ(3), "st13")]
        elif n == 9: D = [(dmaQ(4), "st14"), (dmaQ(5), "st15")]
        elif n == 10: D = [(dmaQ(6), "st16"), (dmaQ(7), "st17")]
        elif n == 11: D = [(dmaQ(8), "st18")]
        elif n == 12: D = [(dmaQ(9), "st19")]
        out = []
        for L, mk in D: out += L + [f"@mark {mk}"]
        return out
    def g_pub():
        L1 = xstats_ops(xr, vD_, vE_, vQ_, XP)
        L = []
        tt = [T, T+1, T+2, T+3]; o1 = T + 4; o2 = T + 5
        for i in range(5):
            for c in range(4):
                src = wl + 2*i + c//2
                dst = ca + c if i == 0 else tt[c]
                L.append(f"v_lshlrev_b32 v{dst}, 16, v{src}" if c % 2 == 0 else f"v_and_b32 v{dst}, 0xffff0000, v{src}")
            if i:
                for c in range(4): L.append(f"v_add_f32 v{ca+c}, v{ca+c}, v{tt[c]}")
        L += [f"v_permlane32_swap_b32 v{ca}, v{ca+2}", f"v_and_b32 v{o1}, 7, v{vL}", f"v_permlane32_swap_b32 v{ca+1}, v{ca+3}", f"v_lshlrev_b32 v{o1}, 5, v{o1}",
              f"v_add_f32 v{CP}, v{ca}, v{ca+2}", f"v_add_f32 v{CP+1}, v{ca+1}, v{ca+3}",
              f"v_lshrrev_b32 v{o2}, 5, v{vL}",
              f"v_mov_b32 v{ca}, v{CP}", f"v_mov_b32 v{ca+1}, v{CP+1}",
              f"v_lshlrev_b32 v{o2}, 4, v{o2}", f"v_add_u32 v{o1}, v{o1}, v{o2}",
              f"v_permlane16_swap_b32 v{CP}, v{ca}", f"v_permlane16_swap_b32 v{CP+1}, v{ca+1}",
              f"v_and_b32 v{o2}, 0x18, v{vL}",
              f"v_add_f32 v{CP}, v{CP}, v{ca}", f"v_add_f32 v{CP+1}, v{CP+1}, v{ca+1}",
              f"v_min_u32 v{o2}, 1, v{o2}", f"v_lshlrev_b32 v{o2}, 31, v{o2}",
              f"v_add_f32_dpp v{CP}, v{CP}, v{CP} row_ror:8 row_mask:0xf bank_mask:0xf", f"v_add_f32_dpp v{CP+1}, v{CP+1}, v{CP+1} row_ror:8 row_mask:0xf bank_mask:0xf",
              f"v_or_b32 v{o1}, v{o1}, v{o2}"]
        M = []
        while L1 or L:
            if L1: M.append(L1.pop(0))
            if L: M.append(L.pop(0))
        M += ["#NON",
              f"v_mov_b32 v{T+6}, {NONL}", f"ds_read_b64 v[{XP+2}:{XP+3}], v{T+6}",
              f"s_lshl_b32 s{sT0}, s{sRb}, 8", f"s_add_u32 s{sT0}, s{sT0}, s{sCG}",
              f"v_mov_b32 v{CP+2}, v{XP+2}", f"v_mov_b32 v{CP+3}, v{XP+3}",
              f"buffer_store_dwordx4 v[{XP}:{XP+3}], v{vL0}, s[{sWS}:{sWS+3}], s{sXG} offen sc1",
              f"buffer_store_dwordx4 v[{CP}:{CP+3}], v{o1}, s[{sWS}:{sWS+3}], s{sT0} offen sc1",
              f"v_readfirstlane_b32 s{sN}, v{XP+2}", f"v_readfirstlane_b32 s{sN+1}, v{XP+3}"]
        return M
    def gather_loads():
        L = [f"buffer_load_dwordx4 v[{GX}:{GX+3}], v{vA}, s[{sWS}:{sWS+3}], s{sXG} offen sc1"]
        for i in range(4): L.append(f"buffer_load_dwordx4 v[{GC[i]}:{GC[i]+3}], v{vB}, s[{sWS}:{sWS+3}], s{sCG} offen offset:{1024*i} sc1")
        return L
    def g_gat():
        return [f"v_and_b32 v{vA}, 31, v{vL}", f"v_lshlrev_b32 v{vA}, 4, v{vA}", f"v_lshlrev_b32 v{vB}, 4, v{vL}",
                f"s_lshl_b32 s{sXG}, s{sRow0}, 4", f"s_add_u32 s{sXG}, s{sXG}, {WS_XG}"] + gather_loads()
    def chk_ops(regs, first=True):
        L = []
        for k, r in enumerate(regs):
            L.append(f"v_cmp_ne_u64 vcc, s[{sN}:{sN+1}], v[{r+2}:{r+3}]")
            L.append(f"s_mov_b64 s[{sE}:{sE+1}], vcc" if k == 0 else f"s_or_b64 s[{sE}:{sE+1}], s[{sE}:{sE+1}], vcc")
        L.append(f"s_cmp_lg_u64 s[{sE}:{sE+1}], 0")
        return L
    def g_con():
        L = chk_ops([GX] + GC) + [f"s_cbranch_scc1 {tag}_gspin", f"{tag}_gok:",
             f"v_mov_b32 v{vSt}, v{GX}", f"v_mov_b32 v{vSt+1}, v{GX+1}",
             f"v_add_f32 v{T}, v{T}, v{T+4}", f"v_add_f32 v{T+1}, v{T+1}, v{T+5}",
             f"v_add_f32 v{AQ+8}, v{AQ+8}, v{AQ+12}", f"v_add_f32 v{AQ+9}, v{AQ+9}, v{AQ+13}",
             f"v_add_f32 v{T}, v{T}, v{AQ+8}", f"v_add_f32 v{T+1}, v{T+1}, v{AQ+9}",
             f"v_and_b32 v{vA}, 15, v{vL}", f"v_lshlrev_b32 v{vA}, 3, v{vA}", f"v_bfe_u32 v{vB}, v{vL}, 4, 1",
             f"v_permlane16_swap_b32 v{T}, v{T+1}",
             f"v_lshl_add_u32 v{vA}, v{vB}, 2, v{vA}", f"s_lshl_b32 s{sT0}, s{sw}, 7", f"s_add_u32 s{sT0}, s{sT0}, {TBL}",
             f"v_add_f32 v{T}, v{T}, v{T+1}", f"v_add_u32 v{vA}, s{sT0}, v{vA}",
             f"v_mov_b32 v{T+1}, v{T}", f"v_permlane32_swap_b32 v{T}, v{T+1}", f"v_add_f32 v{T}, v{T}, v{T+1}",
             f"ds_write_b32 v{vA}, v{T}"]
        return L
    rstd, nm = vSt, vSt + 1
    def norm_ops(acc, seg, rp, t, scale=True):
        L = []
        for c in range(4): L.append(f"v_fma_f32 v{acc+4*rp+c}, v{t+c}, v{nm}, v{acc+4*rp+c}")
        if scale:
            for c in range(4): L.append(f"v_mul_f32 v{acc+4*rp+c}, v{acc+4*rp+c}, v{rstd}")
        return L
    def csread(seg, rp, t): return f"ds_read_b128 v[{t}:{t+3}], v{vCs} offset:{seg*256 + rp*32}"
    def e_z1():
        L = [csread(0, 0, T), csread(0, 1, T+4)]
        for rp in range(4):
            t = T + 4*(rp & 1)
            L += norm_ops(AZ1, 0, rp, t)
            if rp < 2: L.append(csread(0, rp+2, t))
            d = AZ1 + (0 if rp < 2 else 8) + 2*(rp & 1)
            L.append(f"v_cvt_pk_bf16_f32 v{d}, v{AZ1+4*rp}, v{AZ1+4*rp+1}"); L.append(f"v_cvt_pk_bf16_f32 v{d+1}, v{AZ1+4*rp+2}, v{AZ1+4*rp+3}")
            if rp & 1:
                b = AZ1 + (0 if rp < 2 else 8)
                L.append(f"buffer_store_dwordx4 v[{b}:{b+3}], v{vZ1}, s[{sWS}:{sWS+3}], s{sWSo} offen offset:{512*(rp >> 1)} {sc}")
        return L
    vSum = vA; vSq = vB
    def e_z2():
        L = [csread(1, 0, T)]
        g = T + 4
        for rp in range(4):
            L += norm_ops(AZ2, 1, rp, T)
            if rp < 3: L.append(csread(1, rp+1, T))
            a = AZ2 + 4*rp
            steps = [gelu_ops(a+c, g+c, sC1, vC2) for c in range(4)]
            for k in range(7):
                for c in range(4): L.append(steps[c][k])
            for c in range(4):
                if rp == 0 and c == 0:
                    L.append(f"v_mov_b32 v{vSum}, v{a}"); L.append(f"v_mul_f32 v{vSq}, v{a}, v{a}")
                else:
                    L.append(f"v_add_f32 v{vSum}, v{vSum}, v{a+c}"); L.append(f"v_fmac_f32 v{vSq}, v{a+c}, v{a+c}")
            d = AZ2 + 2*rp
            L.append(f"v_cvt_pk_bf16_f32 v{d}, v{a}, v{a+1}"); L.append(f"v_cvt_pk_bf16_f32 v{d+1}, v{a+2}, v{a+3}")
            if rp == 0: L.append(f"ds_write_b64 v{vSw}, v[{d}:{d+1}]")
            else:
                L.append(f"v_xor_b32 v{g}, {rp << 4}, v{vSw}"); L.append(f"ds_write_b64 v{g}, v[{d}:{d+1}]")
        L += [f"v_mov_b32 v{T}, v{vSum}", f"v_mov_b32 v{T+1}, v{vSq}", f"v_permlane32_swap_b32 v{vSum}, v{T}", f"v_permlane32_swap_b32 v{vSq}, v{T+1}",
              f"v_add_f32 v{T+2}, v{vSum}, v{T}", f"v_add_f32 v{T+3}, v{vSq}, v{T+1}",
              f"buffer_store_dwordx2 v[{T+2}:{T+3}], v{vZs}, s[{sWS}:{sWS+3}], s{sZso} offen {sc}"]
        for u in range(2):
            d = AZ2 + 8 + 4*u
            for rd in range(2):
                L.append(f"ds_read_b64_tr_b16 v[{d+2*rd}:{d+2*rd+1}], v{vSr} offset:{rd*256 + (u ^ rd)*32}")
        L.append(f"v_lshlrev_b32 v{T+4}, 4, v{vL}"); L.append(f"v_or_b32 v{T+4}, s{sV2}, v{T+4}")
        for u in range(2):
            d = AZ2 + 8 + 4*u
            L.append(f"buffer_store_dwordx4 v[{d}:{d+3}], v{T+4}, s[{sWS}:{sWS+3}], s{sZ2o} offen offset:{1024*u} {sc}")
        return L
    GP = WF + 12
    def gelu_r(x, t):
        return [f"v_mul_f32 v{t}, v{x}, v{x}", f"v_fma_f32 v{t}, v{t}, v{vC2}, v{vCA}", f"v_mul_f32 v{t}, v{x}, v{t}", f"v_exp_f32 v{t}, v{t}",
                f"v_add_f32 v{t}, 1.0, v{t}", f"v_rcp_f32 v{t}, v{t}", f"v_mul_f32 v{x}, v{x}, v{t}"]
    def e_z2a(z1pre):
        g = T + 4
        L = [csread(1, 0, T), f"v_mul_f32 v{g}, v{rstd}, v{rstd}", f"v_mul_f32 v{vCA}, s{sC1}, v{rstd}", f"v_mul_f32 v{g}, v{g}, v{rstd}", f"v_mul_f32 v{vC2}, v{vC2}, v{g}", "#NEXT"]
        for rp in range(4):
            L += norm_ops(AZ2, 1, rp, T, scale=False)
            if rp < 3: L.append(csread(1, rp+1, T))
            a = AZ2 + 4*rp
            steps = [gelu_r(a+c, g+c) for c in range(4)]
            for k in range(7):
                for c in range(4): L.append(steps[c][k])
            if rp == 3: L += z1pre
            for c in range(4):
                if rp == 0 and c == 0:
                    L.append(f"v_mov_b32 v{vSum}, v{a}"); L.append(f"v_mul_f32 v{vSq}, v{a}, v{a}")
                else:
                    L.append(f"v_add_f32 v{vSum}, v{vSum}, v{a+c}"); L.append(f"v_fmac_f32 v{vSq}, v{a+c}, v{a+c}")
        L += [f"v_mul_f32 v{vSq}, v{vSq}, v{rstd}", f"v_mul_f32 v{vSum}, v{vSum}, v{rstd}", f"v_mul_f32 v{vSq}, v{vSq}, v{rstd}",
              f"v_mov_b32 v{GP}, v{vSum}", f"v_mov_b32 v{GP+1}, v{vSq}", f"v_mov_b32 v{GP+2}, s{sN}", f"v_permlane32_swap_b32 v{vSum}, v{GP}", f"v_permlane32_swap_b32 v{vSq}, v{GP+1}",
              f"v_mov_b32 v{GP+3}, s{sN+1}", f"v_add_f32 v{vSum}, v{vSum}, v{GP}", f"v_add_f32 v{vSq}, v{vSq}, v{GP+1}",
              f"v_and_b32 v{vSum}, s{sZm}, v{vSum}", f"v_and_b32 v{vSq}, s{sZm}, v{vSq}",
              f"ds_write_b64 v{vZt}, v[{vSum}:{vSum+1}]", "@mark zw", f"v_xor_b32 v{vZt}, 1024, v{vZt}"]
        return L
    def e_pub2a(): return ["#BAR", f"ds_read_b64 v[{GP}:{GP+1}], v{vZt}"]
    def e_pub2b():
        return [f"v_add_f32 v{GP}, v{GP}, v{vSum}", f"v_add_f32 v{GP+1}, v{GP+1}, v{vSq}",
                f"buffer_store_dwordx4 v[{GP}:{GP+3}], v{vZs}, s[{sWS}:{sWS+3}], s{sZG} offen sc1", "#ST zpub"]
    ZGR = [X + 4*i for i in range(7)]; vGo = X + 28
    def zg_loads():
        return [f"buffer_load_dwordx4 v[{ZGR[i]}:{ZGR[i]+3}], v{vGo}, s[{sWS}:{sWS+3}], s{sZG if i < 4 else sZG2} offen offset:{(i % 4)*1024} sc1" for i in range(7)]
    def zg_chk():
        L = [f"v_cmp_ne_u64 s[{sCk+2*i}:{sCk+2*i+1}], s[{sN}:{sN+1}], v[{ZGR[i]+2}:{ZGR[i]+3}]" for i in range(7)]
        return L
    def zg_chk2():
        L = [f"s_or_b64 s[{sCk}:{sCk+1}], s[{sCk}:{sCk+1}], s[{sCk+2*i}:{sCk+2*i+1}]" for i in range(1, 7)]
        L.append(f"s_cmp_lg_u64 s[{sCk}:{sCk+1}], 0")
        return L
    def e_z2n():
        x = X
        L = ["#ST zc0"] + zg_chk() + ["#ST zc1", "#GRP"] + zg_chk2() + [f"s_cbranch_scc1 {tag}_zspin", f"{tag}_zok:", "#END", "#ST zok"]
        L += [f"v_add_f32 v{x}, v{x}, v{x+4}", f"v_add_f32 v{x+1}, v{x+1}, v{x+5}", f"v_add_f32 v{x+8}, v{x+8}, v{x+12}", f"v_add_f32 v{x+9}, v{x+9}, v{x+13}",
              f"v_add_f32 v{x+16}, v{x+16}, v{x+20}", f"v_add_f32 v{x+17}, v{x+17}, v{x+21}", f"v_add_f32 v{x}, v{x}, v{x+8}", f"v_add_f32 v{x+1}, v{x+1}, v{x+9}",
              f"v_add_f32 v{x+16}, v{x+16}, v{x+24}", f"v_add_f32 v{x+17}, v{x+17}, v{x+25}", f"v_add_f32 v{x}, v{x}, v{x+16}", f"v_add_f32 v{x+1}, v{x+1}, v{x+17}",
              f"v_mov_b32 v{x+2}, v{x}", f"v_mov_b32 v{x+3}, v{x+1}", f"v_mov_b32 v{x+4}, {hx(f2u(1e-5))}",
              f"v_permlane32_swap_b32 v{x}, v{x+2}", f"v_permlane32_swap_b32 v{x+1}, v{x+3}",
              f"v_add_f32 v{x}, v{x}, v{x+2}", f"v_add_f32 v{x+1}, v{x+1}, v{x+3}",
              f"v_mul_f32 v{x}, {hx(f2u(1/864))}, v{x}", f"v_mul_f32 v{x+1}, {hx(f2u(1/864))}, v{x+1}",
              f"v_fma_f32 v{x+1}, -v{x}, v{x}, v{x+1}", f"v_max_f32 v{x+1}, 0, v{x+1}", f"v_add_f32 v{x+1}, v{x+4}, v{x+1}", f"v_rsq_f32 v{x+1}, v{x+1}",
              f"v_lshlrev_b32 v{x+5}, 4, v{vL}", f"v_or_b32 v{x+5}, s{sV2}, v{x+5}",
              f"v_mul_f32 v{x}, v{x}, v{x+1}", f"v_mul_f32 v{x+1}, v{x+1}, v{rstd}"]
        for rp in range(4):
            a = AZ2 + 4*rp; d = AZ2 + 2*rp
            for c in range(4): L.append(f"v_fma_f32 v{a+c}, v{a+c}, v{x+1}, -v{x}")
            L.append(f"v_cvt_pk_bf16_f32 v{d}, v{a}, v{a+1}"); L.append(f"v_cvt_pk_bf16_f32 v{d+1}, v{a+2}, v{a+3}")
            if rp == 0: L.append(f"ds_write_b64 v{vSw}, v[{d}:{d+1}]")
            else:
                L.append(f"v_xor_b32 v{x+6}, {rp << 4}, v{vSw}"); L.append(f"ds_write_b64 v{x+6}, v[{d}:{d+1}]")
        for u in range(2):
            d = AZ2 + 8 + 4*u
            for rd in range(2):
                L.append(f"ds_read_b64_tr_b16 v[{d+2*rd}:{d+2*rd+1}], v{vSr} offset:{rd*256 + (u ^ rd)*32}")
        L += ["#NEXT", "#NEXT"]
        for u in range(2):
            d = AZ2 + 8 + 4*u
            L.append(f"buffer_store_dwordx4 v[{d}:{d+3}], v{x+5}, s[{sWS}:{sWS+3}], s{sZ2o} offen offset:{1024*u} {sc}")
        return L
    def e_q(acc, seg, defer=False):
        L = [csread(seg, 0, T), csread(seg, 1, T+4)]; St = []
        if defer: L.append("#NEXT")
        for rp in range(4):
            t = T + 4*(rp & 1)
            L += norm_ops(acc, seg, rp, t)
            if rp < 2: L.append(csread(seg, rp+2, t))
            d = acc + 4*rp
            L.append(f"v_cvt_pk_bf16_f32 v{d}, v{d}, v{d+1}"); L.append(f"v_cvt_pk_bf16_f32 v{d+1}, v{d+2}, v{d+3}")
            for l in (f"buffer_store_dwordx2 v[{d}:{d+1}], v{vQo}, s[{sWS}:{sWS+3}], s{sQo} offen {sc}",
                      f"s_add_u32 s{sQo}, s{sQo}, {32768 if rp < 3 else 16*16384 - 3*32768}"): (St if defer else L).append(l)
        return (L, St) if defer else L
    st('pre0')
    dq = boundary(0)
    for l in rd1(0): p(l)
    st('bar0')
    G = g_pub(); G2 = g_gat(); G3 = g_con()
    cur = [0]
    def fill(src, lim):
        k = 0
        while src and k < lim:
            if src[0] == "#NON":
                if cur[0] < 4*nonb: return
                src.pop(0); continue
            l = src.pop(0); p(l)
            if not l.endswith(':'): k += 1
            if not src: st('pub') if src is G else None
    for n in range(40):
        cur[0] = n
        st(f'n{n}')
        if n + 1 < 40:
            if (n + 1) % 4 == 0: dq += boundary((n + 1)//4)
            for l in rd1(n + 1): p(l)
        else:
            assert not G and not G2 and not G3
            dq += boundary(10)
            for l in rd2(0) : p(l)
        if n == 26: assert not G
        if n == 39 and la2 == 3:
            for l in rd2(1): p(l)
        M = mf1(n)
        def fl(lim):
            if G:
                if n >= g0: fill(G, lim)
            elif n >= ng and G2: fill(G2, min(lim, 6) if not fpre else lim)
            elif n >= nc and not G2: fill(G3, 10 if not fpre else 20)
        if fpre: fl(nfill1)
        for h in range(2):
            p(M[h])
            k = 0
            while dq and k < 5:
                l = dq.pop(0); p(l)
                if not l.startswith('@'): k += 1
            if not fpre: fl(nfill1 if k == 0 else max(0, nfill1 - 3))
    st('pass1')
    if a2a:
        z1 = e_z1()
        F = e_z2a(z1[:2]) + z1[2:zbar] + e_pub2a() + z1[zbar:zbar+8] + e_pub2b() + z1[zbar+8:]
        F3 = [f"v_lshlrev_b32 v{vGo}, 4, v{vL}"] + zg_loads(); F4 = e_z2n()
        F2, F2s = e_q(AQ, 2, defer=True)
    else:
        F = (e_z2()*3 if dbgz2 else e_z1() + e_z2()); F3 = []; F4 = []
        F2 = e_q(AQ, 2)
    def emit_fill(src, lim):
        k = 0
        while src and k < lim:
            l = src.pop(0)
            if l == "#BAR":
                p("@waitlds zw"); p("s_barrier"); st('zbar'); continue
            if l == "#NEXT": return
            if l.startswith("#ST "):
                st(l[4:]); continue
            if l == "#GRP":
                while src[0] != "#END": p(src.pop(0))
                src.pop(0); k += 2; continue
            p(l)
            if not l.startswith('@'): k += 1
    for l in rd2(la2 - 1): p(l)
    for m in range(80):
        if m + la2 < 80:
            if (m + la2) % 8 == 0: dq += boundary(10 + (m + la2)//8)
            for l in rd2(m + la2): p(l)
        st(f'm{m}')
        p(mf2(m))
        k = 0
        while dq and k < 5:
            l = dq.pop(0); p(l)
            if not l.startswith('@'): k += 1
        if a2a:
            if m == 40: assert not F, f"z1 epilogue left: {len(F)}"
            if m >= 1 and m < 40: emit_fill(F, int(nf2a*m + 1e-9) - int(nf2a*(m-1) + 1e-9) - (dmapen if k else 0))
            else:
                kk = 0
                if m >= mg and F3: emit_fill(F3, 3 if len(F3) == 8 else 2); kk = 1
                elif m >= mg and not F3 and not F2 and F2s: emit_fill(F2s, 2); kk = 1
                if F2 and m >= 41: emit_fill(F2, (nf2q or nfill2) - kk)
                elif m >= mc and not F3: emit_fill(F4, nf3 - kk)
            continue
        src = F if (F or m < 42) else F2
        lim = (nf2a if (nf2a and m < 40) else nfill2) - (2 if k else 0)
        if m >= 1:
            for _ in range(lim):
                if src: p(src.pop(0))
    assert not dq
    st('pass2')
    if a2a:
        assert not F3
        while F2: emit_fill(F2, 1000)
        emit_fill(F2s, 1000)
        while F4: emit_fill(F4, 1000)
    for l in F + F2: p(l)
    for l in e_q(AZ1, 3): p(l)
    if prof:
        st('end')
        S.names['w'] = sw
        emit_prof_store(p, sWS, st.L, vA, T, S, region=3, wave=pw, tid=True)
    p("@auto off")
    p(f"s_branch {tag}_done")
    p(f"{tag}_nspin:")
    p(f"s_mov_b32 s{sSp}, {SPIN}")
    p(f"{tag}_nspin_l:")
    p("s_waitcnt vmcnt(0)")
    p(f"v_readfirstlane_b32 s{sN}, v{pC}"); p(f"v_readfirstlane_b32 s{sN+1}, v{pC+1}")
    p(f"s_cmp_lg_u32 s{sN}, 0"); p(f"s_cbranch_scc1 {tag}_nok")
    p(poll(pC))
    p(f"s_sub_u32 s{sSp}, s{sSp}, 1"); p(f"s_cmp_lg_u32 s{sSp}, 0"); p(f"s_cbranch_scc1 {tag}_nspin_l")
    p("s_waitcnt vmcnt(0)")
    p(f"s_branch {tag}_nok")
    p(f"{tag}_gspin:")
    p(f"s_mov_b32 s{sSp}, {SPIN}")
    p(f"{tag}_gspin_l:")
    for l in gather_loads(): p(l)
    p("s_waitcnt vmcnt(0)")
    for l in chk_ops([GX] + GC): p(l)
    p(f"s_cbranch_scc0 {tag}_gok")
    p(f"s_sub_u32 s{sSp}, s{sSp}, 1"); p(f"s_cmp_lg_u32 s{sSp}, 0"); p(f"s_cbranch_scc1 {tag}_gspin_l")
    p(f"s_branch {tag}_gok")
    if a2a:
        p(f"{tag}_zspin:")
        p(f"s_mov_b32 s{sSp}, {SPIN}")
        p(f"{tag}_zspin_l:")
        for l in zg_loads(): p(l)
        p("s_waitcnt vmcnt(0)")
        for l in zg_chk() + zg_chk2(): p(l)
        p(f"s_cbranch_scc0 {tag}_zok")
        p(f"s_sub_u32 s{sSp}, s{sSp}, 1"); p(f"s_cmp_lg_u32 s{sSp}, 0"); p(f"s_cbranch_scc1 {tag}_zspin_l")
        p(f"s_branch {tag}_zok")
    p(f"{tag}_aux:")
    p("s_waitcnt lgkmcnt(0)")
    fin(sX, 2048*1280); fin(sWS, WS_SIZE); fin(sD, 256)
    p(f"s_load_dwordx2 s[{sWi}:{sWi+1}], s[0:1], 56"); p(f"s_load_dwordx2 s[{sWq}:{sWq+1}], s[0:1], 16"); p(f"s_load_dwordx2 s[{sP}:{sP+1}], s[0:1], 40")
    p(poll(pA))
    xrow_loads()
    p("s_waitcnt vmcnt(0)")
    for l in xstats_ops(xr, vD_, vE_, vQ_, XP): p(l)
    p(f"s_cmp_lg_u32 s{sw}, 0"); p(f"s_cbranch_scc1 {tag}_aux_w")
    p(f"s_mov_b32 s{sSp}, {SPIN}")
    p(f"{tag}_aux_l:")
    p(f"v_readfirstlane_b32 s{sN}, v{pA}"); p(f"v_readfirstlane_b32 s{sN+1}, v{pA+1}")
    p(f"s_cmp_lg_u32 s{sN}, 0"); p(f"s_cbranch_scc1 {tag}_aux_ok")
    p(poll(pA)); p("s_waitcnt vmcnt(0)")
    p(f"s_sub_u32 s{sSp}, s{sSp}, 1"); p(f"s_cmp_lg_u32 s{sSp}, 0"); p(f"s_cbranch_scc1 {tag}_aux_l")
    p(f"{tag}_aux_ok:")
    p(f"v_mov_b32 v{pA}, s{sN}"); p(f"v_mov_b32 v{pA+1}, s{sN+1}"); p(f"v_mov_b32 v{vA}, {NONL}")
    p(f"ds_write_b64 v{vA}, v[{pA}:{pA+1}]")
    p(f"{tag}_aux_w:")
    p("s_waitcnt lgkmcnt(0)"); p("s_barrier")
    p(f"v_mov_b32 v{vA}, {NONL}"); p(f"ds_read_b64 v[{XP+2}:{XP+3}], v{vA}"); p("s_waitcnt lgkmcnt(0)")
    p(f"buffer_store_dwordx4 v[{XP}:{XP+3}], v{vL0}, s[{sWS}:{sWS+3}], s{sXG} offen sc1")
    fin(sWi, 864*1280); fin(sWq, 640*1280)
    if touch:
        fin(sP, 2048*4096)
        p(f"s_lshl_b32 s{sT0}, s{sRb}, 19"); p(f"v_lshlrev_b32 v{vA}, 7, v0")
        for k in range(8):
            p(f"buffer_load_dword v{T+k}, v{vA}, s[{sP}:{sP+3}], s{sT0} offen")
            p(f"s_add_u32 s{sT0}, s{sT0}, 0x10000")
    if wfrag:
        so = X; vTr = X + 5; vD16 = X + 6; c_, a_, b_, d_ = X + 8, X + 9, X + 10, X + 11; F = X + 16
        sM1 = sLA; sTl = sLB; sIt = sJ; sCt_ = sOX; sKs = sOW0; sSo = sOW1; sLb = sXr; sDo = sSt
        p(f"v_and_b32 v{vL}, 63, v0")
        p(f"s_mov_b32 s{sM1}, {magic(10, 512)}")
        for i in range(5):
            p(f"v_add_u32 v{c_}, {64*i}, v{vL}")
            p(f"v_mul_hi_u32 v{d_}, v{c_}, s{sM1}")
            p(f"v_mul_u32_u24 v{a_}, 10, v{d_}"); p(f"v_sub_u32 v{b_}, v{c_}, v{a_}"); p(f"v_lshlrev_b32 v{b_}, 4, v{b_}")
            p(f"v_and_b32 v{a_}, 0xfffffff3, v{d_}")
            p(f"v_lshrrev_b32 v{c_}, 1, v{d_}"); p(f"v_and_b32 v{c_}, 4, v{c_}"); p(f"v_or_b32 v{a_}, v{a_}, v{c_}")
            p(f"v_lshlrev_b32 v{c_}, 1, v{d_}"); p(f"v_and_b32 v{c_}, 8, v{c_}"); p(f"v_or_b32 v{a_}, v{a_}, v{c_}")
            p(f"v_mul_u32_u24 v{a_}, 1280, v{a_}"); p(f"v_add_u32 v{so+i}, v{a_}, v{b_}")
        p(f"s_mul_i32 s{sLb}, s{sw}, 5120")
        assert 8*5120 <= NONL
        p(f"v_lshrrev_b32 v{a_}, 5, v{vL}"); p(f"v_lshlrev_b32 v{a_}, 4, v{a_}")
        p(f"v_lshrrev_b32 v{b_}, 4, v{vL}"); p(f"v_and_b32 v{b_}, 1, v{b_}"); p(f"v_lshlrev_b32 v{b_}, 2, v{b_}"); p(f"v_add_u32 v{a_}, v{a_}, v{b_}")
        p(f"v_lshrrev_b32 v{b_}, 2, v{vL}"); p(f"v_and_b32 v{b_}, 3, v{b_}"); p(f"v_add_u32 v{a_}, v{a_}, v{b_}")
        p(f"v_mul_u32_u24 v{a_}, 160, v{a_}"); p(f"v_and_b32 v{b_}, 3, v{vL}"); p(f"v_lshlrev_b32 v{b_}, 3, v{b_}"); p(f"v_add_u32 v{a_}, v{a_}, v{b_}")
        p(f"v_add_u32 v{vTr}, s{sLb}, v{a_}")
        p(f"v_lshlrev_b32 v{vD16}, 4, v{vL}")
        p(f"s_lshl_b32 s{sTl}, s{sRb}, 3"); p(f"s_add_u32 s{sTl}, s{sTl}, s{sw}")
        p(f"{tag}_rp:")
        p(f"s_cmp_ge_u32 s{sTl}, 376"); p(f"s_cbranch_scc1 {tag}_done")
        p(f"s_mov_b32 s{sM1}, {magic(47, 512)}"); p(f"s_mul_hi_u32 s{sCt_}, s{sTl}, s{sM1}")
        p(f"s_mul_i32 s{sKs}, s{sCt_}, 47"); p(f"s_sub_u32 s{sKs}, s{sTl}, s{sKs}")
        p(f"s_mul_i32 s{sCt_}, s{sCt_}, 160")
        p(f"s_mul_i32 s{sDo}, s{sTl}, 5120"); p(f"s_add_u32 s{sDo}, s{sDo}, {WS_WR}")
        p(f"s_cmp_ge_u32 s{sKs}, 27"); p(f"s_cbranch_scc1 {tag}_rpq")
        for srd_, lab in ((sWi, None), (sWq, f"{tag}_rpq")):
            if lab:
                p(f"s_branch {tag}_rpl"); p(f"{lab}:"); p(f"s_sub_u32 s{sKs}, s{sKs}, 27")
            p(f"s_mul_i32 s{sSo}, s{sKs}, {32*1280}"); p(f"s_add_u32 s{sSo}, s{sSo}, s{sCt_}")
            for i in range(5):
                p(f"s_add_u32 m0, s{sLb}, {1024*i}")
                p(f"buffer_load_dwordx4 v{so+i}, s[{srd_}:{srd_+3}], s{sSo} offen lds")
        p(f"{tag}_rpl:")
        p("s_waitcnt vmcnt(0)")
        for nb in range(5):
            for h in range(2): p(f"ds_read_b64_tr_b16 v[{F+4*nb+2*h}:{F+4*nb+2*h+1}], v{vTr} offset:{h*1280 + nb*32}")
        p("s_waitcnt lgkmcnt(0)")
        for nb in range(5):
            p(f"buffer_store_dwordx4 v[{F+4*nb}:{F+4*nb+3}], v{vD16}, s[{sWS}:{sWS+3}], s{sDo} offen {sc}")
            p(f"s_add_u32 s{sDo}, s{sDo}, 1024")
        p(f"s_add_u32 s{sTl}, s{sTl}, 128")
        p(f"s_branch {tag}_rp")
        p(f"{tag}_done:")
        return dict(vgpr=V.n, sgpr=S.n, lds=LDS, stamps=st.names)
    sM1 = sLA; sM2 = sLB; sIt = sJ; sC0 = sOX
    p(f"s_mov_b32 s{sM1}, {magic(15040, 131072)}"); p(f"s_mov_b32 s{sM2}, {magic(10, 15040)}")
    p(f"s_mul_i32 s{sC0}, s{sRb}, {15*512}"); p(f"s_mov_b32 s{sIt}, 0"); p(f"s_mov_b32 s{sWSo}, {WS_WR}")
    NU = 5
    rr = X; cc = X + 4*NU; a_, b_, d_, e_ = cc + NU, cc + NU + 1, cc + NU + 2, cc + NU + 3
    p(f"{tag}_rp:")
    for u in range(NU):
        c_ = cc + u
        p(f"v_add_u32 v{c_}, s{sC0}, v0"); p(f"s_add_u32 s{sC0}, s{sC0}, 512")
        p(f"v_mul_hi_u32 v{a_}, v{c_}, s{sM1}")
        p(f"v_mul_u32_u24 v{b_}, 15040, v{a_}"); p(f"v_sub_u32 v{b_}, v{c_}, v{b_}")
        p(f"v_mul_hi_u32 v{d_}, v{b_}, s{sM2}")
        p(f"v_mul_u32_u24 v{e_}, 10, v{d_}"); p(f"v_sub_u32 v{b_}, v{b_}, v{e_}")
        p(f"v_lshlrev_b32 v{b_}, 4, v{b_}"); p(f"v_mul_u32_u24 v{a_}, 160, v{a_}"); p(f"v_add_u32 v{b_}, v{a_}, v{b_}")
        p(f"v_and_b32 v{a_}, 0xfffffff3, v{d_}")
        p(f"v_lshrrev_b32 v{e_}, 1, v{d_}"); p(f"v_and_b32 v{e_}, 4, v{e_}"); p(f"v_or_b32 v{a_}, v{a_}, v{e_}")
        p(f"v_lshlrev_b32 v{e_}, 1, v{d_}"); p(f"v_and_b32 v{e_}, 8, v{e_}"); p(f"v_or_b32 v{a_}, v{a_}, v{e_}")
        p(f"v_mul_u32_u24 v{d_}, 1280, v{a_}"); p(f"v_add_u32 v{b_}, v{b_}, v{d_}")
        p(f"v_cmp_gt_u32 vcc, 864, v{a_}"); p(f"s_and_saveexec_b64 s[{sE}:{sE+1}], vcc")
        p(f"buffer_load_dwordx4 v[{rr+4*u}:{rr+4*u+3}], v{b_}, s[{sWi}:{sWi+3}], 0 offen")
        p(f"s_andn2_b64 exec, s[{sE}:{sE+1}], exec")
        p(f"v_subrev_u32 v{b_}, {864*1280}, v{b_}")
        p(f"buffer_load_dwordx4 v[{rr+4*u}:{rr+4*u+3}], v{b_}, s[{sWq}:{sWq+3}], 0 offen")
        p(f"s_mov_b64 exec, s[{sE}:{sE+1}]")
        p(f"v_cmp_gt_u32 vcc, 120320, v{c_}"); p(f"v_lshlrev_b32 v{c_}, 4, v{c_}"); p(f"v_mov_b32 v{a_}, {hx(OOB)}"); p(f"v_cndmask_b32 v{c_}, v{a_}, v{c_}, vcc")
    p("s_waitcnt vmcnt(0)")
    for u in range(NU):
        p(f"buffer_store_dwordx4 v[{rr+4*u}:{rr+4*u+3}], v{cc+u}, s[{sWS}:{sWS+3}], s{sWSo} offen {sc}")
    p(f"s_add_u32 s{sIt}, s{sIt}, 1"); p(f"s_cmp_lt_u32 s{sIt}, 3")
    p("s_waitcnt vmcnt(0)")
    p(f"s_cbranch_scc1 {tag}_rp")
    p(f"{tag}_done:")
    return dict(vgpr=V.n, sgpr=S.n, lds=LDS, stamps=st.names)
```
